```python
import torch

def _softmax(x, axis=-1):
    return torch.softmax(x, dim=axis)

def _gelu(x):
    return torch.nn.functional.gelu(x, approximate='tanh')

def _silu(x):
    return torch.nn.functional.silu(x)

def _sigmoid(x):
    return torch.sigmoid(x)

def _layernorm(x, axis=-1, eps=1e-05):
    m = x.mean(dim=axis, keepdim=True)
    v = x.var(dim=axis, keepdim=True, unbiased=False)
    return (x - m) / torch.sqrt(v + eps)

def _scatter_add(tgt, idx, src, axis=0):
    return tgt.clone().index_add_(axis, idx, src)

def _segment_sum(src, seg, n):
    out = torch.zeros((n,) + src.shape[1:], dtype=src.dtype)
    return out.index_add_(0, seg, src)

def _pad(x, pw):
    flat = tuple((v for pair in reversed(pw) for v in pair))
    return torch.nn.functional.pad(x, flat)
kernel_name = 'recurrent_scan__linear_attn_block__mixer_gmlp__prompt'

def setup_inputs():

    _w = lambda a: (lambda t: t.to(torch.bfloat16) if t.is_floating_point() else t)(torch.as_tensor(a))

    def _A_setup():
        B, S, D = (1, 2048, 1024)
        return {'x': _w((lambda *s: torch.randn(*s, dtype=torch.bfloat16) * 0.05)(B, S, D)), 'wqkv': _w((lambda *s: torch.randn(*s, dtype=torch.bfloat16) * 0.05)(D, 3 * D)), 'wo': _w((lambda *s: torch.randn(*s, dtype=torch.bfloat16) * 0.05)(D, D))}
    _A_in = _A_setup()

    def _B_setup():
        B, S, D, F = (1, 2048, 1024, 3584)
        Fh = F // 2
        return {'x': _w((lambda *s: torch.randn(*s, dtype=torch.bfloat16) * 0.05)(B, S, D)), 'w_in': _w((lambda *s: torch.randn(*s, dtype=torch.bfloat16) * 0.4)(D, 2 * Fh)), 'w_sp': _w(0.01 * (lambda *s: torch.randn(*s, dtype=torch.bfloat16) * 0.4)(S, S)), 'b_sp': _w(1.0 + 0.01 * (lambda *s: torch.randn(*s, dtype=torch.bfloat16) * 0.05)(S)), 'w_out': _w((lambda *s: torch.randn(*s, dtype=torch.bfloat16) * 0.05)(Fh, D))}
    _B_in = _B_setup()
    return {'A_x': _A_in['x'], 'A_wqkv': _A_in['wqkv'], 'A_wo': _A_in['wo'], 'B_x': _B_in['x'], 'B_w_in': _B_in['w_in'], 'B_w_sp': _B_in['w_sp'], 'B_b_sp': _B_in['b_sp'], 'B_w_out': _B_in['w_out']}

def reference(A_x, A_wqkv, A_wo, B_x, B_w_in, B_w_sp, B_b_sp, B_w_out):

    def _A_ref(x, wqkv, wo):
        B, S, D = x.shape
        H = 32
        Dh = D // H
        qkv = (lambda x, *d: x.permute(*d))((x @ wqkv).reshape(B, S, 3, H, Dh), 2, 0, 3, 1, 4)
        q, k, v = (qkv[0], qkv[1], qkv[2])
        phi = lambda t: torch.where(t > 0, t + 1, torch.exp(t)) + 1e-06
        pq, pk = (phi(q), phi(k))
        kv = torch.einsum('bhsd,bhse->bhde', pk, v)
        z = torch.einsum('bhsd->bhd', pk)
        num = torch.einsum('bhqd,bhde->bhqe', pq, kv)
        den = torch.einsum('bhqd,bhd->bhq', pq, z)[..., None] + 1e-06
        o = num / den
        return (lambda x, *d: x.permute(*d))(o, 0, 2, 1, 3).reshape(B, S, D) @ wo

    def _B_ref(x, w_in, w_sp, b_sp, w_out):
        B, S, D = x.shape
        F = w_in.shape[-1]
        Fh = F // 2
        z = _gelu(torch.einsum('bsd,df->bsf', x, w_in))
        z1 = z[..., :Fh].clone()
        z2 = _layernorm(z[..., Fh:], axis=-1)
        g = torch.einsum('ts,bsf->btf', w_sp, z2) + b_sp[None, :, None]
        return torch.einsum('bsf,fd->bsd', z1 * g, w_out)
    x = A_x
    xn = _layernorm(x, axis=-1)
    s = _A_ref(xn, A_wqkv, A_wo)
    g = _silu(_B_ref(xn, B_w_in, B_w_sp, B_b_sp, B_w_out))
    return x + s * g
```

```python
class Asm:
    def __init__(self):
        self.lines = []
    def __call__(self, s=""):
        for l in s.split("\n"):
            self.lines.append(l)
    def e(self, s):
        self.lines.append("    " + s)
    def label(self, s):
        self.lines.append(s + ":")
    def text(self):
        return "\n".join(self.lines) + "\n"

def kernel_begin(a, name):
    a(".text")
    a(f".globl {name}")
    a(".p2align 8")
    a(f".type {name},@function")
    a(f"{name}:")

def kernel_desc(a, name, vgpr=256, sgpr=102, accum=256, kernarg=88, wgy=False):
    a('.section .rodata,"a"')
    a(".p2align 6")
    a(f".amdhsa_kernel {name}")
    a(f"  .amdhsa_next_free_vgpr {vgpr}")
    a(f"  .amdhsa_next_free_sgpr {sgpr}")
    a(f"  .amdhsa_accum_offset {accum}")
    a("  .amdhsa_group_segment_fixed_size 0")
    a(f"  .amdhsa_kernarg_size {kernarg}")
    a("  .amdhsa_user_sgpr_count 2")
    a("  .amdhsa_user_sgpr_kernarg_segment_ptr 1")
    a("  .amdhsa_system_sgpr_workgroup_id_x 1")
    if wgy:
        a("  .amdhsa_system_sgpr_workgroup_id_y 1")
    a(".end_amdhsa_kernel")

def srd(a, d, b, nbytes):
    a.e(f"s_mov_b32 s{d}, s{b}")
    a.e(f"s_and_b32 s{d+1}, s{b+1}, 0xffff")
    a.e(f"s_mov_b32 s{d+2}, {nbytes:#x}")
    a.e(f"s_mov_b32 s{d+3}, 0x00020000")
```

```python
from asmlib import *
import struct, math
KN = "recurrent_scan__linear_attn_block__mixer_gmlp__prompt"
MB = 1 << 20
XN   = 0
PQ   = 4 * MB
Z1   = 8 * MB
Z2N  = 16 * MB
AU   = 24 * MB
KVP  = 36 * MB
KVR  = 44 * MB
STATS = KVR + 96 * 1024
SENT_BYTES = 224 * 1024
TIM  = 48 * MB
WS_SIZE = 0x10000000

def f2u(x):
    return struct.unpack("<I", struct.pack("<f", x))[0]
LOG2E = 1.4426950408889634
GC0 = -2.0 * math.sqrt(2.0 / math.pi) * LOG2E
GC1 = GC0 * 0.044715

def vr(b, n=1):
    return f"v{b}" if n == 1 else f"v[{b}:{b+n-1}]"
def sr(b, n=1):
    return f"s{b}" if n == 1 else f"s[{b}:{b+n-1}]"

def interleave(a, mfmas, fillers):
    fl = sorted(fillers, key=lambda t: t[0])
    fi = 0
    while fi < len(fl) and fl[fi][0] < 0:
        for s in fl[fi][1]: a.e(s)
        fi += 1
    for k, m in enumerate(mfmas):
        a.e(m)
        while fi < len(fl) and fl[fi][0] <= k:
            for s in fl[fi][1]: a.e(s)
            fi += 1
    while fi < len(fl):
        for s in fl[fi][1]: a.e(s)
        fi += 1

def pos_of(zn):
    if zn < 7: return 0, zn
    return 1, {3:0, 4:1, 5:2, 6:3, 1:4, 2:5, 0:6}[zn - 7]

def stamp(a, cfg, idx):
    if cfg.get("tim"):
        a.e(f"s_memtime s[{80+2*idx}:{81+2*idx}]")

def stamp_store(a, cfg, kidx, nst, srd_ws, swave):
    if not cfg.get("tim"): return
    L = f"L_tim_{kidx}_{stamp_store.n}"; stamp_store.n += 1
    a.e(f"s_memrealtime s[{80+2*nst}:{81+2*nst}]")
    a.e("s_waitcnt lgkmcnt(0)")
    a.e(f"s_lshl_b32 s79, s2, 3")
    a.e(f"s_add_u32 s79, s79, {swave}")
    a.e(f"s_lshl_b32 s79, s79, 5")
    a.e(f"s_add_u32 s79, s79, {TIM + kidx*256*8*32}")
    a.e("v_mov_b32 v0, 0")
    for k in range(nst + 1):
        a.e(f"v_mov_b32 v1, s{80+2*k}")
        a.e(f"buffer_store_dword v1, v0, {sr(srd_ws,4)}, s79 offen offset:{4*k}")
        a.e("s_nop 1")
stamp_store.n = 0
```

```python
from gen_common import *
def k0(a, cfg):
    name = "k0_ln_kernel"
    kernel_begin(a, name)
    a.e("s_cmp_ge_u32 s2, 256")
    a.e("s_cbranch_scc1 L_k0_end")
    a.e("s_load_dwordx2 s[4:5], s[0:1], 0")
    a.e("s_load_dwordx2 s[6:7], s[0:1], 80")
    a.e("v_lshrrev_b32 v1, 6, v0")
    a.e("v_and_b32 v2, 63, v0")
    a.e("v_readfirstlane_b32 s20, v1")
    a.e("s_lshr_b32 s21, s2, 1")
    a.e("s_and_b32 s22, s2, 1")
    a.e("s_lshr_b32 s23, s21, 1")
    a.e("s_lshl_b32 s23, s23, 5")
    a.e("s_and_b32 s24, s21, 1")
    a.e("s_lshl_b32 s24, s24, 2")
    a.e("s_add_u32 s23, s23, s24")
    a.e("s_lshl_b32 s24, s22, 4")
    a.e("s_add_u32 s23, s23, s24")
    a.e("s_lshr_b32 s24, s20, 1")
    a.e("s_lshl_b32 s24, s24, 3")
    a.e("s_add_u32 s23, s23, s24")
    a.e("s_and_b32 s24, s20, 1")
    a.e("s_lshl_b32 s24, s24, 1")
    a.e("s_add_u32 s23, s23, s24")
    a.e("s_lshl_b32 s23, s23, 11")
    a.e("v_lshrrev_b32 v3, 5, v2")
    a.e("v_and_b32 v4, 31, v2")
    a.e("v_lshlrev_b32 v5, 11, v3")
    a.e("v_lshl_add_u32 v5, v4, 4, v5")
    a.e("s_waitcnt lgkmcnt(0)")
    srd(a, 8, 4, 4 * MB)
    srd(a, 12, 6, WS_SIZE)
    for n in range(4):
        a.e(f"buffer_load_dwordx4 v[{16+4*n}:{19+4*n}], v5, s[8:11], s23 offen offset:{512*n}")
    a.e("s_lshr_b32 s24, s21, 3")
    a.e("s_lshl_b32 s24, s24, 18")
    a.e("s_and_b32 s25, s21, 7")
    a.e("s_lshl_b32 s25, s25, 10")
    a.e("s_add_u32 s24, s24, s25")
    a.e("s_lshl_b32 s25, s22, 7")
    a.e("s_add_u32 s24, s24, s25")
    a.e("s_lshl_b32 s25, s20, 5")
    a.e("s_add_u32 s24, s24, s25")
    if XN: a.e(f"s_add_u32 s24, s24, {XN}")
    a.e("s_add_u32 s25, s24, 65536")
    a.e("s_add_u32 s26, s24, 131072")
    a.e("s_add_u32 s27, s24, 196608")
    a.e("v_lshrrev_b32 v6, 2, v4")
    a.e("v_lshlrev_b32 v6, 13, v6")
    a.e("v_and_b32 v7, 3, v4")
    a.e("v_lshl_add_u32 v6, v7, 8, v6")
    a.e("v_lshl_add_u32 v6, v3, 4, v6")
    a.e("s_mov_b32 s28, 0xffff0000")
    a.e("s_waitcnt vmcnt(0)" )
    for k in range(16):
        a.e(f"v_lshlrev_b32 v{32+2*k}, 16, v{16+k}")
        a.e(f"v_and_b32 v{33+2*k}, s28, v{16+k}")
    def reduce32(r, t):
        for sh in (8, 4, 2, 1):
            a.e("s_nop 1")
            a.e(f"v_add_f32_dpp v{r}, v{r}, v{r} row_ror:{sh} row_mask:0xf bank_mask:0xf")
        a.e(f"v_mov_b32 v{t}, v{r}")
        a.e("s_nop 1")
        a.e(f"v_permlane16_swap_b32 v{t}, v{r}")
        a.e("s_nop 1")
        a.e(f"v_add_f32 v{r}, v{r}, v{t}")
    a.e("v_pk_add_f32 v[8:9], v[32:33], v[34:35]")
    a.e("v_pk_add_f32 v[10:11], v[36:37], v[38:39]")
    for k in range(4, 16, 2):
        a.e(f"v_pk_add_f32 v[8:9], v[8:9], v[{32+2*k}:{33+2*k}]")
        a.e(f"v_pk_add_f32 v[10:11], v[10:11], v[{34+2*k}:{35+2*k}]")
    a.e("v_pk_add_f32 v[8:9], v[8:9], v[10:11]")
    a.e("v_add_f32 v8, v8, v9")
    reduce32(8, 9)
    a.e(f"v_mul_f32 v8, {f2u(-1.0/1024):#x}, v8")
    a.e("v_mov_b32 v9, v8")
    for k in range(16):
        a.e(f"v_pk_add_f32 v[{32+2*k}:{33+2*k}], v[{32+2*k}:{33+2*k}], v[8:9]")
    a.e("v_pk_mul_f32 v[10:11], v[32:33], v[32:33]")
    a.e("v_pk_mul_f32 v[12:13], v[34:35], v[34:35]")
    for k in range(2, 16, 2):
        a.e(f"v_pk_fma_f32 v[10:11], v[{32+2*k}:{33+2*k}], v[{32+2*k}:{33+2*k}], v[10:11]")
        a.e(f"v_pk_fma_f32 v[12:13], v[{34+2*k}:{35+2*k}], v[{34+2*k}:{35+2*k}], v[12:13]")
    a.e("v_pk_add_f32 v[10:11], v[10:11], v[12:13]")
    a.e("v_add_f32 v10, v10, v11")
    reduce32(10, 11)
    a.e(f"v_mov_b32 v11, {f2u(1e-5):#x}")
    a.e(f"v_fmac_f32 v11, {f2u(1.0/1024):#x}, v10")
    a.e("v_rsq_f32 v10, v11")
    a.e("s_nop 0")
    a.e("v_mov_b32 v11, v10")
    for k in range(16):
        a.e(f"v_pk_mul_f32 v[{32+2*k}:{33+2*k}], v[{32+2*k}:{33+2*k}], v[10:11]")
    for k in range(16):
        a.e(f"v_cvt_pk_bf16_f32 v{16+k}, v{32+2*k}, v{33+2*k}")
    for n in range(4):
        a.e(f"buffer_store_dwordx4 v[{16+4*n}:{19+4*n}], v6, s[12:15], s{24+n} offen")
    a.e("v_mov_b32 v8, -1"); a.e("v_mov_b32 v9, -1"); a.e("v_mov_b32 v10, -1"); a.e("v_mov_b32 v11, -1")
    a.e("s_mul_i32 s30, s2, 896")
    a.e(f"s_add_u32 s30, s30, {KVR}")
    a.e("v_lshlrev_b32 v7, 4, v0")
    a.e("v_cmp_gt_u32 vcc, 56, v0")
    a.e("s_and_saveexec_b64 s[34:35], vcc")
    a.e("s_cbranch_execz L_k0_end")
    a.e("buffer_store_dwordx4 v[8:11], v7, s[12:15], s30 offen")
    a.label("L_k0_end")
    a.e("s_endpgm")
    return (name, "(256,1,1)", "(256,1,1)", 0, dict(vgpr=64, sgpr=48, accum=64))
```

```python
from gen_common import *
SLOT = 34 * 1024
ACC = 128
def acc(n, m): return ACC + (n * 4 + m) * 4
def fa(P, m): return 16 + 16 * P + 4 * m
def fb(P, n): return 48 + 28 * P + 4 * n
def tiles_of(G):
    z = lambda zn: ("z", 6 + zn // 2, zn & 1, zn)
    if G == 0: return [("k", 2, 0, 0), ("k", 2, 1, 1), ("v", 4, 0, 0), ("v", 4, 1, 1), z(0), z(1), z(2)]
    if G == 1: return [("k", 3, 0, 0), ("k", 3, 1, 1), ("v", 5, 0, 0), ("v", 5, 1, 1), z(3), z(4), z(5)]
    if G == 2: return [("q", 0, 0, 0), ("q", 0, 1, 1), z(6), z(7), z(8), z(9)]
    if G == 3: return [("q", 1, 0, 0), ("q", 1, 1, 1), z(10), z(11), z(12), z(13)]

def dmas(G, slot):
    out = []
    base = slot * SLOT
    def B(c, imm, v, srd_, so):
        return [f"s_add_u32 m0, s28, {base + 8192 + c*1024 - imm}", "@",
                f"buffer_load_dwordx4 v{v}, {sr(srd_,4)}, s{so} offen offset:{imm} lds"]
    if G in (0, 1):
        out.append([f"s_add_u32 m0, s27, {base}", "@", "buffer_load_dwordx4 v2, s[4:7], s24 offen lds"])
        out.append(["buffer_load_dwordx4 v2, s[4:7], s24 offen offset:1024 lds", "s_add_u32 s24, s24, 8192"])
        c0 = 0 if G == 0 else 2
        out.append(B(c0, 0, 3, 8, 25))
        out.append(B(c0 + 1, 64, 3, 8, 25) + [f"s_add_u32 s25, s25, {32*6144}"])
    if G == 2:
        for c in range(6, 10):
            out.append(B(c, 64 * (c - 6), 4, 12, 26))
        out[-1].append(f"s_add_u32 s26, s26, {32*7168}")
    if G == 3:
        out.append(B(4, 0, 3, 8, 25))
        out.append(B(5, 64, 3, 8, 25) + [f"s_add_u32 s25, s25, {32*6144}"])
        for c in range(10, 13):
            out.append(B(c, 64 * (c - 6), 4, 12, 26))
        out[-1].append(f"s_add_u32 s26, s26, {32*7168}")
    return out

def reads(G, P, slot):
    T = tiles_of(G)
    hi = slot >> 1
    base = (slot & 1) * SLOT
    out = []
    for m in range(4):
        out.append(f"ds_read_b128 {vr(fa(P,m),4)}, v{5+hi} offset:{base + m*1024}")
    for n, (kind, blk, hf, zn) in enumerate(T):
        for h in range(2):
            out.append(f"ds_read_b64_tr_b16 {vr(fb(P,n)+2*h,2)}, v{7+2*hi+hf} offset:{base + blk*1024 + h*256}")
    return out

def mfmas(G, zt, P, first=False):
    out = []
    for n, (kind, blk, hf, zn) in enumerate(tiles_of(G)):
        dt = kind == "q" or (kind == "z" and zt == 1)
        for m in range(4):
            A, Bq = vr(fa(P, m), 4), vr(fb(P, n), 4)
            if dt: A, Bq = Bq, A
            c = "0" if first else vr(acc(n, m), 4)
            out.append(f"v_mfma_f32_16x16x32_bf16 {vr(acc(n,m),4)}, {A}, {Bq}, {c}")
    return out

def step(a, cfg, G, zt, t, slot, dma, nwait, first=False, last=False):
    P = t & 1
    D = len(dmas(G, 0))
    if nwait is not None:
        a.e(f"s_waitcnt vmcnt({nwait}) lgkmcnt(0)")
    else:
        a.e("s_waitcnt lgkmcnt(0)")
    a.e("s_barrier")
    M = mfmas(G, zt, P, first)
    fill = []
    if not last:
        R = reads(G, P ^ 1, (slot + 1) & 3)
        r0 = cfg.get("k1_r0", 0); rs = cfg.get("k1_rs", 1.0)
        for k, r in enumerate(R):
            fill.append((int(r0 + k * rs), [r]))
    if dma:
        DM = dmas(G, slot)
        d0, ds = cfg.get("k1_d", {}).get(G, (2, 5))
        for k, grp in enumerate(DM):
            p = min(d0 + k * ds, len(M) - 2)
            if "@" in grp:
                i = grp.index("@")
                fill.append((p, grp[:i])); fill.append((p + 1, grp[i+1:]))
            else:
                fill.append((p + 1, grp))
    interleave(a, M, fill)

def gelu8(a, xs, T):
    t = [T + 2 * k for k in range(4)]
    for k in range(4): a.e(f"v_pk_mul_f32 {vr(t[k],2)}, {vr(xs[k],2)}, {vr(xs[k],2)}")
    for k in range(4): a.e(f"v_pk_fma_f32 {vr(t[k],2)}, {vr(t[k],2)}, s[42:43], v[12:13]")
    for k in range(4): a.e(f"v_pk_mul_f32 {vr(t[k],2)}, {vr(t[k],2)}, {vr(xs[k],2)}")
    for k in range(8): a.e(f"v_exp_f32 v{T+k}, v{T+k}")
    for k in range(4): a.e(f"v_pk_add_f32 {vr(t[k],2)}, {vr(t[k],2)}, s[44:45]")
    for k in range(8): a.e(f"v_rcp_f32 v{T+k}, v{T+k}")
    for k in range(4): a.e(f"v_pk_mul_f32 {vr(xs[k],2)}, {vr(xs[k],2)}, {vr(t[k],2)}")

def phi8(a, xs, T):
    t = [T + 2 * k for k in range(4)]
    for k in range(4): a.e(f"v_pk_mul_f32 {vr(t[k],2)}, {vr(xs[k],2)}, s[46:47]")
    for k in range(4):
        a.e(f"v_max_f32 v{xs[k]}, 0, v{xs[k]}"); a.e(f"v_max_f32 v{xs[k]+1}, 0, v{xs[k]+1}")
    for k in range(8): a.e(f"v_exp_f32_e64 v{T+k}, v{T+k} clamp")
    for k in range(4): a.e(f"v_pk_add_f32 {vr(xs[k],2)}, {vr(xs[k],2)}, s[48:49]")
    for k in range(4): a.e(f"v_pk_add_f32 {vr(xs[k],2)}, {vr(xs[k],2)}, {vr(t[k],2)}")

def pack(a, dst, r0, r1):
    a.e(f"v_cvt_pk_bf16_f32 v{dst}, v{r0}, v{r0+1}")
    a.e(f"v_cvt_pk_bf16_f32 v{dst+1}, v{r0+2}, v{r0+3}")
    a.e(f"v_cvt_pk_bf16_f32 v{dst+2}, v{r1}, v{r1+1}")
    a.e(f"v_cvt_pk_bf16_f32 v{dst+3}, v{r1+2}, v{r1+3}")

def epi_attn(a, cfg, G):
    T = tiles_of(G)
    if G in (0, 1):
        for k in range(4): a.e(f"v_mov_b32 v{48+k}, 0x3f803f80")
        for et in range(2):
            for p in range(2):
                pack(a, 32 + 8*et + 4*p, acc(2+et, 2*p), acc(2+et, 2*p+1))
        for dt in range(2):
            for p in range(2):
                r0, r1 = acc(dt, 2*p), acc(dt, 2*p+1)
                phi8(a, [r0, r0+2, r1, r1+2], 104)
                pack(a, 16 + 8*dt + 4*p, r0, r1)
        a.e("s_nop 1")
        for p in range(2):
            for et in range(3):
                for dt in range(2):
                    d = vr(56 + 8*et + 4*dt, 4)
                    Bq = vr(32 + 8*et + 4*p, 4) if et < 2 else vr(48, 4)
                    a.e(f"v_mfma_f32_16x16x32_bf16 {d}, {vr(16+8*dt+4*p,4)}, {Bq}, {'0' if p == 0 else d}")
        a.e(f"s_lshl_b32 s30, s22, 1")
        if G: a.e("s_add_u32 s30, s30, 1")
        a.e("s_lshl_b32 s30, s30, 5")
        a.e("s_lshl_b32 s31, s21, 1")
        a.e("s_add_u32 s30, s30, s31")
        a.e("s_add_u32 s30, s30, s23")
        a.e("s_mul_i32 s30, s30, 6144")
        a.e(f"s_add_u32 s30, s30, {KVP}")
        a.e("s_add_u32 s31, s30, 4096")
        a.e("s_nop 7")
        for et in range(3):
            for dt in range(2):
                k = et*2 + dt
                a.e(f"buffer_store_dwordx4 {vr(56+4*k,4)}, v11, s[16:19], s{30 + (k>>2)} offen offset:{(k&3)*1024}")
    else:
        a.e("s_lshl_b32 s30, s21, 5")
        a.e("s_lshl_b32 s31, s22, 1")
        a.e("s_add_u32 s30, s30, s31")
        if G == 3: a.e("s_add_u32 s30, s30, 1")
        a.e("s_lshl_b32 s30, s30, 13")
        a.e("s_lshl_b32 s31, s23, 12")
        a.e("s_add_u32 s30, s30, s31")
        a.e(f"s_add_u32 s30, s30, {PQ}")
        for m in range(4):
            r0, r1 = acc(0, m), acc(1, m)
            phi8(a, [r0, r0+2, r1, r1+2], 104)
            pack(a, 16 + 4*m, r0, r1)
            a.e(f"buffer_store_dwordx4 {vr(16+4*m,4)}, v11, s[16:19], s30 offen offset:{m*1024}")

def epi_z1(a, cfg, G):
    T = tiles_of(G)
    a.e("s_lshl_b32 s32, s21, 4")
    a.e("s_lshl_b32 s33, s22, 1")
    a.e("s_add_u32 s32, s32, s33")
    a.e(f"s_mul_i32 s32, s32, {28*1024}")
    a.e("s_lshl_b32 s33, s23, 11")
    a.e("s_add_u32 s32, s32, s33")
    a.e(f"s_add_u32 s32, s32, {Z1}")
    k = 0
    for n, (kind, blk, hf, zn) in enumerate(T):
        if kind != "z": continue
        par, pos = pos_of(zn)
        a.e(f"s_add_u32 s33, s32, {(par*7 + pos)*4096}")
        for p in range(2):
            r0, r1 = acc(n, 2*p), acc(n, 2*p+1)
            gelu8(a, [r0, r0+2, r1, r1+2], 104)
            d = 80 + 4 * (k & 3); k += 1
            pack(a, d, r0, r1)
            a.e(f"buffer_store_dwordx4 {vr(d,4)}, v11, s[16:19], s33 offen offset:{p*1024}")

def epi_z2a(a, cfg, G):
    T = tiles_of(G)
    S, Q = 16, 32
    zi = 0
    for n, (kind, blk, hf, zn) in enumerate(T):
        if kind != "z": continue
        for p in range(2):
            r0, r1 = acc(n, 2*p), acc(n, 2*p+1)
            xs = [r0, r0+2, r1, r1+2]
            gelu8(a, xs, 104)
            for k in range(4):
                s, q = S + 8*p + 2*k, Q + 8*p + 2*k
                if zi == 0:
                    a.e(f"v_pk_mul_f32 {vr(q,2)}, {vr(xs[k],2)}, {vr(xs[k],2)}")
                else:
                    src = vr(s, 2) if zi > 1 else vr(xs[k] - 16, 2)
                    a.e(f"v_pk_add_f32 {vr(s,2)}, {src}, {vr(xs[k],2)}")
                    a.e(f"v_pk_fma_f32 {vr(q,2)}, {vr(xs[k],2)}, {vr(xs[k],2)}, {vr(q,2)}")
        zi += 1
    a.e("s_nop 1")
    for k in range(16): a.e(f"v_add_f32_dpp v{S+k}, v{S+k}, v{S+k} row_ror:8 row_mask:0xf bank_mask:0x3")
    for k in range(16): a.e(f"v_add_f32_dpp v{S+k}, v{Q+k}, v{Q+k} row_ror:8 row_mask:0xf bank_mask:0xc")
    for k in range(8): a.e(f"v_add_f32_dpp v{S+k}, v{S+k}, v{S+k} row_shl:4 row_mask:0xf bank_mask:0x5")
    for k in range(8): a.e(f"v_add_f32_dpp v{S+k}, v{S+8+k}, v{S+8+k} row_shr:4 row_mask:0xf bank_mask:0xa")
    for k in range(8): a.e(f"v_add_f32_dpp v{S+k}, v{S+k}, v{S+k} quad_perm:[1,0,3,2] row_mask:0xf bank_mask:0xf")
    for k in range(8): a.e(f"v_add_f32_dpp v{S+k}, v{S+k}, v{S+k} quad_perm:[2,3,0,1] row_mask:0xf bank_mask:0xf")
    a.e("v_and_b32 v1, 63, v0")
    a.e("v_bfe_u32 v2, v1, 3, 1")
    a.e("v_lshlrev_b32 v2, 9, v2")
    a.e("v_bfe_u32 v3, v1, 2, 1")
    a.e("v_lshl_add_u32 v2, v3, 7, v2")
    a.e("v_lshrrev_b32 v3, 4, v1")
    a.e("v_lshl_add_u32 v2, v3, 5, v2")
    a.e("s_lshl_b32 s30, s23, 8")
    a.e("v_add_u32 v2, s30, v2")
    a.e("s_mov_b32 s30, 0x11111111")
    a.e("s_mov_b32 s31, 0x11111111")
    a.e("s_mov_b64 exec, s[30:31]")
    a.e(f"ds_write_b128 v2, {vr(S,4)} offset:{G*1024}")
    a.e(f"ds_write_b128 v2, {vr(S+4,4)} offset:{G*1024+16}")
    a.e("s_mov_b64 exec, -1")
    a.e("s_waitcnt lgkmcnt(0)")
    a.e("s_barrier")
    if G == 2:
        a.e("s_lshl_b32 s30, s23, 6")
        a.e("v_add_u32 v2, s30, v1")
        a.e("v_lshlrev_b32 v3, 2, v2")
        for g in range(4):
            a.e(f"ds_read2st64_b32 {vr(16+2*g,2)}, v3 offset0:{4*g} offset1:{4*g+2}")
        a.e("v_lshlrev_b32 v4, 3, v2")
        a.e("s_lshl_b32 s34, s21, 13")
        a.e(f"s_add_u32 s34, s34, {STATS}")
        a.e("s_sub_u32 s35, s22, 8")
        a.e("s_lshl_b32 s35, s35, 10")
        a.e("s_add_u32 s35, s35, s34")
        a.e("s_waitcnt lgkmcnt(0)")
        a.e("v_pk_add_f32 v[16:17], v[16:17], v[18:19]")
        a.e("v_pk_add_f32 v[20:21], v[20:21], v[22:23]")
        a.e("v_pk_add_f32 v[16:17], v[16:17], v[20:21]")
        a.e("buffer_store_dwordx2 v[16:17], v4, s[16:19], s35 offen sc1")

def epi_z2b(a, cfg, G):
    T = tiles_of(G)
    if G == 2:
        a.e("s_add_u32 s35, s34, 4096")
        a.e("s_mov_b32 s36, 0")
        a.label("L_k1_poll")
        for k in range(8):
            a.e(f"buffer_load_dwordx2 {vr(32+2*k,2)}, v4, s[16:19], s{34 + (k>>2)} offen offset:{(k&3)*1024} sc1")
        a.e("s_waitcnt vmcnt(0)")
        a.e("v_cmp_eq_u32 vcc, -1, v32")
        for k in range(1, 16):
            a.e(f"v_cmp_eq_u32 s[38:39], -1, v{32+k}")
            a.e("s_or_b64 vcc, vcc, s[38:39]")
        a.e("s_add_u32 s36, s36, 1")
        a.e("s_cmp_gt_u32 s36, 20000")
        a.e("s_cbranch_scc1 L_k1_pollx")
        a.e("s_cmp_lg_u64 vcc, 0")
        a.e("s_cbranch_scc1 L_k1_poll")
        a.label("L_k1_pollx")
        for k in range(4): a.e(f"v_pk_add_f32 {vr(32+4*k,2)}, {vr(32+4*k,2)}, {vr(34+4*k,2)}")
        a.e("v_pk_add_f32 v[32:33], v[32:33], v[36:37]")
        a.e("v_pk_add_f32 v[40:41], v[40:41], v[44:45]")
        a.e("v_pk_add_f32 v[32:33], v[32:33], v[40:41]")
        a.e(f"v_mul_f32 v32, {f2u(1.0/1792):#x}, v32")
        a.e(f"v_mul_f32 v33, {f2u(1.0/1792):#x}, v33")
        a.e("v_fma_f32 v33, -v32, v32, v33")
        a.e("v_max_f32 v33, 0, v33")
        a.e(f"v_add_f32 v33, {f2u(1e-5):#x}, v33")
        a.e("v_rsq_f32 v33, v33")
        a.e("s_nop 0")
        a.e("v_mul_f32_e64 v32, -v32, v33")
        a.e("ds_write2st64_b32 v3, v33, v32 offset0:16 offset1:18")
        a.e("s_waitcnt lgkmcnt(0)")
    a.e("s_barrier")
    a.e("v_lshrrev_b32 v2, 4, v1")
    a.e("v_lshlrev_b32 v2, 5, v2")
    a.e("s_lshl_b32 s30, s23, 8")
    a.e("v_add_u32 v2, s30, v2")
    RS, NM = 16, 32
    for p in range(2):
        for q in range(2):
            a.e(f"ds_read_b128 {vr(RS+8*p+4*q,4)}, v2 offset:{4096 + p*128 + q*16}")
            a.e(f"ds_read_b128 {vr(NM+8*p+4*q,4)}, v2 offset:{4608 + p*128 + q*16}")
    a.e("s_sub_u32 s32, s22, 8")
    a.e("s_lshl_b32 s32, s32, 7")
    a.e("s_lshl_b32 s33, s21, 2")
    a.e("s_add_u32 s32, s32, s33")
    a.e("s_lshl_b32 s33, s23, 1")
    a.e("s_add_u32 s32, s32, s33")
    a.e("s_mul_i32 s32, s32, 7168")
    a.e(f"s_add_u32 s32, s32, {Z2N}")
    a.e("s_waitcnt lgkmcnt(0)")
    k = 0
    for n, (kind, blk, hf, zn) in enumerate(T):
        if kind != "z": continue
        par, pos = pos_of(zn)
        for p in range(2):
            r0, r1 = acc(n, 2*p), acc(n, 2*p+1)
            xs = [r0, r0+2, r1, r1+2]
            for u in range(4):
                a.e(f"v_pk_fma_f32 {vr(xs[u],2)}, {vr(xs[u],2)}, {vr(RS+8*p+2*u,2)}, {vr(NM+8*p+2*u,2)}")
            d = 80 + 4 * (k & 3); k += 1
            a.e(f"s_add_u32 s33, s32, {(par*64 + p)*7168 + pos*1024}")
            pack(a, d, r0, r1)
            a.e(f"buffer_store_dwordx4 {vr(d,4)}, v11, s[16:19], s33 offen")

def k1(a, cfg):
    name = "k1_proj_kernel"
    kernel_begin(a, name)
    a.e("s_cmp_ge_u32 s2, 256")
    a.e("s_cbranch_scc1 L_k1_end")
    stamp(a, cfg, 0)
    a.e("s_load_dwordx2 s[30:31], s[0:1], 8")
    a.e("s_load_dwordx2 s[32:33], s[0:1], 32")
    a.e("s_load_dwordx2 s[34:35], s[0:1], 80")
    a.e("v_lshrrev_b32 v1, 6, v0")
    a.e("v_and_b32 v12, 63, v0")
    a.e("v_readfirstlane_b32 s20, v1")
    a.e("s_and_b32 s21, s2, 1")
    a.e("s_lshl_b32 s21, s21, 3")
    a.e("s_bfe_u32 s36, s2, 0x30003")
    a.e("s_add_u32 s21, s21, s36")
    a.e("s_bfe_u32 s22, s2, 0x20001")
    a.e("s_lshl_b32 s22, s22, 2")
    a.e("s_lshr_b32 s36, s2, 6")
    a.e("s_add_u32 s22, s22, s36")
    a.e("s_and_b32 s23, s20, 1")
    a.e("v_lshlrev_b32 v11, 4, v12")
    a.e("s_lshl_b32 s27, s20, 11")
    a.e("v_add_u32 v2, s27, v11")
    a.e("s_mul_i32 s28, s23, 13312")
    a.e("v_lshrrev_b32 v13, 2, v12")
    a.e("s_lshl_b32 s36, s23, 4")
    a.e("v_add_u32 v13, s36, v13")
    a.e("v_bfe_u32 v14, v12, 5, 1")
    a.e("v_lshlrev_b32 v14, 1, v14")
    a.e("v_and_b32 v15, 3, v12")
    a.e("v_xor_b32 v14, v14, v15")
    a.e("v_lshlrev_b32 v14, 4, v14")
    a.e("v_mul_u32_u24 v3, 6144, v13")
    a.e("v_add_u32 v3, v3, v14")
    a.e("v_mul_u32_u24 v4, 7168, v13")
    a.e("v_add_u32 v4, v4, v14")
    a.e("s_lshl_b32 s36, s23, 12")
    a.e("v_add_u32 v5, s36, v11")
    a.e(f"v_add_u32 v6, {2*SLOT}, v5")
    a.e("v_lshrrev_b32 v13, 5, v12")
    a.e("v_mul_u32_u24 v7, 13312, v13")
    a.e("v_bfe_u32 v13, v12, 4, 1")
    a.e("v_mul_u32_u24 v14, 544, v13")
    a.e("v_add_u32 v7, v7, v14")
    a.e("v_bfe_u32 v14, v12, 2, 2")
    a.e("v_lshl_add_u32 v7, v14, 6, v7")
    a.e("v_lshl_add_u32 v7, v15, 3, v7")
    a.e("v_add_u32 v7, 8192, v7")
    a.e("v_xor_b32 v8, 32, v7")
    a.e(f"v_add_u32 v9, {2*SLOT}, v7")
    a.e(f"v_add_u32 v10, {2*SLOT}, v8")
    a.e("s_mov_b32 s24, 0")
    a.e("s_lshl_b32 s25, s22, 7")
    a.e("s_mul_i32 s26, s22, 448")
    a.e("s_waitcnt lgkmcnt(0)")
    srd(a, 8, 30, 1024 * 6144)
    srd(a, 12, 32, 1024 * 7168)
    srd(a, 16, 34, WS_SIZE)
    a.e("s_lshl_b32 s36, s21, 18")
    if XN: a.e(f"s_add_u32 s36, s36, {XN}")
    a.e("s_add_u32 s4, s34, s36")
    a.e("s_addc_u32 s5, s35, 0")
    a.e("s_and_b32 s5, s5, 0xffff")
    a.e("s_mov_b32 s6, 0x40000")
    a.e("s_mov_b32 s7, 0x00020000")
    a.e("s_lshr_b32 s36, s20, 1")
    a.e("s_cmp_ge_u32 s22, 8")
    a.e("s_cbranch_scc1 L_k1_z2")
    for zt in (1, 2):
        if zt == 2: a.label("L_k1_z2")
        for G in (1, 2, 3):
            a.e(f"s_cmp_eq_u32 s36, {G}")
            a.e(f"s_cbranch_scc1 L_k1_{zt}_{G}")
        a.e(f"s_branch L_k1_{zt}_0")
    for zt in (1, 2):
        for G in range(4):
            a.label(f"L_k1_{zt}_{G}")
            if G == 1: a.e("s_add_u32 s25, s25, 2048")
            if G == 3: a.e("s_add_u32 s25, s25, 4096")
            D = len(dmas(G, 0))
            for s in range(4):
                for grp in dmas(G, s):
                    for ins in grp: a.e("s_nop 0" if ins == "@" else ins)
            for r in range(16 * len(tiles_of(G))): a.e(f"v_mov_b32 v{ACC+r}, 0")
            a.e(f"s_waitcnt vmcnt({3*D})")
            a.e("s_barrier")
            stamp(a, cfg, 1)
            for r in reads(G, 0, 0): a.e(r)
            a.e("s_mov_b32 s29, 7")
            a.label(f"L_k1_loop_{zt}_{G}")
            for t in range(4):
                step(a, cfg, G, zt, t, t, True, 2*D)
            a.e("s_sub_u32 s29, s29, 1")
            a.e("s_cmp_lg_u32 s29, 0")
            a.e(f"s_cbranch_scc1 L_k1_loop_{zt}_{G}")
            for t in range(4):
                step(a, cfg, G, zt, t, t, False, [2*D, D, 0, None][t], last=(t == 3))
            stamp(a, cfg, 2)
            for k, c in ((42, GC1), (44, 1.0), (46, LOG2E), (48, 1e-6)):
                a.e(f"s_mov_b32 s{k}, {f2u(c):#x}"); a.e(f"s_mov_b32 s{k+1}, {f2u(c):#x}")
            a.e(f"v_mov_b32 v12, {f2u(GC0):#x}"); a.e(f"v_mov_b32 v13, {f2u(GC0):#x}")
            a.e("s_nop 7")
            if zt == 1:
                epi_attn(a, cfg, G)
                epi_z1(a, cfg, G)
            else:
                epi_z2a(a, cfg, G)
                epi_attn(a, cfg, G)
                epi_z2b(a, cfg, G)
            stamp(a, cfg, 3)
            stamp_store(a, cfg, 1, 4, 16, "s20")
            a.e("s_endpgm")
    a.label("L_k1_end")
    a.e("s_endpgm")
    return (name, "(256,1,1)", "(512,1,1)", 4 * SLOT, dict(vgpr=256, sgpr=100, accum=256))
```

```python
from gen_common import *
from gen_k1 import pack
SLOT = 30 * 1024
ACC = 128
def acc(n, m): return ACC + (n * 2 + m) * 4
def fw(P, m): return 24 + 8 * P + 4 * m
def fz(P, n): return 40 + 16 * P + 4 * n
def ntiles(R): return 4 if R == 0 else 3
def dmas(R, slot):
    base = slot * SLOT
    out = []
    if R == 0:
        for n in range(4):
            g = [f"buffer_load_dwordx4 v{2+n}, s[8:11], s24 offen offset:{n*1024} lds"]
            if n == 0: g = [f"s_add_u32 m0, s27, {base}", "@"] + g
            if n == 3: g.append("s_add_u32 s24, s24, 128")
            out.append(g)
    else:
        D = 4 if R == 1 else 3
        for n in range(D):
            g = [f"buffer_load_dwordx4 v11, s[4:7], s24 offen offset:{n*1024} lds"]
            if n == 0: g = [f"s_add_u32 m0, s27, {base}", "@"] + g
            if n == D - 1: g.append("s_add_u32 s24, s24, 14336")
            out.append(g)
    return out
def reads(R, P, slot, sub):
    hi = slot >> 1
    base = (slot & 1) * SLOT
    out = []
    for m in range(2):
        out.append(f"ds_read_b128 {vr(fw(P,m),4)}, v{6+2*hi+sub} offset:{base + m*2048}")
    for n in range(ntiles(R)):
        out.append(f"ds_read_b128 {vr(fz(P,n),4)}, v{14+hi} offset:{base + sub*7168 + n*1024}")
    return out
def mfmas(R, P):
    return [f"v_mfma_f32_16x16x32_bf16 {vr(acc(n,m),4)}, {vr(fz(P,n),4)}, {vr(fw(P,m),4)}, {vr(acc(n,m),4)}"
            for n in range(ntiles(R)) for m in range(2)]
def body(a, cfg, R, slot, dma, nwait, last=False):
    a.e(f"s_waitcnt vmcnt({nwait}) lgkmcnt(0)" if nwait is not None else "s_waitcnt lgkmcnt(0)")
    if not last: a.e("s_barrier")
    M = mfmas(R, 1)
    fill = []
    if not last:
        for k, r in enumerate(reads(R, 0, (slot + 1) & 3, 0)): fill.append((k - 1, [r]))
    DM = dmas(R, slot) if dma else []
    h = (len(DM) + 1) // 2
    def place(lst, nM):
        for k, grp in enumerate(lst):
            p = min(cfg.get("k2_d0", 1) + k * cfg.get("k2_ds", 3), nM - 2)
            if "@" in grp:
                i = grp.index("@")
                fill.append((p, grp[:i])); fill.append((p + 1, grp[i+1:]))
            else:
                fill.append((p + 1, grp))
    place(DM[:h], len(M))
    interleave(a, M, fill)
    if last: return
    a.e("s_waitcnt lgkmcnt(0)")
    M = mfmas(R, 0)
    fill = []
    for k, r in enumerate(reads(R, 1, (slot + 1) & 3, 1)): fill.append((k - 1, [r]))
    place(DM[h:], len(M))
    interleave(a, M, fill)

def k2(a, cfg):
    name = "k2_sp_kernel"
    kernel_begin(a, name)
    a.e("s_cmp_ge_u32 s2, 256")
    a.e("s_cbranch_scc1 L_k2_end")
    stamp(a, cfg, 0)
    a.e("s_load_dwordx4 s[28:31], s[0:1], 40")
    a.e("s_load_dwordx2 s[34:35], s[0:1], 80")
    a.e("v_lshrrev_b32 v1, 6, v0")
    a.e("v_and_b32 v12, 63, v0")
    a.e("v_readfirstlane_b32 s20, v1")
    a.e("s_and_b32 s21, s2, 1")
    a.e("s_lshl_b32 s21, s21, 3")
    a.e("s_bfe_u32 s36, s2, 0x30003")
    a.e("s_add_u32 s21, s21, s36")
    a.e("s_bfe_u32 s22, s2, 0x20001")
    a.e("s_lshl_b32 s22, s22, 2")
    a.e("s_lshr_b32 s36, s2, 6")
    a.e("s_add_u32 s22, s22, s36")
    a.e("s_and_b32 s23, s20, 3")
    a.e("s_lshr_b32 s25, s20, 2")
    a.e("v_lshlrev_b32 v11, 4, v12")
    a.e("v_lshrrev_b32 v13, 3, v12")
    a.e("v_lshrrev_b32 v14, 5, v12")
    a.e("v_and_b32 v15, 3, v13")
    a.e("v_lshl_add_u32 v14, v14, 3, v15")
    a.e("v_lshlrev_b32 v14, 12, v14")
    a.e("v_lshrrev_b32 v13, 4, v12")
    a.e("v_and_b32 v15, 7, v12")
    a.e("v_xor_b32 v13, v13, v15")
    a.e("v_lshl_add_u32 v2, v13, 4, v14")
    a.e("v_xor_b32 v3, 64, v2")
    a.e(f"v_add_u32 v4, {16384-2048}, v2")
    a.e(f"v_add_u32 v5, {81920-3072}, v3")
    a.e(f"v_add_u32 v3, {65536-1024}, v3")
    a.e("v_and_b32 v13, 15, v12")
    a.e("v_lshrrev_b32 v14, 1, v13")
    a.e("v_lshrrev_b32 v15, 4, v12")
    a.e("v_xor_b32 v14, v14, v15")
    a.e("v_lshlrev_b32 v14, 4, v14")
    a.e("v_lshl_add_u32 v6, v13, 7, v14")
    a.e("s_lshl_b32 s36, s23, 12")
    a.e("v_add_u32 v6, s36, v6")
    a.e("v_xor_b32 v7, 64, v6")
    a.e(f"v_add_u32 v8, {2*SLOT}, v6")
    a.e(f"v_add_u32 v9, {2*SLOT}, v7")
    a.e("s_lshl_b32 s36, s25, 12")
    a.e("s_add_u32 s36, s36, 16384")
    a.e("v_add_u32 v14, s36, v11")
    a.e(f"v_add_u32 v15, {2*SLOT}, v14")
    a.e("v_bfe_u32 v16, v12, 2, 2")
    a.e("v_and_b32 v17, 3, v12")
    a.e("v_lshl_add_u32 v16, v16, 3, v17")
    a.e("v_lshlrev_b32 v10, 1, v16")
    a.e("s_waitcnt lgkmcnt(0)")
    srd(a, 8, 28, 2048 * 4096)
    srd(a, 12, 30, 4096)
    srd(a, 16, 34, WS_SIZE)
    a.e(f"s_mul_i32 s36, s22, {64*7168}")
    a.e(f"s_add_u32 s36, s36, {Z2N}")
    a.e("s_add_u32 s4, s34, s36")
    a.e("s_addc_u32 s5, s35, 0")
    a.e("s_and_b32 s5, s5, 0xffff")
    a.e(f"s_mov_b32 s6, {64*7168}")
    a.e("s_mov_b32 s7, 0x00020000")
    a.e("s_cmp_ge_u32 s20, 6")
    a.e("s_cbranch_scc1 L_k2_r2")
    a.e("s_cmp_ge_u32 s20, 4")
    a.e("s_cbranch_scc1 L_k2_r1")
    for R in range(3):
        NT = ntiles(R)
        a.label(f"L_k2_r{R}")
        if R == 0:
            a.e("s_lshl_b32 s24, s21, 19")
            a.e("s_lshl_b32 s36, s20, 17")
            a.e("s_add_u32 s24, s24, s36")
            a.e("s_lshl_b32 s27, s20, 12")
        elif R == 1:
            a.e("s_sub_u32 s24, s20, 4")
            a.e("s_lshl_b32 s24, s24, 12")
            a.e("s_add_u32 s27, s24, 16384")
        else:
            a.e("s_sub_u32 s24, s20, 6")
            a.e("s_mul_i32 s24, s24, 3072")
            a.e("s_add_u32 s24, s24, 8192")
            a.e("s_add_u32 s27, s24, 16384")
        D = len(dmas(R, 0))
        if R < 2:
            a.e("s_cmp_ge_u32 s20, 3")
            a.e("s_cselect_b32 s36, 1, 0")
            a.e("s_mul_i32 s37, s36, 3")
            a.e("s_sub_u32 s37, s20, s37")
            a.e("s_lshl_b32 s38, s22, 1")
            a.e("s_add_u32 s38, s38, s36")
            a.e("s_mul_i32 s39, s21, 24")
            a.e("s_lshl_b32 s37, s37, 3")
            a.e("s_add_u32 s39, s39, s37")
            a.e("v_lshrrev_b32 v17, 3, v12")
            a.e("v_add_u32 v17, s39, v17")
            a.e("v_and_b32 v18, 7, v12")
            a.e("v_mul_u32_u24 v18, 24576, v18")
            a.e("v_lshl_add_u32 v18, v17, 4, v18")
            a.e(f"s_mul_i32 s37, s38, {32*6144}")
            a.e(f"s_add_u32 s37, s37, {KVP}")
            for u in range(4):
                a.e(f"buffer_load_dwordx4 {vr(72+4*u,4)}, v18, s[16:19], s37 offen")
                if u < 3: a.e("s_add_u32 s37, s37, 6144")
        for s in range(4):
            for grp in dmas(R, s):
                for ins in grp: a.e("s_nop 0" if ins == "@" else ins)
        for r in range(8 * NT): a.e(f"v_mov_b32 v{ACC+r}, 0")
        nst = 0
        if R < 2:
            a.e("v_lshrrev_b32 v18, 7, v17")
            a.e("v_lshlrev_b32 v18, 10, v18")
            a.e("v_and_b32 v19, 63, v17")
            a.e("v_lshl_add_u32 v18, v19, 4, v18")
            a.e("v_bfe_u32 v19, v17, 6, 1")
            a.e("v_lshl_add_u32 v18, v19, 3, v18")
            a.e("s_mul_i32 s37, s38, 3072")
            a.e(f"s_add_u32 s37, s37, {KVR}")
            a.e(f"s_waitcnt vmcnt({4*D})")
            for h in range(2):
                a.e(f"v_pk_add_f32 {vr(72+2*h,2)}, {vr(72+2*h,2)}, {vr(76+2*h,2)}")
                a.e(f"v_pk_add_f32 {vr(80+2*h,2)}, {vr(80+2*h,2)}, {vr(84+2*h,2)}")
            for h in range(2):
                a.e(f"v_pk_add_f32 {vr(72+2*h,2)}, {vr(72+2*h,2)}, {vr(80+2*h,2)}")
            for ctl in ("row_half_mirror", "quad_perm:[1,0,3,2]", "quad_perm:[2,3,0,1]"):
                a.e("s_nop 1")
                for k in range(4):
                    a.e(f"v_add_f32_dpp v{72+k}, v{72+k}, v{72+k} {ctl} row_mask:0xf bank_mask:0xf")
            a.e("v_cvt_pk_bf16_f32 v72, v72, v73")
            a.e("v_cvt_pk_bf16_f32 v73, v74, v75")
            a.e("s_mov_b32 s36, 0x01010101")
            a.e("s_mov_b32 exec_lo, s36")
            a.e("s_mov_b32 exec_hi, s36")
            a.e("buffer_store_dwordx2 v[72:73], v18, s[16:19], s37 offen sc1")
            a.e("s_mov_b64 exec, -1")
            nst = 1
        a.e(f"s_waitcnt vmcnt({3*D + nst})")
        a.e("s_barrier")
        stamp(a, cfg, 1)
        for r in reads(R, 0, 0, 0): a.e(r)
        a.e("s_waitcnt lgkmcnt(0)")
        interleave(a, mfmas(R, 0), [(k - 1, [r]) for k, r in enumerate(reads(R, 1, 0, 1))])
        a.e("s_mov_b32 s29, 7")
        a.label(f"L_k2_loop_{R}")
        for t in range(4): body(a, cfg, R, t, True, 2*D)
        a.e("s_sub_u32 s29, s29, 1")
        a.e("s_cmp_lg_u32 s29, 0")
        a.e(f"s_cbranch_scc1 L_k2_loop_{R}")
        nw = 0 if R == 0 else 1
        a.e("s_lshl_b32 s30, s21, 4")
        a.e("s_add_u32 s30, s30, s22")
        a.e(f"s_mul_i32 s30, s30, {28*1024}")
        a.e("s_lshl_b32 s31, s23, 10")
        a.e("s_add_u32 s30, s30, s31")
        a.e(f"s_add_u32 s30, s30, {Z1 + nw*16384}")
        for n in range(NT):
            a.e(f"buffer_load_dwordx4 {vr(72+4*n,4)}, v11, s[16:19], s30 offen")
            if n < NT - 1: a.e("s_add_u32 s30, s30, 4096")
        a.e("s_lshl_b32 s30, s21, 8")
        a.e("s_lshl_b32 s31, s23, 6")
        a.e("s_add_u32 s30, s30, s31")
        a.e("buffer_load_ushort v88, v10, s[12:15], s30 offen")
        a.e("buffer_load_ushort v90, v10, s[12:15], s30 offen offset:8")
        a.e("s_lshl_b32 s38, s22, 1")
        if nw: a.e("s_add_u32 s38, s38, 1")
        a.e("s_lshl_b32 s30, s21, 5")
        a.e("s_add_u32 s30, s30, s38")
        a.e("s_lshl_b32 s30, s30, 13")
        a.e("s_lshl_b32 s31, s23, 11")
        a.e("s_add_u32 s30, s30, s31")
        a.e(f"s_add_u32 s30, s30, {PQ}")
        a.e("buffer_load_dwordx4 v[92:95], v11, s[16:19], s30 offen")
        a.e("buffer_load_dwordx4 v[96:99], v11, s[16:19], s30 offen offset:1024")
        a.e("s_mul_i32 s37, s38, 3072")
        a.e(f"s_add_u32 s37, s37, {KVR}")
        E = NT + 4
        for t in range(4): body(a, cfg, R, t, False, [2*D + E, D + E, E, None][t], last=(t == 3))
        stamp(a, cfg, 2)
        a.e("s_mov_b32 s36, 0")
        a.label(f"L_k2_poll{R}")
        for et in range(3):
            a.e(f"buffer_load_dwordx4 {vr(100+4*et,4)}, v11, s[16:19], s37 offen offset:{et*1024} sc1")
        a.e("s_waitcnt vmcnt(0)")
        a.e("v_cmp_eq_u32 vcc, -1, v100")
        for k in range(1, 12):
            a.e(f"v_cmp_eq_u32 s[40:41], -1, v{100+k}")
            a.e("s_or_b64 vcc, vcc, s[40:41]")
        a.e("s_add_u32 s36, s36, 1")
        a.e("s_cmp_gt_u32 s36, 20000")
        a.e(f"s_cbranch_scc1 L_k2_pollx{R}")
        a.e("s_cmp_lg_u64 vcc, 0")
        a.e(f"s_cbranch_scc1 L_k2_poll{R}")
        a.label(f"L_k2_pollx{R}")
        for m in range(2):
            for et in range(3):
                a.e(f"v_mfma_f32_16x16x32_bf16 {vr(24+12*m+4*et,4)}, {vr(100+4*et,4)}, {vr(92+4*m,4)}, 0")
        a.e("v_lshlrev_b32 v88, 16, v88"); a.e("v_lshlrev_b32 v90, 16, v90")
        a.e("v_mov_b32 v89, v88"); a.e("v_mov_b32 v91, v90")
        a.e("s_mov_b32 s33, 0xffff0000")
        a.e(f"s_mul_i32 s30, s21, {88*8192}")
        a.e("s_lshl_b32 s31, s23, 11")
        a.e("s_add_u32 s30, s30, s31")
        a.e(f"s_add_u32 s30, s30, {AU}")
        a.e("s_lshl_b32 s31, s38, 13")
        a.e("s_add_u32 s31, s31, s30")
        a.e("s_lshr_b32 s32, s22, 1")
        a.e("s_mul_i32 s32, s32, 7")
        a.e("s_add_u32 s32, s32, 32")
        a.e("s_and_b32 s34, s22, 1")
        if nw == 0:
            a.e("s_mul_i32 s35, s34, 5")
        else:
            a.e("s_lshl_b32 s35, s34, 1")
            a.e("s_add_u32 s35, s35, 2")
        a.e("s_add_u32 s35, s35, s32")
        a.e("s_lshl_b32 s35, s35, 13")
        a.e("s_add_u32 s35, s35, s30")
        if nw == 0:
            a.e("s_add_u32 s39, s35, 8192")
        else:
            a.e("s_add_u32 s39, s32, 3")
            a.e("s_lshl_b32 s39, s39, 13")
            a.e("s_add_u32 s39, s39, s30")
            a.e("s_lshl_b32 s34, s34, 3")
            a.e("s_add_u32 s39, s39, s34")
        for n in range(NT):
            for m in range(2):
                z = 72 + 4*n + 2*m
                t = 112 + 4 * m
                a.e(f"v_lshlrev_b32 v{t}, 16, v{z}")
                a.e(f"v_and_b32 v{t+1}, s33, v{z}")
                a.e(f"v_lshlrev_b32 v{t+2}, 16, v{z+1}")
                a.e(f"v_and_b32 v{t+3}, s33, v{z+1}")
                r = acc(n, m)
                for h in range(2): a.e(f"v_pk_add_f32 {vr(r+2*h,2)}, {vr(r+2*h,2)}, {vr(88+2*m,2)}")
                for h in range(2): a.e(f"v_pk_mul_f32 {vr(r+2*h,2)}, {vr(r+2*h,2)}, {vr(t+2*h,2)}")
            if n & 1:
                for m in range(2):
                    d = 48 + 8 * (n >> 1) + 4 * m
                    pack(a, d, acc(n-1, m), acc(n, m))
                    a.e(f"buffer_store_dwordx4 {vr(d,4)}, v11, s[16:19], s{35 if n == 1 else 39} offen offset:{m*1024}")
            elif n == 2 and NT == 3:
                for m in range(2):
                    d = 56 + 2 * m
                    r = acc(n, m)
                    a.e(f"v_cvt_pk_bf16_f32 v{d}, v{r}, v{r+1}")
                    a.e(f"v_cvt_pk_bf16_f32 v{d+1}, v{r+2}, v{r+3}")
                    a.e(f"buffer_store_dwordx2 {vr(d,2)}, v11, s[16:19], s39 offen offset:{m*1024}")
        for m in range(2):
            b = 24 + 12 * m
            a.e(f"v_add_f32 v{b+8}, {f2u(1e-6):#x}, v{b+8}")
            a.e(f"v_rcp_f32 v{b+8}, v{b+8}")
            a.e("s_nop 0")
            a.e(f"v_mov_b32 v{b+9}, v{b+8}")
            for h in range(4): a.e(f"v_pk_mul_f32 {vr(b+2*h,2)}, {vr(b+2*h,2)}, {vr(b+8,2)}")
            pack(a, 64 + 4*m, b, b + 4)
            a.e(f"buffer_store_dwordx4 {vr(64+4*m,4)}, v11, s[16:19], s31 offen offset:{m*1024}")
        stamp(a, cfg, 3)
        stamp_store(a, cfg, 2, 4, 16, "s20")
        a.e("s_endpgm")
    a.label("L_k2_end")
    a.e("s_endpgm")
    return (name, "(256,1,1)", "(512,1,1)", 4 * SLOT, dict(vgpr=160, sgpr=100, accum=160))
```

```python
from gen_common import *
from gen_k1 import pack
NS = 8
NT3 = 44
def fa(T, sub): return 24 + 8 * (T % NS) + 4 * sub
def fw(P, nt): return 88 + 16 * P + 4 * nt
def acc(T, nt): return (128 if T < 16 else 144) + 4 * nt
class VM:
    def __init__(self): self.ops = []
    def add(self, tag): self.ops.append(tag)
    def need(self, tags):
        idx = max(i for i, t in enumerate(self.ops) if t in tags)
        assert all(t in self.ops for t in tags), tags
        return len(self.ops) - 1 - idx
def k3(a, cfg):
    name = "k3_out_kernel"
    LA = cfg.get("k3_la", 7)
    kernel_begin(a, name)
    a.e("s_cmp_ge_u32 s2, 256")
    a.e("s_cbranch_scc1 L_k3_end")
    stamp(a, cfg, 0)
    a.e("s_load_dwordx2 s[28:29], s[0:1], 0")
    a.e("s_load_dwordx2 s[30:31], s[0:1], 16")
    a.e("s_load_dwordx4 s[32:35], s[0:1], 56")
    a.e("s_load_dwordx2 s[36:37], s[0:1], 80")
    a.e("v_lshrrev_b32 v1, 6, v0")
    a.e("v_and_b32 v12, 63, v0")
    a.e("v_readfirstlane_b32 s20, v1")
    a.e("s_and_b32 s21, s2, 3")
    a.e("s_lshl_b32 s21, s21, 2")
    a.e("s_bfe_u32 s38, s2, 0x20003")
    a.e("s_add_u32 s21, s21, s38")
    a.e("s_bfe_u32 s22, s2, 0x10002")
    a.e("s_lshl_b32 s22, s22, 3")
    a.e("s_lshr_b32 s38, s2, 5")
    a.e("s_add_u32 s22, s22, s38")
    a.e("v_lshlrev_b32 v11, 4, v12")
    a.e("s_lshl_b32 s27, s20, 10")
    a.e("v_add_u32 v2, s27, v11")
    a.e("v_lshrrev_b32 v13, 3, v12")
    a.e("v_bfe_u32 v14, v12, 4, 2")
    a.e("v_lshlrev_b32 v14, 1, v14")
    a.e("v_and_b32 v15, 7, v12")
    a.e("v_xor_b32 v14, v14, v15")
    a.e("v_lshlrev_b32 v14, 4, v14")
    a.e("v_lshl_add_u32 v3, v13, 11, v14")
    a.e("s_lshl_b32 s38, s20, 14")
    a.e("v_add_u32 v3, s38, v3")
    a.e("v_bfe_u32 v13, v12, 2, 3")
    a.e("v_lshrrev_b32 v14, 5, v12")
    a.e("v_lshlrev_b32 v14, 10, v14")
    a.e("v_lshl_add_u32 v14, v13, 7, v14")
    a.e("v_lshrrev_b32 v13, 1, v13")
    a.e("v_lshl_add_u32 v14, v13, 5, v14")
    a.e("v_and_b32 v15, 3, v12")
    a.e("v_lshl_add_u32 v4, v15, 3, v14")
    a.e("v_xor_b32 v5, 32, v4")
    a.e("v_xor_b32 v6, 64, v4")
    a.e("v_xor_b32 v7, 96, v4")
    a.e("v_bfe_u32 v13, v12, 2, 2")
    a.e("v_lshl_add_u32 v13, v13, 3, v15")
    a.e("v_lshlrev_b32 v8, 11, v13")
    a.e("v_bfe_u32 v13, v12, 4, 1")
    a.e("v_lshl_add_u32 v8, v13, 5, v8")
    a.e("v_lshrrev_b32 v13, 5, v12")
    a.e("v_lshl_add_u32 v8, v13, 4, v8")
    a.e("s_lshl_b32 s26, s21, 7")
    a.e("s_lshr_b32 s38, s20, 1")
    a.e("s_lshl_b32 s38, s38, 5")
    a.e("s_add_u32 s26, s26, s38")
    a.e("s_and_b32 s38, s20, 1")
    a.e("s_lshl_b32 s38, s38, 2")
    a.e("s_add_u32 s26, s26, s38")
    a.e("s_lshl_b32 s26, s26, 11")
    a.e("s_lshl_b32 s23, s22, 7")
    a.e("s_add_u32 s26, s26, s23")
    a.e("s_mov_b32 s24, 0")
    a.e("s_mov_b32 s25, s23")
    a.e("s_waitcnt lgkmcnt(0)")
    srd(a, 8, 30, 1024 * 2048)
    srd(a, 12, 32, 1792 * 2048)
    srd(a, 40, 28, 4 * MB)
    srd(a, 44, 34, 4 * MB)
    srd(a, 16, 36, WS_SIZE)
    a.e(f"s_mul_i32 s38, s21, {88*8192}")
    a.e(f"s_add_u32 s38, s38, {AU}")
    a.e("s_add_u32 s4, s36, s38")
    a.e("s_addc_u32 s5, s37, 0")
    a.e("s_and_b32 s5, s5, 0xffff")
    a.e(f"s_mov_b32 s6, {88*8192}")
    a.e("s_mov_b32 s7, 0x00020000")
    vm = VM()
    def aload(T, sub):
        vm.add(("A", T, sub))
        return [f"buffer_load_dwordx4 {vr(fa(T,sub),4)}, v2, s[4:7], s24 offen", "s_add_u32 s24, s24, 8192"]
    def wdma(T):
        vm.add(("W", T))
        g = [f"s_add_u32 m0, s27, {(T % NS) * 8192}", "@",
             f"buffer_load_dwordx4 v3, {'s[8:11]' if T < 16 else 's[12:15]'}, s25 offen lds"]
        g.append("s_mov_b32 s25, s23" if T == 15 else f"s_add_u32 s25, s25, {64*2048}")
        return g
    def reads(P, T, sub):
        out = []
        for nt in range(4):
            for h in range(2):
                out.append(f"ds_read_b64_tr_b16 {vr(fw(P,nt)+2*h,2)}, v{4+nt} offset:{(T % NS)*8192 + sub*4096 + h*2048}")
        return out
    def mfmas(P, T, sub):
        first = sub == 0 and T in (0, 16)
        return [f"v_mfma_f32_16x16x32_bf16 {vr(acc(T,nt),4)}, {vr(fw(P,nt),4)}, {vr(fa(T,sub),4)}, {'0' if first else vr(acc(T,nt),4)}" for nt in range(4)]
    for T in range(NS):
        for ins in wdma(T): a.e("s_nop 0" if ins == "@" else ins)
        if T < LA:
            for sub in range(2):
                for ins in aload(T, sub): a.e(ins)
    a.e(f"s_waitcnt vmcnt({vm.need([('W',0),('A',0,0),('A',0,1)])})")
    a.e("s_barrier")
    stamp(a, cfg, 1)
    for r in reads(0, 0, 0): a.e(r)
    a.e("s_waitcnt lgkmcnt(0)")
    R = reads(1, 0, 1)
    interleave(a, mfmas(0, 0, 0), [(k // 2 - 1, [r]) for k, r in enumerate(R)])
    for T in range(NT3):
        last = T == NT3 - 1
        if last:
            a.e("s_waitcnt lgkmcnt(0)")
            for m in mfmas(1, T, 1): a.e(m)
            break
        a.e(f"s_waitcnt vmcnt({min(63, vm.need([('W',T+1),('A',T+1,0),('A',T+1,1)]))}) lgkmcnt(0)")
        a.e("s_barrier")
        fill = [(k // 2 - 1, [r]) for k, r in enumerate(reads(0, T + 1, 0))]
        if T + NS < NT3:
            g = wdma(T + NS); i = g.index("@")
            fill.append((0, g[:i])); fill.append((1, g[i+1:]))
        if T + LA < NT3: fill.append((3, aload(T + LA, 0)))
        interleave(a, mfmas(1, T, 1), fill)
        a.e("s_waitcnt lgkmcnt(0)")
        fill = [(k // 2 - 1, [r]) for k, r in enumerate(reads(1, T + 1, 1))]
        if T + LA < NT3: fill.append((2, aload(T + LA, 1)))
        if T == NT3 - LA:
            for cp in range(2):
                vm.add(("X", cp))
                fill.append((2, [f"buffer_load_dwordx4 {vr(16+4*cp,4)}, v8, s[40:43], s26 offen offset:{cp*64}"]))
        interleave(a, mfmas(0, T + 1, 0), fill)
    stamp(a, cfg, 2)
    a.e(f"s_mov_b32 s30, {f2u(-LOG2E):#x}"); a.e(f"s_mov_b32 s31, {f2u(-LOG2E):#x}")
    a.e(f"s_mov_b32 s32, 1.0"); a.e(f"s_mov_b32 s33, 1.0")
    a.e("s_mov_b32 s34, 0xffff0000")
    a.e("s_waitcnt vmcnt(0)")
    for cp in range(2):
        a.e(f"v_permlane16_swap_b32 v{16+4*cp}, v{18+4*cp}")
        a.e(f"v_permlane16_swap_b32 v{17+4*cp}, v{19+4*cp}")
    a.e("s_nop 4")
    H, S, T_, X = 144, 128, 24, 40
    for k in range(8): a.e(f"v_pk_mul_f32 {vr(T_+2*k,2)}, {vr(H+2*k,2)}, s[30:31]")
    for k in range(16): a.e(f"v_exp_f32 v{T_+k}, v{T_+k}")
    for k in range(8):
        a.e(f"v_lshlrev_b32 v{X+2*k}, 16, v{16+k}")
        a.e(f"v_and_b32 v{X+2*k+1}, s34, v{16+k}")
    for k in range(8): a.e(f"v_pk_add_f32 {vr(T_+2*k,2)}, {vr(T_+2*k,2)}, s[32:33]")
    for k in range(16): a.e(f"v_rcp_f32 v{T_+k}, v{T_+k}")
    for k in range(8): a.e(f"v_pk_mul_f32 {vr(H+2*k,2)}, {vr(H+2*k,2)}, {vr(S+2*k,2)}")
    for k in range(8): a.e(f"v_pk_fma_f32 {vr(X+2*k,2)}, {vr(H+2*k,2)}, {vr(T_+2*k,2)}, {vr(X+2*k,2)}")
    for cp in range(2):
        pack(a, 16 + 4*cp, X + 8*cp, X + 8*cp + 4)
    a.e("s_nop 1")
    for cp in range(2):
        a.e(f"v_permlane16_swap_b32 v{16+4*cp}, v{18+4*cp}")
        a.e(f"v_permlane16_swap_b32 v{17+4*cp}, v{19+4*cp}")
    a.e("s_nop 1")
    for cp in range(2):
        a.e(f"buffer_store_dwordx4 {vr(16+4*cp,4)}, v8, s[44:47], s26 offen offset:{cp*64}")
    stamp(a, cfg, 3)
    stamp_store(a, cfg, 3, 4, 16, "s20")
    a.label("L_k3_end")
    a.e("s_endpgm")
    return (name, "(256,1,1)", "(512,1,1)", NS * 8192, dict(vgpr=160, sgpr=100, accum=160))
```

```python
import sys, json
from gen_common import *
from gen_k0 import k0
from gen_k1 import k1
from gen_k2 import k2
from gen_k3 import k3
HDR = """; recurrent_scan / linear attention + gMLP block, generated by my own generator scripts (work/gen*.py)
"""
def gen(cfg):
    body = Asm()
    ks = []
    for f in (k0, k1, k2, k3):
        ks.append(f(body, cfg))
    a = Asm()
    a(HDR.rstrip())
    for (name, g, b, lds, d) in ks:
        a(f"; @launch kernel={name} grid={g} block={b} lds={lds}")
    a('.amdgcn_target "amdgcn-amd-amdhsa--gfx950"')
    a.lines += body.lines
    for (name, g, b, lds, d) in ks:
        kernel_desc(a, name, **d)
    return a.text()
if __name__ == "__main__":
    out = sys.argv[1]
    cfg = json.loads(sys.argv[2]) if len(sys.argv) > 2 else {}
    if "k1_d" in cfg: cfg["k1_d"] = {int(k): v for k, v in cfg["k1_d"].items()}
    open(out, "w").write(gen(cfg))
```

```python
from gen_common import *
def k0(a, cfg):
    name = "k0_ln_kernel"
    kernel_begin(a, name)
    a.e("s_cmp_ge_u32 s2, 256")
    a.e("s_cbranch_scc1 L_k0_end")
    a.e("s_load_dwordx2 s[4:5], s[0:1], 0")
    a.e("s_load_dwordx2 s[6:7], s[0:1], 80")
    a.e("v_lshrrev_b32 v1, 6, v0")
    a.e("v_and_b32 v2, 63, v0")
    a.e("v_readfirstlane_b32 s20, v1")
    a.e("s_lshr_b32 s21, s2, 1")
    a.e("s_and_b32 s22, s2, 1")
    a.e("s_lshr_b32 s23, s21, 1")
    a.e("s_lshl_b32 s23, s23, 5")
    a.e("s_and_b32 s24, s21, 1")
    a.e("s_lshl_b32 s24, s24, 2")
    a.e("s_add_u32 s23, s23, s24")
    a.e("s_lshl_b32 s24, s22, 4")
    a.e("s_add_u32 s23, s23, s24")
    a.e("s_lshr_b32 s24, s20, 1")
    a.e("s_lshl_b32 s24, s24, 3")
    a.e("s_add_u32 s23, s23, s24")
    a.e("s_and_b32 s24, s20, 1")
    a.e("s_lshl_b32 s24, s24, 1")
    a.e("s_add_u32 s23, s23, s24")
    a.e("s_lshl_b32 s23, s23, 11")
    a.e("v_lshrrev_b32 v3, 5, v2")
    a.e("v_and_b32 v4, 31, v2")
    a.e("v_lshlrev_b32 v5, 11, v3")
    a.e("v_lshl_add_u32 v5, v4, 4, v5")
    a.e("s_waitcnt lgkmcnt(0)")
    srd(a, 8, 4, 4 * MB)
    srd(a, 12, 6, WS_SIZE)
    for n in range(4):
        a.e(f"buffer_load_dwordx4 v[{16+4*n}:{19+4*n}], v5, s[8:11], s23 offen offset:{512*n}")
    if cfg.get("k0_pf"):
        mats = [(8, 1024*6144), (32, 1024*7168), (40, 2048*4096), (16, 1024*2048), (56, 1792*2048)][:cfg["k0_pf"]]
        for k, (ko, nb) in enumerate(mats):
            a.e(f"s_load_dwordx2 s[36:37], s[0:1], {ko}")
            n = nb // 128 // 256
            a.e(f"v_min_u32 v12, {n-1}, v0")
            a.e(f"v_lshlrev_b32 v12, 7, v12")
            a.e(f"s_mul_i32 s38, s2, {n*128}")
            a.e("s_waitcnt lgkmcnt(0)")
            srd(a, 40, 36, nb)
            a.e(f"buffer_load_dword v{64+k}, v12, s[40:43], s38 offen")
    a.e("s_lshr_b32 s24, s21, 3")
    a.e("s_lshl_b32 s24, s24, 18")
    a.e("s_and_b32 s25, s21, 7")
    a.e("s_lshl_b32 s25, s25, 10")
    a.e("s_add_u32 s24, s24, s25")
    a.e("s_lshl_b32 s25, s22, 7")
    a.e("s_add_u32 s24, s24, s25")
    a.e("s_lshl_b32 s25, s20, 5")
    a.e("s_add_u32 s24, s24, s25")
    if XN: a.e(f"s_add_u32 s24, s24, {XN}")
    a.e("s_add_u32 s25, s24, 65536")
    a.e("s_add_u32 s26, s24, 131072")
    a.e("s_add_u32 s27, s24, 196608")
    a.e("v_lshrrev_b32 v6, 2, v4")
    a.e("v_lshlrev_b32 v6, 13, v6")
    a.e("v_and_b32 v7, 3, v4")
    a.e("v_lshl_add_u32 v6, v7, 8, v6")
    a.e("v_lshl_add_u32 v6, v3, 4, v6")
    a.e("s_mov_b32 s28, 0xffff0000")
    a.e(f"s_waitcnt vmcnt({cfg.get('k0_pf', 0)})")
    for k in range(16):
        a.e(f"v_lshlrev_b32 v{32+2*k}, 16, v{16+k}")
        a.e(f"v_and_b32 v{33+2*k}, s28, v{16+k}")
    def reduce32(r, t):
        for sh in (8, 4, 2, 1):
            a.e("s_nop 1")
            a.e(f"v_add_f32_dpp v{r}, v{r}, v{r} row_ror:{sh} row_mask:0xf bank_mask:0xf")
        a.e(f"v_mov_b32 v{t}, v{r}")
        a.e("s_nop 1")
        a.e(f"v_permlane16_swap_b32 v{t}, v{r}")
        a.e("s_nop 1")
        a.e(f"v_add_f32 v{r}, v{r}, v{t}")
    a.e("v_pk_add_f32 v[8:9], v[32:33], v[34:35]")
    a.e("v_pk_add_f32 v[10:11], v[36:37], v[38:39]")
    for k in range(4, 16, 2):
        a.e(f"v_pk_add_f32 v[8:9], v[8:9], v[{32+2*k}:{33+2*k}]")
        a.e(f"v_pk_add_f32 v[10:11], v[10:11], v[{34+2*k}:{35+2*k}]")
    a.e("v_pk_add_f32 v[8:9], v[8:9], v[10:11]")
    a.e("v_add_f32 v8, v8, v9")
    reduce32(8, 9)
    a.e(f"v_mul_f32 v8, {f2u(-1.0/1024):#x}, v8")
    a.e("v_mov_b32 v9, v8")
    for k in range(16):
        a.e(f"v_pk_add_f32 v[{32+2*k}:{33+2*k}], v[{32+2*k}:{33+2*k}], v[8:9]")
    a.e("v_pk_mul_f32 v[10:11], v[32:33], v[32:33]")
    a.e("v_pk_mul_f32 v[12:13], v[34:35], v[34:35]")
    for k in range(2, 16, 2):
        a.e(f"v_pk_fma_f32 v[10:11], v[{32+2*k}:{33+2*k}], v[{32+2*k}:{33+2*k}], v[10:11]")
        a.e(f"v_pk_fma_f32 v[12:13], v[{34+2*k}:{35+2*k}], v[{34+2*k}:{35+2*k}], v[12:13]")
    a.e("v_pk_add_f32 v[10:11], v[10:11], v[12:13]")
    a.e("v_add_f32 v10, v10, v11")
    reduce32(10, 11)
    a.e(f"v_mov_b32 v11, {f2u(1e-5):#x}")
    a.e(f"v_fmac_f32 v11, {f2u(1.0/1024):#x}, v10")
    a.e("v_rsq_f32 v10, v11")
    a.e("s_nop 0")
    a.e("v_mov_b32 v11, v10")
    for k in range(16):
        a.e(f"v_pk_mul_f32 v[{32+2*k}:{33+2*k}], v[{32+2*k}:{33+2*k}], v[10:11]")
    for k in range(16):
        a.e(f"v_cvt_pk_bf16_f32 v{16+k}, v{32+2*k}, v{33+2*k}")
    for n in range(4):
        a.e(f"buffer_store_dwordx4 v[{16+4*n}:{19+4*n}], v6, s[12:15], s{24+n} offen")
    a.e("v_mov_b32 v8, -1"); a.e("v_mov_b32 v9, -1"); a.e("v_mov_b32 v10, -1"); a.e("v_mov_b32 v11, -1")
    a.e("s_mul_i32 s30, s2, 896")
    a.e(f"s_add_u32 s30, s30, {KVR}")
    a.e("v_lshlrev_b32 v7, 4, v0")
    a.e("v_cmp_gt_u32 vcc, 56, v0")
    a.e("s_and_saveexec_b64 s[34:35], vcc")
    a.e("s_cbranch_execz L_k0_end")
    a.e("buffer_store_dwordx4 v[8:11], v7, s[12:15], s30 offen")
    a.label("L_k0_end")
    a.e("s_endpgm")
    return (name, "(256,1,1)", "(256,1,1)", 0, dict(vgpr=72, sgpr=48, accum=72))
```

```python
import sys, json
from gen_common import *
from gen_k0 import k0
from gen_k1 import k1
from gen_k2 import k2
from gen_k3 import k3
HDR = """; recurrent_scan / linear attention + gMLP block, generated by my own generator scripts (work/gen*.py)
"""
def gen(cfg):
    body = Asm()
    ks = []
    for f in (k0, k1, k2, k3):
        ks.append(f(body, cfg))
    if cfg.get("nop_pre") or cfg.get("nop_post"):
        kernel_begin(body, "nop_kernel"); body.e("s_endpgm")
        nk = ("nop_kernel", "(256,1,1)", "(256,1,1)", 0, dict(vgpr=8, sgpr=16, accum=8))
        ks = [nk] * cfg.get("nop_pre", 0) + ks + [nk] * cfg.get("nop_post", 0)
    if "order" in cfg: ks = [ks[k] for k in cfg["order"]]
    a = Asm()
    a(HDR.rstrip())
    for (name, g, b, lds, d) in ks:
        a(f"; @launch kernel={name} grid={g} block={b} lds={lds}")
    a('.amdgcn_target "amdgcn-amd-amdhsa--gfx950"')
    a.lines += body.lines
    seen = set()
    for (name, g, b, lds, d) in ks:
        if name in seen: continue
        seen.add(name)
        kernel_desc(a, name, **d)
    return a.text()
if __name__ == "__main__":
    out = sys.argv[1]
    cfg = json.loads(sys.argv[2]) if len(sys.argv) > 2 else {}
    if "k1_d" in cfg: cfg["k1_d"] = {int(k): v for k, v in cfg["k1_d"].items()}
    open(out, "w").write(gen(cfg))
```

```python
from asmlib import *
import struct, math
KN = "recurrent_scan__linear_attn_block__mixer_gmlp__prompt"
MB = 1 << 20
XN   = 0
PQ   = 4 * MB
Z1   = 8 * MB
Z2N  = 16 * MB
AU   = 24 * MB
KVP  = 36 * MB
KVR  = 44 * MB
STATS = KVR + 96 * 1024
SENT_BYTES = 224 * 1024
TIM  = 48 * MB
WS_SIZE = 0x10000000

def f2u(x):
    return struct.unpack("<I", struct.pack("<f", x))[0]
LOG2E = 1.4426950408889634
GC0 = -2.0 * math.sqrt(2.0 / math.pi) * LOG2E
GC1 = GC0 * 0.044715

def vr(b, n=1):
    return f"v{b}" if n == 1 else f"v[{b}:{b+n-1}]"
def sr(b, n=1):
    return f"s{b}" if n == 1 else f"s[{b}:{b+n-1}]"

def interleave(a, mfmas, fillers):
    fl = sorted(fillers, key=lambda t: t[0])
    fi = 0
    while fi < len(fl) and fl[fi][0] < 0:
        for s in fl[fi][1]: a.e(s)
        fi += 1
    for k, m in enumerate(mfmas):
        a.e(m)
        while fi < len(fl) and fl[fi][0] <= k:
            for s in fl[fi][1]: a.e(s)
            fi += 1
    while fi < len(fl):
        for s in fl[fi][1]: a.e(s)
        fi += 1

def pos_of(zn):
    if zn < 7: return 0, zn
    return 1, {3:0, 4:1, 5:2, 6:3, 1:4, 2:5, 0:6}[zn - 7]

def stamp(a, cfg, idx):
    if cfg.get("tim"):
        a.e(f"s_memtime s[{80+2*idx}:{81+2*idx}]")
        if idx == 0: a.e("s_memrealtime s[94:95]")

def stamp_store(a, cfg, kidx, nst, srd_ws, swave):
    if not cfg.get("tim"): return
    L = f"L_tim_{kidx}_{stamp_store.n}"; stamp_store.n += 1
    a.e(f"s_memrealtime s[{80+2*nst}:{81+2*nst}]")
    a.e("s_waitcnt lgkmcnt(0)")
    a.e(f"s_lshl_b32 s79, s2, 3")
    a.e(f"s_add_u32 s79, s79, {swave}")
    a.e(f"s_lshl_b32 s79, s79, 5")
    a.e(f"s_add_u32 s79, s79, {TIM + kidx*256*8*32}")
    a.e("v_mov_b32 v0, 0")
    a.e("v_mov_b32 v1, s94")
    a.e(f"buffer_store_dword v1, v0, {sr(srd_ws,4)}, s79 offen offset:28")
    a.e("s_nop 1")
    for k in range(nst + 1):
        a.e(f"v_mov_b32 v1, s{80+2*k}")
        a.e(f"buffer_store_dword v1, v0, {sr(srd_ws,4)}, s79 offen offset:{4*k}")
        a.e("s_nop 1")
stamp_store.n = 0
```

```python
from gen_common import *
SLOT = 34 * 1024
ACC = 128
def acc(n, m): return ACC + (n * 4 + m) * 4
def fa(P, m): return 16 + 16 * P + 4 * m
def fb(P, n): return 48 + 28 * P + 4 * n
def tiles_of(G):
    z = lambda zn: ("z", 6 + zn // 2, zn & 1, zn)
    if G == 0: return [("k", 2, 0, 0), ("k", 2, 1, 1), ("v", 4, 0, 0), ("v", 4, 1, 1), z(0), z(1), z(2)]
    if G == 1: return [("k", 3, 0, 0), ("k", 3, 1, 1), ("v", 5, 0, 0), ("v", 5, 1, 1), z(3), z(4), z(5)]
    if G == 2: return [("q", 0, 0, 0), ("q", 0, 1, 1), z(6), z(7), z(8), z(9)]
    if G == 3: return [("q", 1, 0, 0), ("q", 1, 1, 1), z(10), z(11), z(12), z(13)]

def dmas(G, slot):
    out = []
    base = slot * SLOT
    def B(c, imm, v, srd_, so):
        return [f"s_add_u32 m0, s28, {base + 8192 + c*1024 - imm}", "@",
                f"buffer_load_dwordx4 v{v}, {sr(srd_,4)}, s{so} offen offset:{imm} lds"]
    if G in (0, 1):
        out.append([f"s_add_u32 m0, s27, {base}", "@", "buffer_load_dwordx4 v2, s[4:7], s24 offen lds"])
        out.append(["buffer_load_dwordx4 v2, s[4:7], s24 offen offset:1024 lds", "s_add_u32 s24, s24, 8192"])
        c0 = 0 if G == 0 else 2
        out.append(B(c0, 0, 3, 8, 25))
        out.append(B(c0 + 1, 64, 3, 8, 25) + [f"s_add_u32 s25, s25, {32*6144}"])
    if G == 2:
        for c in range(6, 10):
            out.append(B(c, 64 * (c - 6), 4, 12, 26))
        out[-1].append(f"s_add_u32 s26, s26, {32*7168}")
    if G == 3:
        out.append(B(4, 0, 3, 8, 25))
        out.append(B(5, 64, 3, 8, 25) + [f"s_add_u32 s25, s25, {32*6144}"])
        for c in range(10, 13):
            out.append(B(c, 64 * (c - 6), 4, 12, 26))
        out[-1].append(f"s_add_u32 s26, s26, {32*7168}")
    return out

def reads(G, P, slot):
    T = tiles_of(G)
    hi = slot >> 1
    base = (slot & 1) * SLOT
    out = []
    for m in range(4):
        out.append(f"ds_read_b128 {vr(fa(P,m),4)}, v{5+hi} offset:{base + m*1024}")
    for n, (kind, blk, hf, zn) in enumerate(T):
        for h in range(2):
            out.append(f"ds_read_b64_tr_b16 {vr(fb(P,n)+2*h,2)}, v{7+2*hi+hf} offset:{base + blk*1024 + h*256}")
    return out

def mfmas(G, zt, P, first=False):
    out = []
    for n, (kind, blk, hf, zn) in enumerate(tiles_of(G)):
        dt = kind == "q" or (kind == "z" and zt == 1)
        for m in range(4):
            A, Bq = vr(fa(P, m), 4), vr(fb(P, n), 4)
            if dt: A, Bq = Bq, A
            c = "0" if first else vr(acc(n, m), 4)
            out.append(f"v_mfma_f32_16x16x32_bf16 {vr(acc(n,m),4)}, {A}, {Bq}, {c}")
    return out

def step(a, cfg, G, zt, t, slot, dma, nwait, first=False, last=False):
    P = t & 1
    D = len(dmas(G, 0))
    if nwait is not None:
        a.e(f"s_waitcnt vmcnt({nwait}) lgkmcnt(0)")
    else:
        a.e("s_waitcnt lgkmcnt(0)")
    a.e("s_barrier")
    M = mfmas(G, zt, P, first)
    fill = []
    if not last:
        R = reads(G, P ^ 1, (slot + 1) & 3)
        r0 = cfg.get("k1_r0", 0); rs = cfg.get("k1_rs", 1.0)
        for k, r in enumerate(R):
            fill.append((int(r0 + k * rs), [r]))
    if dma:
        DM = dmas(G, slot)
        d0, ds = cfg.get("k1_d", {}).get(G, (2, 5))
        for k, grp in enumerate(DM):
            p = min(d0 + k * ds, len(M) - 2)
            if "@" in grp:
                i = grp.index("@")
                fill.append((p, grp[:i])); fill.append((p + 1, grp[i+1:]))
            else:
                fill.append((p + 1, grp))
    interleave(a, M, fill)

def gelu8(a, xs, T):
    t = [T + 2 * k for k in range(4)]
    for k in range(4): a.e(f"v_pk_mul_f32 {vr(t[k],2)}, {vr(xs[k],2)}, {vr(xs[k],2)}")
    for k in range(4): a.e(f"v_pk_fma_f32 {vr(t[k],2)}, {vr(t[k],2)}, s[42:43], v[12:13]")
    for k in range(4): a.e(f"v_pk_mul_f32 {vr(t[k],2)}, {vr(t[k],2)}, {vr(xs[k],2)}")
    for k in range(8): a.e(f"v_exp_f32 v{T+k}, v{T+k}")
    for k in range(4): a.e(f"v_pk_add_f32 {vr(t[k],2)}, {vr(t[k],2)}, s[44:45]")
    for k in range(8): a.e(f"v_rcp_f32 v{T+k}, v{T+k}")
    for k in range(4): a.e(f"v_pk_mul_f32 {vr(xs[k],2)}, {vr(xs[k],2)}, {vr(t[k],2)}")

def phi8(a, xs, T):
    t = [T + 2 * k for k in range(4)]
    for k in range(4): a.e(f"v_pk_mul_f32 {vr(t[k],2)}, {vr(xs[k],2)}, s[46:47]")
    for k in range(4):
        a.e(f"v_max_f32 v{xs[k]}, 0, v{xs[k]}"); a.e(f"v_max_f32 v{xs[k]+1}, 0, v{xs[k]+1}")
    for k in range(8): a.e(f"v_exp_f32_e64 v{T+k}, v{T+k} clamp")
    for k in range(4): a.e(f"v_pk_add_f32 {vr(xs[k],2)}, {vr(xs[k],2)}, s[48:49]")
    for k in range(4): a.e(f"v_pk_add_f32 {vr(xs[k],2)}, {vr(xs[k],2)}, {vr(t[k],2)}")

def pack(a, dst, r0, r1):
    a.e(f"v_cvt_pk_bf16_f32 v{dst}, v{r0}, v{r0+1}")
    a.e(f"v_cvt_pk_bf16_f32 v{dst+1}, v{r0+2}, v{r0+3}")
    a.e(f"v_cvt_pk_bf16_f32 v{dst+2}, v{r1}, v{r1+1}")
    a.e(f"v_cvt_pk_bf16_f32 v{dst+3}, v{r1+2}, v{r1+3}")

def epi_attn(a, cfg, G):
    T = tiles_of(G)
    if G in (0, 1):
        for k in range(4): a.e(f"v_mov_b32 v{48+k}, 0x3f803f80")
        for et in range(2):
            for p in range(2):
                pack(a, 32 + 8*et + 4*p, acc(2+et, 2*p), acc(2+et, 2*p+1))
        for dt in range(2):
            for p in range(2):
                r0, r1 = acc(dt, 2*p), acc(dt, 2*p+1)
                phi8(a, [r0, r0+2, r1, r1+2], 104)
                pack(a, 16 + 8*dt + 4*p, r0, r1)
        a.e("s_nop 1")
        for p in range(2):
            for et in range(3):
                for dt in range(2):
                    d = vr(56 + 8*et + 4*dt, 4)
                    Bq = vr(32 + 8*et + 4*p, 4) if et < 2 else vr(48, 4)
                    a.e(f"v_mfma_f32_16x16x32_bf16 {d}, {vr(16+8*dt+4*p,4)}, {Bq}, {'0' if p == 0 else d}")
        a.e(f"s_lshl_b32 s30, s22, 1")
        if G: a.e("s_add_u32 s30, s30, 1")
        a.e("s_lshl_b32 s30, s30, 5")
        a.e("s_lshl_b32 s31, s21, 1")
        a.e("s_add_u32 s30, s30, s31")
        a.e("s_add_u32 s30, s30, s23")
        a.e("s_mul_i32 s30, s30, 6144")
        a.e(f"s_add_u32 s30, s30, {KVP}")
        a.e("s_add_u32 s31, s30, 4096")
        a.e("s_nop 7")
        for et in range(3):
            for dt in range(2):
                k = et*2 + dt
                a.e(f"buffer_store_dwordx4 {vr(56+4*k,4)}, v11, s[16:19], s{30 + (k>>2)} offen offset:{(k&3)*1024}")
    else:
        a.e("s_lshl_b32 s30, s21, 5")
        a.e("s_lshl_b32 s31, s22, 1")
        a.e("s_add_u32 s30, s30, s31")
        if G == 3: a.e("s_add_u32 s30, s30, 1")
        a.e("s_lshl_b32 s30, s30, 13")
        a.e("s_lshl_b32 s31, s23, 12")
        a.e("s_add_u32 s30, s30, s31")
        a.e(f"s_add_u32 s30, s30, {PQ}")
        for m in range(4):
            r0, r1 = acc(0, m), acc(1, m)
            phi8(a, [r0, r0+2, r1, r1+2], 104)
            pack(a, 16 + 4*m, r0, r1)
            a.e(f"buffer_store_dwordx4 {vr(16+4*m,4)}, v11, s[16:19], s30 offen offset:{m*1024}")

def epi_z1(a, cfg, G):
    T = tiles_of(G)
    a.e("s_lshl_b32 s32, s21, 4")
    a.e("s_lshl_b32 s33, s22, 1")
    a.e("s_add_u32 s32, s32, s33")
    a.e(f"s_mul_i32 s32, s32, {28*1024}")
    a.e("s_lshl_b32 s33, s23, 11")
    a.e("s_add_u32 s32, s32, s33")
    a.e(f"s_add_u32 s32, s32, {Z1}")
    k = 0
    for n, (kind, blk, hf, zn) in enumerate(T):
        if kind != "z": continue
        par, pos = pos_of(zn)
        a.e(f"s_add_u32 s33, s32, {(par*7 + pos)*4096}")
        for p in range(2):
            r0, r1 = acc(n, 2*p), acc(n, 2*p+1)
            gelu8(a, [r0, r0+2, r1, r1+2], 104)
            d = 80 + 4 * (k & 3); k += 1
            pack(a, d, r0, r1)
            a.e(f"buffer_store_dwordx4 {vr(d,4)}, v11, s[16:19], s33 offen offset:{p*1024}")

def epi_z2a(a, cfg, G):
    T = tiles_of(G)
    S, Q = 16, 32
    zi = 0
    for n, (kind, blk, hf, zn) in enumerate(T):
        if kind != "z": continue
        for p in range(2):
            r0, r1 = acc(n, 2*p), acc(n, 2*p+1)
            xs = [r0, r0+2, r1, r1+2]
            gelu8(a, xs, 104)
            for k in range(4):
                s, q = S + 8*p + 2*k, Q + 8*p + 2*k
                if zi == 0:
                    a.e(f"v_pk_mul_f32 {vr(q,2)}, {vr(xs[k],2)}, {vr(xs[k],2)}")
                else:
                    src = vr(s, 2) if zi > 1 else vr(xs[k] - 16, 2)
                    a.e(f"v_pk_add_f32 {vr(s,2)}, {src}, {vr(xs[k],2)}")
                    a.e(f"v_pk_fma_f32 {vr(q,2)}, {vr(xs[k],2)}, {vr(xs[k],2)}, {vr(q,2)}")
        zi += 1
    a.e("s_nop 1")
    for k in range(16): a.e(f"v_add_f32_dpp v{S+k}, v{S+k}, v{S+k} row_ror:8 row_mask:0xf bank_mask:0x3")
    for k in range(16): a.e(f"v_add_f32_dpp v{S+k}, v{Q+k}, v{Q+k} row_ror:8 row_mask:0xf bank_mask:0xc")
    for k in range(8): a.e(f"v_add_f32_dpp v{S+k}, v{S+k}, v{S+k} row_shl:4 row_mask:0xf bank_mask:0x5")
    for k in range(8): a.e(f"v_add_f32_dpp v{S+k}, v{S+8+k}, v{S+8+k} row_shr:4 row_mask:0xf bank_mask:0xa")
    for k in range(8): a.e(f"v_add_f32_dpp v{S+k}, v{S+k}, v{S+k} quad_perm:[1,0,3,2] row_mask:0xf bank_mask:0xf")
    for k in range(8): a.e(f"v_add_f32_dpp v{S+k}, v{S+k}, v{S+k} quad_perm:[2,3,0,1] row_mask:0xf bank_mask:0xf")
    a.e("v_and_b32 v1, 63, v0")
    a.e("v_bfe_u32 v2, v1, 3, 1")
    a.e("v_lshlrev_b32 v2, 9, v2")
    a.e("v_bfe_u32 v3, v1, 2, 1")
    a.e("v_lshl_add_u32 v2, v3, 7, v2")
    a.e("v_lshrrev_b32 v3, 4, v1")
    a.e("v_lshl_add_u32 v2, v3, 5, v2")
    a.e("s_lshl_b32 s30, s23, 8")
    a.e("v_add_u32 v2, s30, v2")
    a.e("s_mov_b32 s30, 0x11111111")
    a.e("s_mov_b32 s31, 0x11111111")
    a.e("s_mov_b64 exec, s[30:31]")
    a.e(f"ds_write_b128 v2, {vr(S,4)} offset:{G*1024}")
    a.e(f"ds_write_b128 v2, {vr(S+4,4)} offset:{G*1024+16}")
    a.e("s_mov_b64 exec, -1")
    a.e("s_waitcnt lgkmcnt(0)")
    a.e("s_barrier")
    if G == 2:
        a.e("s_lshl_b32 s30, s23, 6")
        a.e("v_add_u32 v2, s30, v1")
        a.e("v_lshlrev_b32 v3, 2, v2")
        for g in range(4):
            a.e(f"ds_read2st64_b32 {vr(16+2*g,2)}, v3 offset0:{4*g} offset1:{4*g+2}")
        a.e("v_lshlrev_b32 v4, 3, v2")
        a.e("s_lshl_b32 s34, s21, 13")
        a.e(f"s_add_u32 s34, s34, {STATS}")
        a.e("s_sub_u32 s35, s22, 8")
        a.e("s_lshl_b32 s35, s35, 10")
        a.e("s_add_u32 s35, s35, s34")
        a.e("s_waitcnt lgkmcnt(0)")
        a.e("v_pk_add_f32 v[16:17], v[16:17], v[18:19]")
        a.e("v_pk_add_f32 v[20:21], v[20:21], v[22:23]")
        a.e("v_pk_add_f32 v[16:17], v[16:17], v[20:21]")
        a.e("buffer_store_dwordx2 v[16:17], v4, s[16:19], s35 offen sc1")

def epi_z2b(a, cfg, G):
    T = tiles_of(G)
    if G == 2:
        a.e("s_add_u32 s35, s34, 4096")
        a.e("s_mov_b32 s36, 0")
        a.label("L_k1_poll")
        for k in range(8):
            a.e(f"buffer_load_dwordx2 {vr(32+2*k,2)}, v4, s[16:19], s{34 + (k>>2)} offen offset:{(k&3)*1024} sc1")
        a.e("s_waitcnt vmcnt(0)")
        a.e("v_cmp_eq_u32 vcc, -1, v32")
        for k in range(1, 16):
            a.e(f"v_cmp_eq_u32 s[38:39], -1, v{32+k}")
            a.e("s_or_b64 vcc, vcc, s[38:39]")
        a.e("s_add_u32 s36, s36, 1")
        a.e("s_cmp_gt_u32 s36, 20000")
        a.e("s_cbranch_scc1 L_k1_pollx")
        a.e("s_cmp_lg_u64 vcc, 0")
        a.e("s_cbranch_scc1 L_k1_poll")
        a.label("L_k1_pollx")
        for k in range(4): a.e(f"v_pk_add_f32 {vr(32+4*k,2)}, {vr(32+4*k,2)}, {vr(34+4*k,2)}")
        a.e("v_pk_add_f32 v[32:33], v[32:33], v[36:37]")
        a.e("v_pk_add_f32 v[40:41], v[40:41], v[44:45]")
        a.e("v_pk_add_f32 v[32:33], v[32:33], v[40:41]")
        a.e(f"v_mul_f32 v32, {f2u(1.0/1792):#x}, v32")
        a.e(f"v_mul_f32 v33, {f2u(1.0/1792):#x}, v33")
        a.e("v_fma_f32 v33, -v32, v32, v33")
        a.e("v_max_f32 v33, 0, v33")
        a.e(f"v_add_f32 v33, {f2u(1e-5):#x}, v33")
        a.e("v_rsq_f32 v33, v33")
        a.e("s_nop 0")
        a.e("v_mul_f32_e64 v32, -v32, v33")
        a.e("ds_write2st64_b32 v3, v33, v32 offset0:16 offset1:18")
        a.e("s_waitcnt lgkmcnt(0)")
    a.e("s_barrier")
    a.e("v_lshrrev_b32 v2, 4, v1")
    a.e("v_lshlrev_b32 v2, 5, v2")
    a.e("s_lshl_b32 s30, s23, 8")
    a.e("v_add_u32 v2, s30, v2")
    RS, NM = 16, 32
    for p in range(2):
        for q in range(2):
            a.e(f"ds_read_b128 {vr(RS+8*p+4*q,4)}, v2 offset:{4096 + p*128 + q*16}")
            a.e(f"ds_read_b128 {vr(NM+8*p+4*q,4)}, v2 offset:{4608 + p*128 + q*16}")
    a.e("s_sub_u32 s32, s22, 8")
    a.e("s_lshl_b32 s32, s32, 7")
    a.e("s_lshl_b32 s33, s21, 2")
    a.e("s_add_u32 s32, s32, s33")
    a.e("s_lshl_b32 s33, s23, 1")
    a.e("s_add_u32 s32, s32, s33")
    a.e("s_mul_i32 s32, s32, 7168")
    a.e(f"s_add_u32 s32, s32, {Z2N}")
    a.e("s_waitcnt lgkmcnt(0)")
    k = 0
    for n, (kind, blk, hf, zn) in enumerate(T):
        if kind != "z": continue
        par, pos = pos_of(zn)
        for p in range(2):
            r0, r1 = acc(n, 2*p), acc(n, 2*p+1)
            xs = [r0, r0+2, r1, r1+2]
            for u in range(4):
                a.e(f"v_pk_fma_f32 {vr(xs[u],2)}, {vr(xs[u],2)}, {vr(RS+8*p+2*u,2)}, {vr(NM+8*p+2*u,2)}")
            d = 80 + 4 * (k & 3); k += 1
            a.e(f"s_add_u32 s33, s32, {(par*64 + p)*7168 + pos*1024}")
            pack(a, d, r0, r1)
            a.e(f"buffer_store_dwordx4 {vr(d,4)}, v11, s[16:19], s33 offen")

def k1(a, cfg):
    name = "k1_proj_kernel"
    kernel_begin(a, name)
    a.e("s_cmp_ge_u32 s2, 256")
    a.e("s_cbranch_scc1 L_k1_end")
    stamp(a, cfg, 0)
    a.e("s_load_dwordx2 s[30:31], s[0:1], 8")
    a.e("s_load_dwordx2 s[32:33], s[0:1], 32")
    a.e("s_load_dwordx2 s[34:35], s[0:1], 80")
    a.e("v_lshrrev_b32 v1, 6, v0")
    a.e("v_and_b32 v12, 63, v0")
    a.e("v_readfirstlane_b32 s20, v1")
    a.e("s_and_b32 s21, s2, 1")
    a.e("s_lshl_b32 s21, s21, 3")
    a.e("s_bfe_u32 s36, s2, 0x30003")
    a.e("s_add_u32 s21, s21, s36")
    a.e("s_bfe_u32 s22, s2, 0x20001")
    a.e("s_lshl_b32 s22, s22, 2")
    a.e("s_lshr_b32 s36, s2, 6")
    a.e("s_add_u32 s22, s22, s36")
    a.e("s_and_b32 s23, s20, 1")
    a.e("v_lshlrev_b32 v11, 4, v12")
    a.e("s_lshl_b32 s27, s20, 11")
    a.e("v_add_u32 v2, s27, v11")
    a.e("s_mul_i32 s28, s23, 13312")
    a.e("v_lshrrev_b32 v13, 2, v12")
    a.e("s_lshl_b32 s36, s23, 4")
    a.e("v_add_u32 v13, s36, v13")
    a.e("v_bfe_u32 v14, v12, 5, 1")
    a.e("v_lshlrev_b32 v14, 1, v14")
    a.e("v_and_b32 v15, 3, v12")
    a.e("v_xor_b32 v14, v14, v15")
    a.e("v_lshlrev_b32 v14, 4, v14")
    a.e("v_mul_u32_u24 v3, 6144, v13")
    a.e("v_add_u32 v3, v3, v14")
    a.e("v_mul_u32_u24 v4, 7168, v13")
    a.e("v_add_u32 v4, v4, v14")
    a.e("s_lshl_b32 s36, s23, 12")
    a.e("v_add_u32 v5, s36, v11")
    a.e(f"v_add_u32 v6, {2*SLOT}, v5")
    a.e("v_lshrrev_b32 v13, 5, v12")
    a.e("v_mul_u32_u24 v7, 13312, v13")
    a.e("v_bfe_u32 v13, v12, 4, 1")
    a.e("v_mul_u32_u24 v14, 544, v13")
    a.e("v_add_u32 v7, v7, v14")
    a.e("v_bfe_u32 v14, v12, 2, 2")
    a.e("v_lshl_add_u32 v7, v14, 6, v7")
    a.e("v_lshl_add_u32 v7, v15, 3, v7")
    a.e("v_add_u32 v7, 8192, v7")
    a.e("v_xor_b32 v8, 32, v7")
    a.e(f"v_add_u32 v9, {2*SLOT}, v7")
    a.e(f"v_add_u32 v10, {2*SLOT}, v8")
    a.e("s_mov_b32 s24, 0")
    a.e("s_lshl_b32 s25, s22, 7")
    a.e("s_mul_i32 s26, s22, 448")
    a.e("s_waitcnt lgkmcnt(0)")
    if cfg.get("tim2"): stamp(a, cfg, 1)
    srd(a, 8, 30, 1024 * 6144)
    srd(a, 12, 32, 1024 * 7168)
    srd(a, 16, 34, WS_SIZE)
    a.e("s_lshl_b32 s36, s21, 18")
    if XN: a.e(f"s_add_u32 s36, s36, {XN}")
    a.e("s_add_u32 s4, s34, s36")
    a.e("s_addc_u32 s5, s35, 0")
    a.e("s_and_b32 s5, s5, 0xffff")
    a.e("s_mov_b32 s6, 0x40000")
    a.e("s_mov_b32 s7, 0x00020000")
    a.e("s_lshr_b32 s36, s20, 1")
    a.e("s_cmp_ge_u32 s22, 8")
    a.e("s_cbranch_scc1 L_k1_z2")
    for zt in (1, 2):
        if zt == 2: a.label("L_k1_z2")
        for G in (1, 2, 3):
            a.e(f"s_cmp_eq_u32 s36, {G}")
            a.e(f"s_cbranch_scc1 L_k1_{zt}_{G}")
        a.e(f"s_branch L_k1_{zt}_0")
    for zt in (1, 2):
        for G in range(4):
            a.label(f"L_k1_{zt}_{G}")
            if G == 1: a.e("s_add_u32 s25, s25, 2048")
            if G == 3: a.e("s_add_u32 s25, s25, 4096")
            D = len(dmas(G, 0))
            for s in range(4):
                for grp in dmas(G, s):
                    for ins in grp: a.e("s_nop 0" if ins == "@" else ins)
            if cfg.get("tim2"): stamp(a, cfg, 2)
            for r in range(16 * len(tiles_of(G))): a.e(f"v_mov_b32 v{ACC+r}, 0")
            a.e(f"s_waitcnt vmcnt({3*D})")
            a.e("s_barrier")
            stamp(a, cfg, 3 if cfg.get("tim2") else 1)
            for r in reads(G, 0, 0): a.e(r)
            a.e("s_mov_b32 s29, 7")
            a.label(f"L_k1_loop_{zt}_{G}")
            for t in range(4):
                step(a, cfg, G, zt, t, t, True, 2*D)
            a.e("s_sub_u32 s29, s29, 1")
            a.e("s_cmp_lg_u32 s29, 0")
            a.e(f"s_cbranch_scc1 L_k1_loop_{zt}_{G}")
            for t in range(4):
                step(a, cfg, G, zt, t, t, False, [2*D, D, 0, None][t], last=(t == 3))
            if not cfg.get("tim2"): stamp(a, cfg, 2)
            for k, c in ((42, GC1), (44, 1.0), (46, LOG2E), (48, 1e-6)):
                a.e(f"s_mov_b32 s{k}, {f2u(c):#x}"); a.e(f"s_mov_b32 s{k+1}, {f2u(c):#x}")
            a.e(f"v_mov_b32 v12, {f2u(GC0):#x}"); a.e(f"v_mov_b32 v13, {f2u(GC0):#x}")
            a.e("s_nop 7")
            if zt == 1:
                epi_attn(a, cfg, G)
                epi_z1(a, cfg, G)
            else:
                epi_z2a(a, cfg, G)
                epi_attn(a, cfg, G)
                epi_z2b(a, cfg, G)
            if not cfg.get("tim2"): stamp(a, cfg, 3)
            stamp_store(a, cfg, 1, 4, 16, "s20")
            a.e("s_endpgm")
    a.label("L_k1_end")
    a.e("s_endpgm")
    return (name, "(256,1,1)", "(512,1,1)", 4 * SLOT, dict(vgpr=256, sgpr=100, accum=256))
```

```python
from gen_common import *
from gen_k1 import gelu8, phi8, pack
import gen_k1
S1 = 34 * 1024
S2 = 30 * 1024
ZS = 4 * S2
SS = ZS + 28 * 1024
CNT = SS + 5 * 1024
LDS = 160 * 1024
BOUND = 6000
SWS, SDBG, SQKV, SWIN, SX, SWSP, SB, SWO, SWOUT, SOUT, STCH = 16, 4, 8, 12, 52, 56, 60, 64, 68, 72, 76
WS, DBG = sr(SWS, 4), sr(SDBG, 4)
ACC = 128
def st(a, cfg, name):
    names = cfg.get("stamps", [0, 1, 2, 3, 4, 5, 6, 7])
    if cfg.get("tim") and name in names:
        idx = names.index(name)
        a.e(f"s_memtime s[{80+2*idx}:{81+2*idx}]")
def emit(a, grp):
    for ins in grp: a.e("s_nop 0" if ins == "@" else ins)
class Lbl:
    n = 0
def lbl(p):
    Lbl.n += 1; return f"L_{p}_{Lbl.n}"
def atomic_inc(a, soff, t=12):
    a.e(f"v_mov_b32 v{t}, 1"); a.e(f"v_mov_b32 v{t+1}, 0")
    a.e("s_mov_b64 exec, 1")
    a.e(f"buffer_atomic_add v{t}, v{t+1}, {DBG}, {soff} offen sc1")
    a.e("s_mov_b64 exec, -1")
def poll_issue(a, soff, t):
    a.e(f"v_mov_b32 v{t+1}, 0")
    a.e("s_mov_b64 exec, 1")
    a.e(f"buffer_load_dword v{t}, v{t+1}, {DBG}, {soff} offen sc1")
    a.e("s_mov_b64 exec, -1")
def poll_spin(a, soff, t, pre=False):
    L, X, C = lbl("poll"), lbl("pollx"), lbl("pollc")
    a.e("s_mov_b32 s36, 0")
    if pre: a.e(f"s_branch {C}")
    a.label(L)
    if SLEEP: a.e(f"s_sleep {SLEEP}")
    poll_issue(a, soff, t)
    a.e("s_waitcnt vmcnt(0)")
    a.label(C)
    a.e(f"v_readfirstlane_b32 s37, v{t}")
    a.e("s_add_u32 s36, s36, 1")
    a.e("s_cmp_ge_u32 s37, 16")
    a.e(f"s_cbranch_scc1 {X}")
    a.e(f"s_cmp_lt_u32 s36, {BOUND}")
    a.e(f"s_cbranch_scc1 {L}")
    a.label(X)

def acc(n, m): return ACC + (n * 4 + m) * 4
def fa(P, m): return 16 + 16 * P + 4 * m
def fb(P, n): return 48 + 28 * P + 4 * n
def tiles_of(G):
    z1 = lambda p: ("z1", 6 + p // 2 if p < 6 else 9, p & 1 if p < 6 else 0, p)
    z2 = lambda p: ("z2", 10 + p // 2 if p < 6 else 9, p & 1 if p < 6 else 1, p)
    if G == 0: return [("k", 2, 0, 0), ("k", 2, 1, 1), ("v", 4, 0, 0), ("v", 4, 1, 1), z2(0), z2(1), z1(0)]
    if G == 1: return [("k", 3, 0, 0), ("k", 3, 1, 1), ("v", 5, 0, 0), ("v", 5, 1, 1), z2(2), z1(1), z1(2)]
    if G == 2: return [("q", 0, 0, 0), ("q", 0, 1, 1), z2(3), z2(4), z1(3), z1(4)]
    if G == 3: return [("q", 1, 0, 0), ("q", 1, 1, 1), z2(5), z2(6), z1(5), z1(6)]
def dmas1(G, slot, which="AB"):
    out = []
    base = slot * S1
    def B(c, imm, v, srd_, so):
        return [f"s_add_u32 m0, s28, {base + 8192 + c*1024 - imm}", "@",
                f"buffer_load_dwordx4 v{v}, {sr(srd_,4)}, s{so} offen offset:{imm} lds"]
    if G in (0, 1):
        if "A" in which:
            out.append([f"s_add_u32 m0, s27, {base}", "@", f"buffer_load_dwordx4 v2, {WS}, s24 offen sc1 lds"])
            out.append([f"buffer_load_dwordx4 v2, {WS}, s24 offen offset:1024 sc1 lds", "s_add_u32 s24, s24, 8192"])
        if "B" in which:
            c0 = 0 if G == 0 else 2
            out.append(B(c0, 0, 3, SQKV, 25))
            out.append(B(c0 + 1, 64, 3, SQKV, 25) + [f"s_add_u32 s25, s25, {32*6144}"])
    if G == 2:
        for c in range(3): out.append(B(6 + c, 64 * c, 4, SWIN, 26))
        out.append(B(9, 0, 15, SWIN, 26) + [f"s_add_u32 s26, s26, {32*7168}"])
    if G == 3:
        out.append(B(4, 0, 3, SQKV, 25))
        out.append(B(5, 64, 3, SQKV, 25) + [f"s_add_u32 s25, s25, {32*6144}"])
        for c in range(3): out.append(B(10 + c, 3584 + 64 * c, 4, SWIN, 26))
        out[-1].append(f"s_add_u32 s26, s26, {32*7168}")
    return out
def reads1(G, P, slot):
    hi = slot >> 1
    base = (slot & 1) * S1
    out = [f"ds_read_b128 {vr(fa(P,m),4)}, v{5+hi} offset:{base + m*1024}" for m in range(4)]
    for n, (kind, blk, hf, zn) in enumerate(tiles_of(G)):
        for h in range(2):
            out.append(f"ds_read_b64_tr_b16 {vr(fb(P,n)+2*h,2)}, v{7+2*hi+hf} offset:{base + blk*1024 + h*256}")
    return out
def mfmas1(G, P, first=False):
    out = []
    for n, (kind, blk, hf, zn) in enumerate(tiles_of(G)):
        for m in range(4):
            A, Bq = vr(fa(P, m), 4), vr(fb(P, n), 4)
            if kind in ("q", "z1"): A, Bq = Bq, A
            out.append(f"v_mfma_f32_16x16x32_bf16 {vr(acc(n,m),4)}, {A}, {Bq}, {'0' if first else vr(acc(n,m),4)}")
    return out
def place(fill, DM, d0, ds, nM):
    used = set()
    for k, grp in enumerate(DM):
        p = min(d0 + k * ds, nM - 2)
        if "@" in grp:
            assert p not in used; used.add(p)
            i = grp.index("@")
            fill.append((p, grp[:i])); fill.append((p + 1, grp[i+1:]))
        else:
            fill.append((p + 1, grp))
def step1(a, cfg, G, t, DM, nwait, first=False, last=False, extra=None, dpos=None):
    P = t & 1
    a.e(f"s_waitcnt vmcnt({nwait}) lgkmcnt(0)" if nwait is not None else "s_waitcnt lgkmcnt(0)")
    a.e("s_barrier")
    M = mfmas1(G, P, first)
    fill = []
    if not last:
        r0 = cfg.get("k1_r0", 0); rs = cfg.get("k1_rs", 1.0)
        for k, r in enumerate(reads1(G, P ^ 1, (t + 1) & 3)): fill.append((int(r0 + k * rs), [r]))
    d0, ds = dpos or cfg.get("k1_d", {}).get(G, (2, 5))
    place(fill, DM, d0, ds, len(M))
    if extra: fill.append((len(M) - 1, extra))
    interleave(a, M, fill)

def touch(a, cfg, G):
    nt = 0
    if G < 2 or not cfg.get("pf", 1): return 0
    a.e("v_subrev_u32 v124, 256, v0"); a.e("v_lshlrev_b32 v124, 7, v124")
    for (sb, stride) in ((SQKV, 6144), (SWIN, 7168)):
        n = 896 * stride // 256
        a.e(f"s_mul_i32 s46, s2, {n}"); a.e(f"s_add_u32 s46, s46, {128*stride}")
        srd_at(a, STCH, sb, "s46", n)
        a.e(f"buffer_load_dword v{125 + nt}, v124, {sr(STCH,4)}, 0 offen"); nt += 1
    L, L2 = lbl("t"), lbl("t")
    (b0, n0), (b1, n1) = ((SWSP, 32768), (SWOUT, 14336)) if G == 2 else ((SWO, 8192), (SWO, 0))
    a.e("s_cmp_lg_u32 s23, 0"); a.e(f"s_cbranch_scc1 {L}")
    a.e(f"s_mul_i32 s46, s2, {n0}"); srd_at(a, STCH, b0, "s46", n0); a.e(f"s_branch {L2}")
    a.label(L)
    a.e(f"s_mul_i32 s46, s2, {n1}"); srd_at(a, STCH, b1, "s46", n1)
    a.label(L2)
    a.e("v_lshlrev_b32 v124, 7, v12")
    return nt

def ln(a, cfg, G):
    LO, SO, T = 64, 65, 66
    wh = "B" if G < 2 else "AB"
    n0, n1 = cfg.get("ln_n0", 1), cfg.get("ln_n1", 1)
    a.e("s_lshr_b32 s30, s22, 1"); a.e("s_and_b32 s31, s22, 1")
    a.e("s_lshl_b32 s32, s21, 2"); a.e("s_lshr_b32 s33, s30, 1"); a.e("s_add_u32 s32, s32, s33"); a.e("s_lshl_b32 s32, s32, 5")
    a.e("s_and_b32 s33, s30, 1"); a.e("s_lshl_b32 s33, s33, 2"); a.e("s_add_u32 s32, s32, s33")
    a.e("s_lshl_b32 s33, s31, 4"); a.e("s_add_u32 s32, s32, s33")
    a.e("s_lshl_b32 s32, s32, 11"); a.e("s_lshl_b32 s33, s20, 8"); a.e("s_add_u32 s32, s32, s33")
    for n in range(2):
        a.e(f"buffer_load_dwordx4 v[{16+4*n}:{19+4*n}], v{LO}, {sr(SX,4)}, s32 offen offset:{128*n}")
    nv = touch(a, cfg, G) if cfg.get("tpos", 2) == 0 else 0
    for s in range(n0):
        for grp in dmas1(G, s, wh): emit(a, grp); nv += 1
    if G == 0:
        a.e("s_lshl_b32 s33, s21, 4"); a.e("s_add_u32 s33, s33, s22"); a.e("s_lshl_b32 s33, s33, 10")
        a.e(f"s_add_u32 s33, s33, {STATS}")
        a.e("s_mul_i32 s34, s22, 6144"); a.e("s_mul_i32 s35, s21, 384"); a.e("s_add_u32 s34, s34, s35")
        a.e(f"s_add_u32 s34, s34, {KVR}")
        a.e("s_cmp_eq_u32 s23, 0")
        a.e("s_cselect_b32 s33, s33, s34")
        a.e("s_cselect_b32 s34, 63, 23")
        a.e(f"v_min_u32 v{T+2}, s34, v12"); a.e(f"v_lshlrev_b32 v{T+2}, 4, v{T+2}")
        for k in range(4): a.e(f"v_mov_b32 v{72+k}, -1")
        a.e(f"buffer_store_dwordx4 v[72:75], v{T+2}, {WS}, s33 offen sc1")
        nv += 1
    a.e("s_lshl_b32 s32, s21, 18"); a.e("s_lshl_b32 s33, s30, 10"); a.e("s_add_u32 s32, s32, s33")
    a.e("s_lshl_b32 s33, s31, 7"); a.e("s_add_u32 s32, s32, s33")
    a.e("s_lshl_b32 s33, s20, 15"); a.e("s_add_u32 s32, s32, s33")
    a.e("s_add_u32 s33, s32, 16384")
    a.e("s_mov_b32 s36, 0xffff0000")
    st(a, cfg, "dma")
    a.e(f"s_waitcnt vmcnt({nv})")
    st(a, cfg, "x")
    for k in range(8):
        a.e(f"v_lshlrev_b32 v{32+2*k}, 16, v{16+k}")
        a.e(f"v_and_b32 v{33+2*k}, s36, v{16+k}")
    x = lambda k: vr(32 + 2*k, 2)
    p0, p1 = vr(T, 2), vr(T+2, 2)
    a.e(f"v_pk_add_f32 {p0}, {x(0)}, {x(1)}"); a.e(f"v_pk_mul_f32 {p1}, {x(0)}, {x(0)}")
    for k in range(1, 8):
        if k > 1: a.e(f"v_pk_add_f32 {p0}, {p0}, {x(k)}")
        a.e(f"v_pk_fma_f32 {p1}, {x(k)}, {x(k)}, {p1}")
    a.e(f"v_add_f32 v{T}, v{T}, v{T+1}"); a.e(f"v_add_f32 v{T+1}, v{T+2}, v{T+3}")
    a.e("s_nop 1")
    for k in range(2): a.e(f"v_add_f32_dpp v{T+k}, v{T+k}, v{T+k} row_ror:8 row_mask:0xf bank_mask:0xf")
    for op in ("v_permlane16_swap_b32", "v_permlane32_swap_b32"):
        for k in range(2): a.e(f"v_mov_b32 v{T+2+k}, v{T+k}")
        a.e("s_nop 1")
        for k in range(2): a.e(f"{op} v{T+2+k}, v{T+k}")
        a.e("s_nop 1")
        a.e(f"v_pk_add_f32 {p0}, {p0}, {p1}")
    a.e("s_mov_b64 exec, 0xff")
    a.e(f"ds_write_b64 v62, {p0}")
    a.e("s_mov_b64 exec, -1")
    a.e("s_waitcnt lgkmcnt(0)")
    a.e("s_barrier")
    for k in range(4): a.e(f"ds_read_b128 {vr(16+4*k,4)}, v63 offset:{16*k}")
    a.e("s_waitcnt lgkmcnt(0)")
    for lv in (4, 2, 1):
        for k in range(lv): a.e(f"v_pk_add_f32 {vr(16+2*k,2)}, {vr(16+2*k,2)}, {vr(16+2*(k+lv),2)}")
    a.e(f"v_mul_f32 v16, {f2u(1.0/1024):#x}, v16"); a.e(f"v_mul_f32 v17, {f2u(1.0/1024):#x}, v17")
    a.e("v_fma_f32 v17, -v16, v16, v17"); a.e("v_max_f32 v17, 0, v17"); a.e(f"v_add_f32 v17, {f2u(1e-5):#x}, v17")
    a.e("v_rsq_f32 v18, v17")
    a.e("v_mul_f32 v16, -1.0, v16")
    a.e("v_mov_b32 v17, v16"); a.e("v_mov_b32 v19, v18")
    for k in range(8): a.e(f"v_pk_add_f32 {x(k)}, {x(k)}, v[16:17]")
    for k in range(8): a.e(f"v_pk_mul_f32 {x(k)}, {x(k)}, v[18:19]")
    for k in range(8): a.e(f"v_cvt_pk_bf16_f32 v{20+k}, v{32+2*k}, v{33+2*k}")
    for n in range(2):
        a.e(f"buffer_store_dwordx4 v[{20+4*n}:{23+4*n}], v{SO}, {WS}, s{32+n} offen sc1")
    nv = 0
    for s in range(n0, n0 + n1):
        for grp in dmas1(G, s, wh): emit(a, grp); nv += 1
    a.e("s_lshl_b32 s30, s21, 4")
    st(a, cfg, "ln")
    a.e(f"s_waitcnt vmcnt({nv})")
    a.e("s_barrier")
    st(a, cfg, "xn")
    if G == 0:
        L = lbl("noarr")
        a.e("s_cmp_lg_u32 s20, 0"); a.e(f"s_cbranch_scc1 {L}")
        atomic_inc(a, "s30", T)
        a.label(L)
    for s in range(n0 + n1, cfg.get("ln_n2", 4)):
        for grp in dmas1(G, s, wh): emit(a, grp)

def addr2(a):
    a.e("v_lshrrev_b32 v13, 3, v12"); a.e("v_lshrrev_b32 v14, 5, v12"); a.e("v_and_b32 v123, 3, v13")
    a.e("v_lshl_add_u32 v14, v14, 3, v123"); a.e("v_lshlrev_b32 v14, 12, v14")
    a.e("v_lshrrev_b32 v13, 4, v12"); a.e("v_and_b32 v123, 7, v12"); a.e("v_xor_b32 v13, v13, v123")
    a.e("v_lshl_add_u32 v112, v13, 4, v14")
    a.e("v_xor_b32 v113, 64, v112")
    a.e(f"v_add_u32 v114, {16384-2048}, v112")
    a.e(f"v_add_u32 v115, {81920-3072}, v113")
    a.e(f"v_add_u32 v113, {65536-1024}, v113")
    a.e("v_and_b32 v13, 15, v12"); a.e("v_lshrrev_b32 v14, 1, v13"); a.e("v_lshrrev_b32 v123, 4, v12")
    a.e("v_xor_b32 v14, v14, v123"); a.e("v_lshlrev_b32 v14, 4, v14")
    a.e("v_lshl_add_u32 v116, v13, 7, v14")
    a.e("s_and_b32 s36, s20, 3"); a.e("s_lshl_b32 s36, s36, 12")
    a.e("v_add_u32 v116, s36, v116")
    a.e("v_xor_b32 v117, 64, v116")
    a.e(f"v_add_u32 v118, {2*S2}, v116"); a.e(f"v_add_u32 v119, {2*S2}, v117")
    a.e("s_lshr_b32 s36, s20, 2"); a.e("s_lshl_b32 s36, s36, 12"); a.e("s_add_u32 s36, s36, 16384")
    a.e("v_add_u32 v121, s36, v11"); a.e(f"v_add_u32 v122, {2*S2}, v121")
    a.e("v_bfe_u32 v13, v12, 2, 2"); a.e("v_and_b32 v14, 3, v12"); a.e("v_lshl_add_u32 v13, v13, 3, v14")
    a.e("v_lshlrev_b32 v120, 1, v13")

def epi_z2a(a, cfg, G):
    T = tiles_of(G)
    S, Q = 16, 32
    zt = [n for n, t in enumerate(T) if t[0] == "z2"]
    for zi, n in enumerate(zt):
        for p in range(2):
            r0, r1 = acc(n, 2*p), acc(n, 2*p+1)
            xs = [r0, r0+2, r1, r1+2]
            gelu8(a, xs, 104)
            for k in range(4):
                s, q = S + 8*p + 2*k, Q + 8*p + 2*k
                if zi == 0: a.e(f"v_pk_mul_f32 {vr(q,2)}, {vr(xs[k],2)}, {vr(xs[k],2)}")
                else:
                    a.e(f"v_pk_add_f32 {vr(s,2)}, {vr(xs[k]-16,2)}, {vr(xs[k],2)}")
                    a.e(f"v_pk_fma_f32 {vr(q,2)}, {vr(xs[k],2)}, {vr(xs[k],2)}, {vr(q,2)}")
    a.e("s_nop 1")
    src = (lambda k: S + k) if len(zt) > 1 else (lambda k: acc(zt[0], 0) + k)
    for k in range(16): a.e(f"v_add_f32_dpp v{S+k}, v{src(k)}, v{src(k)} row_ror:8 row_mask:0xf bank_mask:0x3")
    for k in range(16): a.e(f"v_add_f32_dpp v{S+k}, v{Q+k}, v{Q+k} row_ror:8 row_mask:0xf bank_mask:0xc")
    for k in range(8): a.e(f"v_add_f32_dpp v{S+k}, v{S+k}, v{S+k} row_shl:4 row_mask:0xf bank_mask:0x5")
    for k in range(8): a.e(f"v_add_f32_dpp v{S+k}, v{S+8+k}, v{S+8+k} row_shr:4 row_mask:0xf bank_mask:0xa")
    for k in range(8): a.e(f"v_add_f32_dpp v{S+k}, v{S+k}, v{S+k} quad_perm:[1,0,3,2] row_mask:0xf bank_mask:0xf")
    for k in range(8): a.e(f"v_add_f32_dpp v{S+k}, v{S+k}, v{S+k} quad_perm:[2,3,0,1] row_mask:0xf bank_mask:0xf")
    a.e("s_mov_b32 s30, 0x11111111"); a.e("s_mov_b32 s31, 0x11111111")
    a.e("s_mov_b64 exec, s[30:31]")
    a.e(f"ds_write_b128 v2, {vr(S,4)} offset:{G*1024}")
    a.e(f"ds_write_b128 v2, {vr(S+4,4)} offset:{G*1024+16}")
    a.e("s_mov_b64 exec, -1")
    a.e("s_waitcnt lgkmcnt(0)")
    a.e("s_barrier")
    if G == 2:
        for g in range(4): a.e(f"ds_read2st64_b32 {vr(16+2*g,2)}, v3 offset0:{4*g} offset1:{4*g+2}")
        a.e("s_lshl_b32 s34, s21, 14"); a.e(f"s_add_u32 s34, s34, {STATS}")
        a.e("s_lshl_b32 s35, s22, 10"); a.e("s_add_u32 s35, s35, s34")
        a.e("s_waitcnt lgkmcnt(0)")
        a.e("v_pk_add_f32 v[16:17], v[16:17], v[18:19]")
        a.e("v_pk_add_f32 v[20:21], v[20:21], v[22:23]")
        a.e("v_pk_add_f32 v[16:17], v[16:17], v[20:21]")
        a.e(f"buffer_store_dwordx2 v[16:17], v4, {WS}, s35 offen sc1")

def epi_addr(a, G):
    a.e("v_and_b32 v1, 63, v0")
    a.e("v_bfe_u32 v2, v1, 3, 1"); a.e("v_lshlrev_b32 v2, 9, v2")
    a.e("v_bfe_u32 v3, v1, 2, 1"); a.e("v_lshl_add_u32 v2, v3, 7, v2")
    a.e("v_lshrrev_b32 v3, 4, v1"); a.e("v_lshlrev_b32 v5, 5, v3")
    a.e("s_lshl_b32 s30, s23, 8"); a.e(f"s_add_u32 s30, s30, {SS}")
    a.e("v_add_u32 v5, s30, v5")
    a.e("v_add_u32 v2, v2, v5")
    if G == 2:
        a.e("s_lshl_b32 s30, s23, 6"); a.e("v_add_u32 v4, s30, v1")
        a.e("v_lshlrev_b32 v3, 2, v4"); a.e(f"v_add_u32 v3, {SS}, v3")
        a.e("v_lshlrev_b32 v4, 3, v4")
    a.e("s_lshl_b32 s30, s23, 11"); a.e(f"s_add_u32 s30, s30, {ZS}")
    a.e("v_add_u32 v6, s30, v11")

def epi_attn(a, cfg, G):
    if G in (0, 1):
        for k in range(4): a.e(f"v_mov_b32 v{48+k}, 0x3f803f80")
        for et in range(2):
            for p in range(2): pack(a, 32 + 8*et + 4*p, acc(2+et, 2*p), acc(2+et, 2*p+1))
        for dt in range(2):
            for p in range(2):
                r0, r1 = acc(dt, 2*p), acc(dt, 2*p+1)
                phi8(a, [r0, r0+2, r1, r1+2], 104)
                pack(a, 16 + 8*dt + 4*p, r0, r1)
        a.e("s_nop 1")
        for p in range(2):
            for et in range(3):
                for dt in range(2):
                    d = vr(56 + 8*et + 4*dt, 4)
                    Bq = vr(32 + 8*et + 4*p, 4) if et < 2 else vr(48, 4)
                    a.e(f"v_mfma_f32_16x16x32_bf16 {d}, {vr(16+8*dt+4*p,4)}, {Bq}, {'0' if p == 0 else d}")
        a.e(f"s_lshl_b32 s30, s22, 1")
        if G: a.e("s_add_u32 s30, s30, 1")
        a.e("s_lshl_b32 s30, s30, 5"); a.e("s_lshl_b32 s31, s21, 1"); a.e("s_add_u32 s30, s30, s31"); a.e("s_add_u32 s30, s30, s23")
        a.e("s_mul_i32 s30, s30, 6144"); a.e(f"s_add_u32 s30, s30, {KVP}"); a.e("s_add_u32 s31, s30, 4096")
        a.e("s_nop 7")
        for k in range(6):
            a.e(f"buffer_store_dwordx4 {vr(56+4*k,4)}, v11, {WS}, s{30 + (k>>2)} offen offset:{(k&3)*1024} sc1")
    else:
        for m in range(4):
            r0, r1 = acc(0, m), acc(1, m)
            phi8(a, [r0, r0+2, r1, r1+2], 104)
            pack(a, 240 + 4*m, r0, r1)

def epi_z2b(a, cfg, G):
    T = tiles_of(G)
    if G == 2:
        for k in range(1, 4): a.e(f"s_add_u32 s{37+k}, s34, {4096*k}")
        a.e("s_mov_b32 s36, 0")
        L, X = lbl("sp"), lbl("spx")
        a.label(L)
        for k in range(16):
            a.e(f"buffer_load_dwordx2 {vr(32+2*k,2)}, v4, {WS}, s{34 if k < 4 else 37 + (k>>2)} offen offset:{(k&3)*1024} sc1")
        a.e("s_add_u32 s36, s36, 1")
        for lv in (8, 4, 2, 1):
            if lv == 8: a.e("s_waitcnt vmcnt(0)")
            for k in range(lv): a.e(f"v_pk_add_f32 {vr(32+2*k,2)}, {vr(32+2*k,2)}, {vr(32+2*(k+lv),2)}")
        a.e("v_cmp_u_f32 vcc, v32, v33")
        a.e(f"s_cmp_ge_u32 s36, {BOUND}"); a.e(f"s_cbranch_scc1 {X}")
        a.e("s_cmp_lg_u64 vcc, 0"); a.e(f"s_cbranch_scc1 {L}")
        a.label(X)
        a.e(f"v_mul_f32 v32, {f2u(1.0/1792):#x}, v32")
        a.e(f"v_mul_f32 v33, {f2u(1.0/1792):#x}, v33")
        a.e("v_fma_f32 v33, -v32, v32, v33")
        a.e("v_max_f32 v33, 0, v33")
        a.e(f"v_add_f32 v33, {f2u(1e-5):#x}, v33")
        a.e("v_rsq_f32 v33, v33")
        a.e("s_nop 0")
        a.e("v_mul_f32_e64 v32, -v32, v33")
        a.e("ds_write2st64_b32 v3, v33, v32 offset0:16 offset1:18")
        a.e("s_waitcnt lgkmcnt(0)")
    a.e("s_barrier")
    st(a, cfg, 3)
    RS, NM = 16, 32
    for p in range(2):
        for q in range(2):
            a.e(f"ds_read_b128 {vr(RS+8*p+4*q,4)}, v5 offset:{4096 + p*128 + q*16}")
            a.e(f"ds_read_b128 {vr(NM+8*p+4*q,4)}, v5 offset:{4608 + p*128 + q*16}")
    a.e("s_lshl_b32 s32, s22, 6"); a.e("s_lshl_b32 s33, s21, 2"); a.e("s_add_u32 s32, s32, s33")
    a.e("s_lshl_b32 s33, s23, 1"); a.e("s_add_u32 s32, s32, s33")
    a.e("s_mul_i32 s32, s32, 7168"); a.e(f"s_add_u32 s32, s32, {Z2N}")
    a.e("s_waitcnt lgkmcnt(0)")
    k = 0
    for n, (kind, blk, hf, pos) in enumerate(T):
        if kind != "z2": continue
        for p in range(2):
            r0, r1 = acc(n, 2*p), acc(n, 2*p+1)
            xs = [r0, r0+2, r1, r1+2]
            for u in range(4): a.e(f"v_pk_fma_f32 {vr(xs[u],2)}, {vr(xs[u],2)}, {vr(RS+8*p+2*u,2)}, {vr(NM+8*p+2*u,2)}")
            d = 80 + 4 * (k & 3); k += 1
            a.e(f"s_add_u32 s33, s32, {p*7168 + pos*1024}")
            pack(a, d, r0, r1)
            a.e(f"buffer_store_dwordx4 {vr(d,4)}, v11, {WS}, s33 offen sc1")

def epi_z1(a, cfg, G, which):
    zt = [(n, t[3]) for n, t in enumerate(tiles_of(G)) if t[0] == "z1"]
    for n, pos in zt[which:which+1]:
        for p in range(2):
            r0, r1 = acc(n, 2*p), acc(n, 2*p+1)
            gelu8(a, [r0, r0+2, r1, r1+2], 104)
            pack(a, 96 + 4*p, r0, r1)
            a.e(f"ds_write_b128 v6, {vr(96+4*p,4)} offset:{pos*4096 + p*1024}")

def acc2(n, m): return ACC + (n * 2 + m) * 4
def fw(P, m): return 24 + 8 * P + 4 * m
def fz(P, n): return 40 + 16 * P + 4 * n
def ntiles(R): return 4 if R == 0 else 3
def dmas2(R, slot):
    base = slot * S2
    out = []
    D = 3 if R == 2 else 4
    for n in range(D):
        if R == 0: g = [f"buffer_load_dwordx4 v{112+n}, {sr(SWSP,4)}, s24 offen offset:{n*1024} lds"]
        else: g = [f"buffer_load_dwordx4 v11, {WS}, s24 offen offset:{n*1024} sc1 lds"]
        if n == 0: g = [f"s_add_u32 m0, s27, {base}", "@"] + g
        if n == D - 1: g.append(f"s_add_u32 s24, s24, {128 if R == 0 else 14336}")
        out.append(g)
    return out
def reads2(R, P, slot, sub):
    hi = slot >> 1
    base = (slot & 1) * S2
    out = [f"ds_read_b128 {vr(fw(P,m),4)}, v{116+2*hi+sub} offset:{base + m*2048}" for m in range(2)]
    out += [f"ds_read_b128 {vr(fz(P,n),4)}, v{121+hi} offset:{base + sub*7168 + n*1024}" for n in range(ntiles(R))]
    return out
def mfmas2(R, P, first=False):
    return [f"v_mfma_f32_16x16x32_bf16 {vr(acc2(n,m),4)}, {vr(fz(P,n),4)}, {vr(fw(P,m),4)}, {'0' if first else vr(acc2(n,m),4)}"
            for n in range(ntiles(R)) for m in range(2)]
def body2(a, cfg, R, slot, DM, nwait, last=False, prebar=None, dpos=None):
    a.e(f"s_waitcnt vmcnt({nwait}) lgkmcnt(0)" if nwait is not None else "s_waitcnt lgkmcnt(0)")
    if prebar: prebar()
    if not last: a.e("s_barrier")
    d0, ds = dpos or (cfg.get("k2_d0", 1), cfg.get("k2_ds", 3))
    M = mfmas2(R, 1)
    fill = []
    if not last:
        for k, r in enumerate(reads2(R, 0, (slot + 1) & 3, 0)): fill.append((k - 1, [r]))
    h = len(DM) if last else (len(DM) + 1) // 2
    place(fill, DM[:h], d0, ds, len(M))
    interleave(a, M, fill)
    if last: return
    a.e("s_waitcnt lgkmcnt(0)")
    M = mfmas2(R, 0)
    fill = [(k - 1, [r]) for k, r in enumerate(reads2(R, 1, (slot + 1) & 3, 1))]
    place(fill, DM[h:], d0, ds, len(M))
    interleave(a, M, fill)

NS, NT3 = 8, 44
def fa3(T, sub): return 160 + 8 * (T % NS) + 4 * sub
def fw3(P, nt): return 88 + 16 * P + 4 * nt
def acc3(T, nt): return (128 if T < 16 else 144) + 4 * nt
class VM:
    def __init__(self): self.ops = []
    def add(self, tag): self.ops.append(tag)
    def need(self, tags):
        assert all(t in self.ops for t in tags), tags
        return min(63, len(self.ops) - 1 - max(i for i, t in enumerate(self.ops) if t in tags))
def aload(vm, T, sub):
    kp = 2 * T + sub - 32
    r = fa3(T, sub)
    vm.add(("A", T, sub))
    if kp >= 0 and kp % 7 == 3:
        vm.add(("A", T, sub))
        return [f"buffer_load_dwordx2 {vr(r,2)}, v225, {WS}, s24 offen sc1",
                f"buffer_load_dwordx2 {vr(r+2,2)}, v225, {WS}, s24 offen offset:1024 sc1", "s_add_u32 s24, s24, 8192"]
    return [f"buffer_load_dwordx4 {vr(r,4)}, v224, {WS}, s24 offen sc1", "s_add_u32 s24, s24, 8192"]
def wdma(vm, T):
    vm.add(("W", T))
    return [f"s_add_u32 m0, s27, {(T % NS) * 8192}", "@",
            f"buffer_load_dwordx4 v226, {sr(SWO if T < 16 else SWOUT, 4)}, s25 offen lds",
            "s_mov_b32 s25, s40" if T == 15 else f"s_add_u32 s25, s25, {64*2048}"]
def loads3(vm, T, LA):
    out = [wdma(vm, T)]
    if T < LA: out += [aload(vm, T, 0), aload(vm, T, 1)]
    return out
def addr3(a):
    a.e("v_and_b32 v12, 63, v0")
    a.e("s_lshl_b32 s27, s20, 10")
    a.e("v_add_u32 v224, s27, v11")
    a.e("s_lshr_b32 s38, s20, 1"); a.e("s_lshl_b32 s39, s38, 11"); a.e("s_and_b32 s30, s20, 1"); a.e("s_lshl_b32 s31, s30, 3")
    a.e("s_add_u32 s39, s39, s31"); a.e("v_add_u32 v225, s39, v11")
    a.e("v_lshrrev_b32 v13, 3, v12"); a.e("v_bfe_u32 v14, v12, 4, 2"); a.e("v_lshlrev_b32 v14, 1, v14")
    a.e("v_and_b32 v15, 7, v12"); a.e("v_xor_b32 v14, v14, v15"); a.e("v_lshlrev_b32 v14, 4, v14")
    a.e("v_lshl_add_u32 v226, v13, 11, v14")
    a.e("s_lshl_b32 s39, s20, 14"); a.e("v_add_u32 v226, s39, v226")
    a.e("v_bfe_u32 v13, v12, 2, 3"); a.e("v_lshrrev_b32 v14, 5, v12"); a.e("v_lshlrev_b32 v14, 10, v14")
    a.e("v_lshl_add_u32 v14, v13, 7, v14"); a.e("v_lshrrev_b32 v13, 1, v13"); a.e("v_lshl_add_u32 v14, v13, 5, v14")
    a.e("v_and_b32 v15, 3, v12")
    a.e("v_lshl_add_u32 v227, v15, 3, v14")
    a.e("v_xor_b32 v228, 32, v227"); a.e("v_xor_b32 v229, 64, v227"); a.e("v_xor_b32 v230, 96, v227")
    a.e("v_bfe_u32 v13, v12, 2, 2"); a.e("v_lshl_add_u32 v13, v13, 3, v15"); a.e("v_lshlrev_b32 v231, 11, v13")
    a.e("v_bfe_u32 v13, v12, 4, 1"); a.e("v_lshl_add_u32 v231, v13, 5, v231")
    a.e("v_lshrrev_b32 v13, 5, v12"); a.e("v_lshl_add_u32 v231, v13, 4, v231")
    a.e("s_lshl_b32 s26, s50, 7"); a.e("s_lshl_b32 s38, s38, 5"); a.e("s_add_u32 s26, s26, s38")
    a.e("s_lshl_b32 s30, s30, 2"); a.e("s_add_u32 s26, s26, s30"); a.e("s_lshl_b32 s26, s26, 11")
    a.e("s_lshl_b32 s40, s51, 7"); a.e("s_add_u32 s26, s26, s40")
    a.e(f"s_mul_i32 s24, s50, {88*8192}"); a.e(f"s_add_u32 s24, s24, {AU}")
    a.e("s_mov_b32 s25, s40")
    a.e("s_lshl_b32 s41, s50, 4"); a.e("s_add_u32 s41, s41, 8")

def stage2(a, cfg, R, vm):
    NT = ntiles(R); D = len(dmas2(R, 0)); nw = 0 if R == 0 else 1
    LA = cfg.get("k3_la", 7); PRE = cfg.get("pre3", 3)
    a.label(f"L_r{R}")
    a.e("s_and_b32 s23, s20, 3")
    if R < 2:
        a.e("s_cmp_ge_u32 s20, 3"); a.e("s_cselect_b32 s36, 1, 0")
        a.e("s_mul_i32 s37, s36, 3"); a.e("s_sub_u32 s37, s20, s37")
        a.e("s_lshl_b32 s38, s22, 1"); a.e("s_add_u32 s38, s38, s36")
        a.e("s_mul_i32 s39, s21, 24"); a.e("s_lshl_b32 s37, s37, 3"); a.e("s_add_u32 s39, s39, s37")
        a.e("v_lshrrev_b32 v17, 3, v1"); a.e("v_add_u32 v17, s39, v17")
        a.e("v_and_b32 v18, 7, v1"); a.e("v_mul_u32_u24 v18, 24576, v18"); a.e("v_lshl_add_u32 v18, v17, 4, v18")
        a.e(f"s_mul_i32 s39, s38, {32*6144}"); a.e(f"s_add_u32 s39, s39, {KVP}")
    if R:
        a.e(f"s_mul_i32 s24, s22, {64*7168}"); a.e(f"s_add_u32 s24, s24, {Z2N}")
        a.e("s_and_b32 s27, s20, 1"); a.e(f"s_mul_i32 s27, s27, {4096 if R == 1 else 3072}")
        if R == 2: a.e("s_add_u32 s27, s27, 8192")
        a.e("s_add_u32 s24, s24, s27"); a.e("s_add_u32 s27, s27, 16384")
    a.e("s_waitcnt lgkmcnt(0)")
    a.e("s_barrier")
    st(a, cfg, 4)
    if R < 2:
        for u in range(4):
            a.e(f"buffer_load_dwordx4 {vr(72+4*u,4)}, v18, {WS}, s39 offen sc1")
            if u < 3: a.e("s_add_u32 s39, s39, 6144")
    if R:
        for s in range(4):
            for grp in dmas2(R, s): emit(a, grp)
        a.e(f"s_waitcnt vmcnt({3*D})")
    a.e("s_barrier")
    for r in reads2(R, 0, 0, 0): a.e(r)
    a.e("s_waitcnt lgkmcnt(0)")
    interleave(a, mfmas2(R, 0, True), [(k - 1, [r]) for k, r in enumerate(reads2(R, 1, 0, 1))])
    a.e("s_mov_b32 s29, 7")
    a.label(f"L_loop2_{R}")
    for t in range(4): body2(a, cfg, R, t, dmas2(R, t), 2*D)
    a.e("s_sub_u32 s29, s29, 1")
    sides = {0: [6], 1: [6, 4, 3, 2], 2: [4, 3]}[R]
    for s in sides:
        a.e(f"s_cmp_eq_u32 s29, {s}"); a.e(f"s_cbranch_scc1 L_side{R}_{s}")
    a.e("s_cmp_lg_u32 s29, 0")
    a.e(f"s_cbranch_scc1 L_loop2_{R}")
    addr3(a)
    E = 2
    if R == 0: poll_issue(a, "s41", 20); E = 3
    a.e("s_lshl_b32 s30, s21, 8"); a.e("s_lshl_b32 s31, s23, 6"); a.e("s_add_u32 s30, s30, s31")
    a.e(f"buffer_load_ushort v88, v120, {sr(SB,4)}, s30 offen")
    a.e(f"buffer_load_ushort v90, v120, {sr(SB,4)}, s30 offen offset:8")
    a.e(f"s_lshl_b32 s30, s23, 10"); a.e(f"s_add_u32 s30, s30, {ZS + nw*16384}"); a.e("v_add_u32 v16, s30, v11")
    body2(a, cfg, R, 0, [], 2*D + E)
    body2(a, cfg, R, 1, [], D + E)
    vm.ops = []
    L3 = []
    for T in range(PRE): L3 += loads3(vm, T, LA)
    n2 = (len(L3) * 2 + 2) // 3
    body2(a, cfg, R, 2, L3[:n2], 2, prebar=(lambda: poll_spin(a, "s41", 20, pre=True)) if R == 0 else None, dpos=(0, 2))
    body2(a, cfg, R, 3, L3[n2:], None, last=True, dpos=(0, 2))
    st(a, cfg, 5)
    for n in range(NT): a.e(f"ds_read_b128 {vr(72+4*n,4)}, v16 offset:{n*4096}")
    a.e("s_mov_b32 s33, 0xffff0000")
    a.e(f"s_mul_i32 s30, s21, {88*8192}"); a.e("s_lshl_b32 s31, s23, 11"); a.e("s_add_u32 s30, s30, s31")
    a.e(f"s_add_u32 s30, s30, {AU + 32*8192}")
    a.e("s_lshr_b32 s32, s22, 1"); a.e(f"s_mul_i32 s32, s32, {7*8192}"); a.e("s_add_u32 s30, s30, s32")
    a.e("s_and_b32 s34, s22, 1")
    a.e("s_lshl_b32 s35, s34, 15"); a.e("s_add_u32 s35, s35, s30")
    if nw == 0: a.e("s_add_u32 s39, s35, 8192")
    else:
        a.e("s_add_u32 s35, s35, 16384")
        a.e("s_lshl_b32 s39, s34, 10"); a.e("s_add_u32 s39, s39, s30"); a.e(f"s_add_u32 s39, s39, {3*8192}")
    a.e(f"s_waitcnt vmcnt({len(vm.ops)})")
    a.e("v_lshlrev_b32 v88, 16, v88"); a.e("v_lshlrev_b32 v90, 16, v90")
    a.e("v_mov_b32 v89, v88"); a.e("v_mov_b32 v91, v90")
    a.e("s_waitcnt lgkmcnt(0)")
    for n in range(NT):
        for m in range(2):
            z = 72 + 4*n + 2*m
            t = 92 + 4 * m
            a.e(f"v_lshlrev_b32 v{t}, 16, v{z}"); a.e(f"v_and_b32 v{t+1}, s33, v{z}")
            a.e(f"v_lshlrev_b32 v{t+2}, 16, v{z+1}"); a.e(f"v_and_b32 v{t+3}, s33, v{z+1}")
            r = acc2(n, m)
            for h in range(2): a.e(f"v_pk_add_f32 {vr(r+2*h,2)}, {vr(r+2*h,2)}, {vr(88+2*m,2)}")
            for h in range(2): a.e(f"v_pk_mul_f32 {vr(r+2*h,2)}, {vr(r+2*h,2)}, {vr(t+2*h,2)}")
        if n & 1:
            for m in range(2):
                d = 48 + 8 * (n >> 1) + 4 * m
                pack(a, d, acc2(n-1, m), acc2(n, m))
                a.e(f"buffer_store_dwordx4 {vr(d,4)}, v11, {WS}, s{35 if n == 1 else 39} offen offset:{m*1024} sc1")
        elif n == 2 and NT == 3:
            pack(a, 56, acc2(n, 0), acc2(n, 1))
            a.e(f"buffer_store_dwordx4 v[56:59], v11, {WS}, s39 offen sc1")
    for k in range(3): vm.add("U")
    a.e("s_branch L_stage3")
    for s in sides:
        a.label(f"L_side{R}_{s}")
        if s == 6:
            a.e("v_lshrrev_b32 v18, 7, v17"); a.e("v_lshlrev_b32 v18, 10, v18"); a.e("v_and_b32 v19, 63, v17")
            a.e("v_lshl_add_u32 v18, v19, 4, v18"); a.e("v_bfe_u32 v19, v17, 6, 1"); a.e("v_lshl_add_u32 v18, v19, 3, v18")
            a.e("s_mul_i32 s37, s38, 3072"); a.e(f"s_add_u32 s37, s37, {KVR}")
            for h in range(2):
                a.e(f"v_pk_add_f32 {vr(72+2*h,2)}, {vr(72+2*h,2)}, {vr(76+2*h,2)}")
                a.e(f"v_pk_add_f32 {vr(80+2*h,2)}, {vr(80+2*h,2)}, {vr(84+2*h,2)}")
            for h in range(2): a.e(f"v_pk_add_f32 {vr(72+2*h,2)}, {vr(72+2*h,2)}, {vr(80+2*h,2)}")
            for ctl in ("row_half_mirror", "quad_perm:[1,0,3,2]", "quad_perm:[2,3,0,1]"):
                a.e("s_nop 1")
                for k in range(4): a.e(f"v_add_f32_dpp v{72+k}, v{72+k}, v{72+k} {ctl} row_mask:0xf bank_mask:0xf")
            a.e("v_cvt_pk_bf16_f32 v72, v72, v73"); a.e("v_cvt_pk_bf16_f32 v73, v74, v75")
            a.e("s_mov_b32 s36, 0x01010101"); a.e("s_mov_b32 exec_lo, s36"); a.e("s_mov_b32 exec_hi, s36")
            a.e(f"buffer_store_dwordx2 v[72:73], v18, {WS}, s37 offen sc1")
            a.e("s_mov_b64 exec, -1")
        kvr = [f"buffer_load_dwordx4 {vr(100+4*et,4)}, v11, {WS}, s37 offen offset:{et*1024} sc1" for et in range(3)]
        if s == 4:
            a.e("s_lshl_b32 s38, s22, 1")
            if R == 2: a.e("s_add_u32 s38, s38, 1")
            a.e("s_mul_i32 s37, s38, 3072"); a.e(f"s_add_u32 s37, s37, {KVR}")
            for l in kvr: a.e(l)
        if s == 3:
            L, X, C = lbl("kv"), lbl("kvx"), lbl("kvc")
            a.e("s_mov_b32 s36, 0"); a.e(f"s_branch {C}")
            a.label(L)
            for l in kvr: a.e(l)
            a.e("s_waitcnt vmcnt(0)")
            a.label(C)
            a.e("v_max3_u32 v19, v100, v101, v102")
            for k in range(103, 111, 2): a.e(f"v_max3_u32 v19, v19, v{k}, v{k+1}")
            a.e("v_max_u32 v19, v19, v111")
            a.e("v_cmp_eq_u32 vcc, -1, v19")
            a.e("s_add_u32 s36, s36, 1")
            a.e(f"s_cmp_ge_u32 s36, {BOUND}"); a.e(f"s_cbranch_scc1 {X}")
            a.e("s_cmp_lg_u64 vcc, 0"); a.e(f"s_cbranch_scc1 {L}")
            a.label(X)
            for m in range(4):
                for et in range(3):
                    a.e(f"v_mfma_f32_16x16x32_bf16 {vr(160+12*m+4*et,4)}, {vr(100+4*et,4)}, {vr(240+4*m,4)}, 0")
            a.e(f"s_mul_i32 s30, s21, {88*8192}"); a.e("s_lshl_b32 s31, s38, 13"); a.e("s_add_u32 s30, s30, s31")
            a.e("s_and_b32 s31, s20, 1"); a.e("s_lshl_b32 s31, s31, 12"); a.e("s_add_u32 s30, s30, s31")
            a.e(f"s_add_u32 s30, s30, {AU}")
            a.e("s_nop 7")
            for m in range(4): a.e(f"v_add_f32 v{168+12*m}, {f2u(1e-6):#x}, v{168+12*m}")
            for m in range(4): a.e(f"v_rcp_f32 v{168+12*m}, v{168+12*m}")
            for m in range(4): a.e(f"v_mov_b32 v{169+12*m}, v{168+12*m}")
            for m in range(4):
                b = 160 + 12 * m
                for h in range(4): a.e(f"v_pk_mul_f32 {vr(b+2*h,2)}, {vr(b+2*h,2)}, {vr(b+8,2)}")
                pack(a, 208 + 4*m, b, b + 4)
                a.e(f"buffer_store_dwordx4 {vr(208+4*m,4)}, v11, {WS}, s30 offen offset:{m*1024} sc1")
        if s == 2:
            a.e("s_cmp_lg_u32 s20, 4"); a.e(f"s_cbranch_scc1 L_loop2_{R}")
            a.e("s_lshl_b32 s30, s21, 4"); a.e("s_add_u32 s30, s30, 8")
            atomic_inc(a, "s30", 20)
        a.e(f"s_branch L_loop2_{R}")

def stage3(a, cfg, vm):
    LA = cfg.get("k3_la", 7); PRE = cfg.get("pre3", 3); MID = cfg.get("mid3", 2)
    cT = 16 - LA; pT = cT - cfg.get("pollgap", 2)
    def reads(P, T, sub):
        return [f"ds_read_b64_tr_b16 {vr(fw3(P,nt)+2*h,2)}, v{227+nt} offset:{(T % NS)*8192 + sub*4096 + h*2048}" for nt in range(4) for h in range(2)]
    def mfmas(P, T, sub):
        first = sub == 0 and T in (0, 16)
        return [f"v_mfma_f32_16x16x32_bf16 {vr(acc3(T,nt),4)}, {vr(fw3(P,nt),4)}, {vr(fa3(T,sub),4)}, {'0' if first else vr(acc3(T,nt),4)}" for nt in range(4)]
    a.label("L_stage3")
    for T in range(PRE, PRE + MID):
        for g in loads3(vm, T, LA): emit(a, g)
    a.e(f"s_waitcnt vmcnt({vm.need(['U'])})")
    a.e("s_barrier")
    st(a, cfg, 6)
    L = lbl("nou")
    a.e("s_cmp_lg_u32 s20, 0"); a.e(f"s_cbranch_scc1 {L}")
    a.e("s_lshl_b32 s30, s21, 4"); a.e("s_add_u32 s30, s30, 12")
    atomic_inc(a, "s30", 20)
    a.label(L)
    a.e("s_add_u32 s41, s41, 4")
    for r in reads(0, 0, 0): a.e(r)
    for T in range(PRE + MID, NS):
        for g in loads3(vm, T, LA): emit(a, g)
    a.e("s_waitcnt lgkmcnt(0)")
    interleave(a, mfmas(0, 0, 0), [(k // 2 - 1, [r]) for k, r in enumerate(reads(1, 0, 1))])
    for T in range(NT3):
        if T == NT3 - 1:
            a.e("s_waitcnt lgkmcnt(0)")
            for m in mfmas(1, T, 1): a.e(m)
            break
        if T == cT:
            L = lbl("noc")
            a.e("s_cmp_lg_u32 s20, 0"); a.e(f"s_cbranch_scc1 {L}")
            a.e(f"s_waitcnt vmcnt({len(vm.ops) - pidx})")
            poll_spin(a, "s41", 20, pre=True)
            a.label(L)
        a.e(f"s_waitcnt vmcnt({vm.need([('W',T+1),('A',T+1,0),('A',T+1,1)])}) lgkmcnt(0)")
        a.e("s_barrier")
        if T == pT:
            L = lbl("nop")
            a.e("s_cmp_lg_u32 s20, 0"); a.e(f"s_cbranch_scc1 {L}")
            poll_issue(a, "s41", 20)
            a.label(L)
            pidx = len(vm.ops)
        fill = [(k // 2 - 1, [r]) for k, r in enumerate(reads(0, T + 1, 0))]
        if T + NS < NT3:
            g = wdma(vm, T + NS); i = g.index("@")
            fill.append((0, g[:i])); fill.append((1, g[i+1:]))
        if T + LA < NT3: fill.append((3, aload(vm, T + LA, 0)))
        interleave(a, mfmas(1, T, 1), fill)
        a.e("s_waitcnt lgkmcnt(0)")
        fill = [(k // 2 - 1, [r]) for k, r in enumerate(reads(1, T + 1, 1))]
        if T + LA < NT3: fill.append((2, aload(vm, T + LA, 1)))
        if T == NT3 - LA:
            for cp in range(2):
                vm.add(("X", cp))
                fill.append((2, [f"buffer_load_dwordx4 {vr(16+4*cp,4)}, v231, {sr(SX,4)}, s26 offen offset:{cp*64}"]))
        interleave(a, mfmas(0, T + 1, 0), fill)
    st(a, cfg, 7)
    a.e(f"s_mov_b32 s30, {f2u(-LOG2E):#x}"); a.e(f"s_mov_b32 s31, {f2u(-LOG2E):#x}")
    a.e(f"s_mov_b32 s32, 1.0"); a.e(f"s_mov_b32 s33, 1.0")
    a.e("s_mov_b32 s34, 0xffff0000")
    a.e("s_waitcnt vmcnt(0)")
    for cp in range(2):
        a.e(f"v_permlane16_swap_b32 v{16+4*cp}, v{18+4*cp}"); a.e(f"v_permlane16_swap_b32 v{17+4*cp}, v{19+4*cp}")
    a.e("s_nop 4")
    H, S, T_, X = 144, 128, 24, 40
    for k in range(8): a.e(f"v_pk_mul_f32 {vr(T_+2*k,2)}, {vr(H+2*k,2)}, s[30:31]")
    for k in range(16): a.e(f"v_exp_f32 v{T_+k}, v{T_+k}")
    for k in range(8):
        a.e(f"v_lshlrev_b32 v{X+2*k}, 16, v{16+k}"); a.e(f"v_and_b32 v{X+2*k+1}, s34, v{16+k}")
    for k in range(8): a.e(f"v_pk_add_f32 {vr(T_+2*k,2)}, {vr(T_+2*k,2)}, s[32:33]")
    for k in range(16): a.e(f"v_rcp_f32 v{T_+k}, v{T_+k}")
    for k in range(8): a.e(f"v_pk_mul_f32 {vr(H+2*k,2)}, {vr(H+2*k,2)}, {vr(S+2*k,2)}")
    for k in range(8): a.e(f"v_pk_fma_f32 {vr(X+2*k,2)}, {vr(H+2*k,2)}, {vr(T_+2*k,2)}, {vr(X+2*k,2)}")
    for cp in range(2): pack(a, 16 + 4*cp, X + 8*cp, X + 8*cp + 4)
    a.e("s_nop 1")
    for cp in range(2):
        a.e(f"v_permlane16_swap_b32 v{16+4*cp}, v{18+4*cp}"); a.e(f"v_permlane16_swap_b32 v{17+4*cp}, v{19+4*cp}")
    a.e("s_nop 1")
    for cp in range(2):
        a.e(f"buffer_store_dwordx4 {vr(16+4*cp,4)}, v231, {sr(SOUT,4)}, s26 offen offset:{cp*64}")
    if cfg.get("tim"):
        a.e("s_memrealtime s[98:99]")
        a.e("s_memtime s[30:31]")
        a.e("s_waitcnt lgkmcnt(0)")
        a.e("s_lshl_b32 s100, s2, 3"); a.e("s_add_u32 s100, s100, s20"); a.e("s_lshl_b32 s100, s100, 6"); a.e(f"s_add_u32 s100, s100, {TIM}")
        a.e("v_mov_b32 v0, 0")
        for k, s in enumerate([80 + 2*k for k in range(8)] + [30, 96, 98]):
            a.e(f"v_mov_b32 v1, s{s}")
            a.e(f"buffer_store_dword v1, v0, {WS}, s100 offen offset:{4*k}")
            a.e("s_nop 1")

def srd_at(a, d, b, soff, nbytes):
    a.e(f"s_add_u32 s{d}, s{b}, {soff}"); a.e(f"s_addc_u32 s{d+1}, s{b+1}, 0"); a.e(f"s_and_b32 s{d+1}, s{d+1}, 0xffff")
    a.e(f"s_mov_b32 s{d+2}, {nbytes}"); a.e(f"s_mov_b32 s{d+3}, 0x00020000")

def fused(a, cfg):
    name = KN + "_kernel"
    kernel_begin(a, name)
    a.e("s_cmp_ge_u32 s2, 256")
    a.e("s_cbranch_scc1 L_end")
    if cfg.get("tim"): a.e("s_memrealtime s[96:97]")
    st(a, cfg, 0)
    a.e("s_load_dwordx16 s[24:39], s[0:1], 0")
    a.e("s_load_dwordx4 s[40:43], s[0:1], 64")
    a.e("s_load_dwordx2 s[44:45], s[0:1], 80")
    if cfg.get("cpf", 1):
        a.e(f"s_getpc_b64 s[{STCH}:{STCH+1}]")
        a.label("L_pc")
        a.e(f"s_and_b32 s{STCH+1}, s{STCH+1}, 0xffff")
        a.e(f"s_mov_b32 s{STCH+2}, L_end-L_pc"); a.e(f"s_mov_b32 s{STCH+3}, 0x00020000")
        a.e("v_lshlrev_b32 v127, 7, v0")
        a.e(f"buffer_load_dword v127, v127, {sr(STCH,4)}, 0 offen")
    a.e("v_lshrrev_b32 v1, 6, v0")
    a.e("v_and_b32 v12, 63, v0")
    a.e("v_readfirstlane_b32 s20, v1")
    a.e("v_and_b32 v13, 7, v12"); a.e("v_lshrrev_b32 v14, 3, v12")
    a.e("v_bfe_u32 v15, v12, 2, 1"); a.e("v_and_b32 v16, 3, v12"); a.e("v_lshl_add_u32 v15, v15, 3, v16")
    a.e("v_lshlrev_b32 v64, 11, v15"); a.e("v_lshl_add_u32 v64, v14, 4, v64")
    a.e("v_and_b32 v15, 3, v14"); a.e("v_lshlrev_b32 v65, 4, v13"); a.e("v_lshl_add_u32 v65, v15, 8, v65")
    a.e("v_lshrrev_b32 v15, 2, v14"); a.e("v_lshl_add_u32 v65, v15, 13, v65")
    a.e("v_lshlrev_b32 v63, 6, v13"); a.e(f"v_add_u32 v63, {SS}, v63"); a.e("v_lshl_add_u32 v62, v1, 3, v63")
    a.e("s_and_b32 s21, s2, 1"); a.e("s_lshl_b32 s21, s21, 3"); a.e("s_bfe_u32 s46, s2, 0x30003"); a.e("s_add_u32 s21, s21, s46")
    a.e("s_bfe_u32 s22, s2, 0x20001"); a.e("s_lshl_b32 s22, s22, 2"); a.e("s_lshr_b32 s46, s2, 6"); a.e("s_add_u32 s22, s22, s46")
    a.e("s_and_b32 s50, s2, 3"); a.e("s_lshl_b32 s50, s50, 2"); a.e("s_bfe_u32 s46, s2, 0x20003"); a.e("s_add_u32 s50, s50, s46")
    a.e("s_bfe_u32 s51, s2, 0x10002"); a.e("s_lshl_b32 s51, s51, 3"); a.e("s_lshr_b32 s46, s2, 5"); a.e("s_add_u32 s51, s51, s46")
    a.e("s_and_b32 s23, s20, 1")
    a.e("v_lshlrev_b32 v11, 4, v12")
    a.e("s_lshl_b32 s46, s20, 11"); a.e("v_add_u32 v2, s46, v11")
    a.e("v_lshrrev_b32 v13, 2, v12"); a.e("s_lshl_b32 s46, s23, 4"); a.e("v_add_u32 v13, s46, v13")
    a.e("v_bfe_u32 v14, v12, 5, 1"); a.e("v_lshlrev_b32 v14, 1, v14"); a.e("v_and_b32 v15, 3, v12"); a.e("v_xor_b32 v14, v14, v15")
    a.e("v_lshrrev_b32 v16, 1, v14")
    a.e("v_lshlrev_b32 v14, 4, v14")
    a.e("v_mul_u32_u24 v3, 6144, v13"); a.e("v_add_u32 v3, v3, v14")
    a.e("v_mul_u32_u24 v4, 7168, v13"); a.e("v_add_u32 v4, v4, v14")
    a.e("s_lshl_b32 s46, s23, 12"); a.e("v_add_u32 v5, s46, v11"); a.e(f"v_add_u32 v6, {2*S1}, v5")
    a.e("v_lshrrev_b32 v13, 5, v12"); a.e("v_mul_u32_u24 v7, 13312, v13")
    a.e("v_bfe_u32 v13, v12, 4, 1"); a.e("v_mul_u32_u24 v14, 544, v13"); a.e("v_add_u32 v7, v7, v14")
    a.e("v_bfe_u32 v14, v12, 2, 2"); a.e("v_lshl_add_u32 v7, v14, 6, v7"); a.e("v_lshl_add_u32 v7, v15, 3, v7")
    a.e("v_add_u32 v7, 8192, v7"); a.e("v_xor_b32 v8, 32, v7")
    a.e(f"v_add_u32 v9, {2*S1}, v7"); a.e(f"v_add_u32 v10, {2*S1}, v8")
    a.e("s_and_b32 s46, s22, 1"); a.e("s_cmp_eq_u32 s46, 0"); a.e("s_cselect_b32 s47, 192, 0"); a.e("s_lshl_b32 s46, s46, 5")
    a.e("v_mul_u32_u24 v15, 3552, v16"); a.e("v_add_u32 v15, v15, v4"); a.e("v_add_u32 v15, s47, v15")
    a.e("v_add_u32 v4, s46, v4")
    a.e("s_waitcnt lgkmcnt(0)")
    st(a, cfg, "ka")
    srd(a, SX, 24, 4 * MB); srd(a, SWS, 44, WS_SIZE); srd(a, SQKV, 26, 1024 * 6144); srd(a, SWIN, 32, 1024 * 7168)
    srd(a, SDBG, 42, 256); srd(a, SWSP, 34, 2048 * 4096); srd(a, SB, 36, 4096); srd(a, SWO, 28, 1024 * 2048)
    srd(a, SWOUT, 38, 1792 * 2048); srd(a, SOUT, 40, 4 * MB)
    a.e("s_lshr_b32 s46, s20, 1")
    for G in (1, 2, 3):
        a.e(f"s_cmp_eq_u32 s46, {G}"); a.e(f"s_cbranch_scc1 L_g{G}")
    vm = VM()
    for G in range(4):
        a.label(f"L_g{G}")
        D = len(dmas1(G, 0))
        a.e("s_lshl_b32 s24, s21, 18")
        a.e("s_lshl_b32 s25, s22, 7")
        if G & 1: a.e(f"s_add_u32 s25, s25, {2048 if G == 1 else 4096}")
        a.e("s_mul_i32 s26, s22, 224")
        a.e("s_lshl_b32 s27, s20, 11")
        a.e("s_mul_i32 s28, s23, 13312")
        TP = cfg.get("pf", 1)
        ln(a, cfg, G)
        if G < 2:
            addr2(a)
            if G == 0:
                L = lbl("nox")
                a.e("s_cmp_lg_u32 s20, 0"); a.e(f"s_cbranch_scc1 {L}")
                poll_spin(a, "s30", 66)
                a.label(L)
            a.e("s_barrier")
            st(a, cfg, 1)
            n2 = cfg.get("ln_n2", 4)
            for s in range(4):
                for grp in dmas1(G, s, "A" if s < n2 else "AB"): emit(a, grp)
            c = [2 if s < n2 else 4 for s in range(4)]
            w0 = [sum(c[1:]), sum(c[2:]), c[3] + 4, 8, 8]
        else:
            nt = touch(a, cfg, G) if cfg.get('tpos', 2) == 1 else 0
            addr2(a)
            a.e("s_barrier")
            st(a, cfg, 1)
            for s in range(cfg.get("ln_n2", 4), 4):
                for grp in dmas1(G, s): emit(a, grp)
            if cfg.get('tpos', 2) == 2: nt = touch(a, cfg, G)
            w0 = [3*D + nt, 2*D + nt, 2*D + nt, 2*D + nt, 2*D]
        a.e(f"s_waitcnt vmcnt({w0[0]})")
        a.e("s_barrier")
        st(a, cfg, "d0")
        for r in reads1(G, 0, 0): a.e(r)
        for t in range(4): step1(a, cfg, G, t, dmas1(G, t), w0[t + 1], first=(t == 0))
        tch = G >= 2 and TP
        a.e("s_mov_b32 s29, 6")
        a.label(f"L_loop1_{G}")
        for t in range(4):
            step1(a, cfg, G, t, dmas1(G, t), 2*D + (1 if tch and t else 0),
                  extra=[f"buffer_load_dword v125, v124, {sr(STCH,4)}, 0 offen", "v_add_u32 v124, 8192, v124"] if tch and t == 0 else None)
        a.e("s_sub_u32 s29, s29, 1"); a.e("s_cmp_lg_u32 s29, 0"); a.e(f"s_cbranch_scc1 L_loop1_{G}")
        for t in range(3): step1(a, cfg, G, t, [], [2*D, D, 0][t])
        DM = []
        if G < 2:
            a.e("s_lshl_b32 s24, s21, 19"); a.e("s_lshl_b32 s36, s20, 17"); a.e("s_add_u32 s24, s24, s36"); a.e("s_lshl_b32 s27, s20, 12")
            for s in range(4): DM += dmas2(0, s)
        step1(a, cfg, G, 3, DM, None, last=True, dpos=(0, 1.6) if False else (0, 2))
        st(a, cfg, 2)
        for k, c in ((42, GC1), (44, 1.0), (46, LOG2E), (48, 1e-6)):
            a.e(f"s_mov_b32 s{k}, {f2u(c):#x}"); a.e(f"s_mov_b32 s{k+1}, {f2u(c):#x}")
        a.e(f"v_mov_b32 v12, {f2u(GC0):#x}"); a.e(f"v_mov_b32 v13, {f2u(GC0):#x}")
        epi_addr(a, G)
        epi_z2a(a, cfg, G)
        epi_attn(a, cfg, G)
        epi_z2b(a, cfg, G)
        epi_z1(a, cfg, G, 0)
        a.e("s_waitcnt vmcnt(0)")
        a.e("s_barrier")
        if G == 0:
            L = lbl("noz")
            a.e("s_cmp_lg_u32 s20, 0"); a.e(f"s_cbranch_scc1 {L}")
            a.e("s_lshl_b32 s30, s22, 4"); a.e("s_add_u32 s30, s30, 4")
            atomic_inc(a, "s30", 20)
            poll_spin(a, "s30", 20)
            a.label(L)
        epi_z1(a, cfg, G, 1)
        if G == 0: a.e("s_branch L_r0")
        else: stage2(a, cfg, G - 1, vm)
    stage3(a, cfg, vm)
    a.label("L_end")
    a.e("s_endpgm")
    return (name, "(256,1,1)", "(512,1,1)", LDS, dict(vgpr=256, sgpr=102, accum=256))

def gen(cfg):
    global BOUND, SLEEP
    BOUND = cfg.get('bound', 6000); SLEEP = cfg.get('sleep', 0)
    Lbl.n = 0
    body = Asm()
    name, g, b, lds, d = fused(body, cfg)
    a = Asm()
    a(f"; @launch grid={g} block={b} lds={lds}")
    a('.amdgcn_target "amdgcn-amd-amdhsa--gfx950"')
    a.lines += [l.strip() if l.startswith("    ") else l for l in body.lines]
    kernel_desc(a, name, **d)
    return a.text()
if __name__ == "__main__":
    import sys, json
    cfg = json.loads(sys.argv[2]) if len(sys.argv) > 2 else {}
    if "k1_d" in cfg: cfg["k1_d"] = {int(k): v for k, v in cfg["k1_d"].items()}
    open(sys.argv[1], "w").write(gen(cfg))
```

```python
from gen_common import *
from gen_k1 import gelu8, phi8, pack
import gen_k1
S1 = 34 * 1024
S2 = 30 * 1024
ZS = 4 * S2
SS = ZS + 28 * 1024
CNT = SS + 5 * 1024
LDS = 160 * 1024
BOUND = 6000
SWS, SDBG, SQKV, SWIN, SX, SWSP, SB, SWO, SWOUT, SOUT, STCH = 16, 4, 8, 12, 52, 56, 60, 64, 68, 72, 76
WS, DBG = sr(SWS, 4), sr(SDBG, 4)
ACC = 128
def st(a, cfg, name):
    names = cfg.get("stamps", [0, 1, 2, 3, 4, 5, 6, 7])
    if cfg.get("tim") and name in names:
        idx = names.index(name)
        a.e(f"{'s_memrealtime' if cfg.get('rt') else 's_memtime'} s[{80+2*idx}:{81+2*idx}]")
def emit(a, grp):
    for ins in grp: a.e("s_nop 0" if ins == "@" else ins)
class Lbl:
    n = 0
def lbl(p):
    Lbl.n += 1; return f"L_{p}_{Lbl.n}"
def atomic_inc(a, soff, t=12):
    a.e(f"v_mov_b32 v{t}, 1"); a.e(f"v_mov_b32 v{t+1}, 0")
    a.e("s_mov_b64 exec, 1")
    a.e(f"buffer_atomic_add v{t}, v{t+1}, {DBG}, {soff} offen sc1")
    a.e("s_mov_b64 exec, -1")
def poll_issue(a, soff, t):
    a.e(f"v_mov_b32 v{t+1}, 0")
    a.e("s_mov_b64 exec, 1")
    a.e(f"buffer_load_dword v{t}, v{t+1}, {DBG}, {soff} offen sc1")
    a.e("s_mov_b64 exec, -1")
def poll_spin(a, soff, t, pre=False):
    L, X, C = lbl("poll"), lbl("pollx"), lbl("pollc")
    a.e("s_mov_b32 s36, 0")
    if pre: a.e(f"s_branch {C}")
    a.label(L)
    if SLEEP: a.e(f"s_sleep {SLEEP}")
    poll_issue(a, soff, t)
    a.e("s_waitcnt vmcnt(0)")
    a.label(C)
    a.e(f"v_readfirstlane_b32 s37, v{t}")
    a.e("s_add_u32 s36, s36, 1")
    a.e("s_cmp_ge_u32 s37, 16")
    a.e(f"s_cbranch_scc1 {X}")
    a.e(f"s_cmp_lt_u32 s36, {BOUND}")
    a.e(f"s_cbranch_scc1 {L}")
    a.label(X)

def acc(n, m): return ACC + (n * 4 + m) * 4
def fa(P, m): return 16 + 16 * P + 4 * m
def fb(P, n): return 48 + 28 * P + 4 * n
def tiles_of(G):
    z1 = lambda p: ("z1", 6 + p // 2 if p < 6 else 9, p & 1 if p < 6 else 0, p)
    z2 = lambda p: ("z2", 10 + p // 2 if p < 6 else 9, p & 1 if p < 6 else 1, p)
    if G == 0: return [("k", 2, 0, 0), ("k", 2, 1, 1), ("v", 4, 0, 0), ("v", 4, 1, 1), z2(0), z2(1), z1(0)]
    if G == 1: return [("k", 3, 0, 0), ("k", 3, 1, 1), ("v", 5, 0, 0), ("v", 5, 1, 1), z2(2), z1(1), z1(2)]
    if G == 2: return [("q", 0, 0, 0), ("q", 0, 1, 1), z2(3), z2(4), z1(3), z1(4)]
    if G == 3: return [("q", 1, 0, 0), ("q", 1, 1, 1), z2(5), z2(6), z1(5), z1(6)]
def dmas1(G, slot, which="AB"):
    out = []
    base = slot * S1
    def B(c, imm, v, srd_, so):
        return [f"s_add_u32 m0, s28, {base + 8192 + c*1024 - imm}", "@",
                f"buffer_load_dwordx4 v{v}, {sr(srd_,4)}, s{so} offen offset:{imm} lds"]
    if G in (0, 1):
        if "A" in which:
            out.append([f"s_add_u32 m0, s27, {base}", "@", f"buffer_load_dwordx4 v2, {WS}, s24 offen{ASC} lds"])
            out.append([f"buffer_load_dwordx4 v2, {WS}, s24 offen offset:1024{ASC} lds", "s_add_u32 s24, s24, 8192"])
        if "B" in which:
            c0 = 0 if G == 0 else 2
            out.append(B(c0, 0, 3, SQKV, 25))
            out.append(B(c0 + 1, 64, 3, SQKV, 25) + [f"s_add_u32 s25, s25, {32*6144}"])
    if G == 2:
        for c in range(3): out.append(B(6 + c, 64 * c, 4, SWIN, 26))
        out.append(B(9, 0, 15, SWIN, 26) + [f"s_add_u32 s26, s26, {32*7168}"])
    if G == 3:
        out.append(B(4, 0, 3, SQKV, 25))
        out.append(B(5, 64, 3, SQKV, 25) + [f"s_add_u32 s25, s25, {32*6144}"])
        for c in range(3): out.append(B(10 + c, 3584 + 64 * c, 4, SWIN, 26))
        out[-1].append(f"s_add_u32 s26, s26, {32*7168}")
    return out
def reads1(G, P, slot):
    hi = slot >> 1
    base = (slot & 1) * S1
    out = [f"ds_read_b128 {vr(fa(P,m),4)}, v{5+hi} offset:{base + m*1024}" for m in range(4)]
    for n, (kind, blk, hf, zn) in enumerate(tiles_of(G)):
        for h in range(2):
            out.append(f"ds_read_b64_tr_b16 {vr(fb(P,n)+2*h,2)}, v{7+2*hi+hf} offset:{base + blk*1024 + h*256}")
    if XR[0] == 1: out = out[::2]
    if XR[0] == 2: out = out[4:]
    return out
def mfmas1(G, P, first=False):
    out = []
    for n, (kind, blk, hf, zn) in enumerate(tiles_of(G)):
        for m in range(4):
            A, Bq = vr(fa(P, m), 4), vr(fb(P, n), 4)
            if kind in ("q", "z1"): A, Bq = Bq, A
            out.append(f"v_mfma_f32_16x16x32_bf16 {vr(acc(n,m),4)}, {A}, {Bq}, {'0' if first else vr(acc(n,m),4)}")
    return out
def place(fill, DM, d0, ds, nM):
    used = set()
    for k, grp in enumerate(DM):
        p = min(d0 + k * ds, nM - 2)
        if "@" in grp:
            assert p not in used; used.add(p)
            i = grp.index("@")
            fill.append((p, grp[:i])); fill.append((p + 1, grp[i+1:]))
        else:
            fill.append((p + 1, grp))
def step1(a, cfg, G, t, DM, nwait, first=False, last=False, extra=None, dpos=None):
    P = t & 1
    a.e(f"s_waitcnt vmcnt({nwait}) lgkmcnt(0)" if nwait is not None else "s_waitcnt lgkmcnt(0)")
    a.e("s_barrier")
    M = mfmas1(G, P, first)
    fill = []
    if not last:
        r0 = cfg.get("k1_r0", 0); rs = cfg.get("k1_rs", 1.0)
        for k, r in enumerate(reads1(G, P ^ 1, (t + 1) & 3)): fill.append((int(r0 + k * rs), [r]))
    d0, ds = dpos or cfg.get("k1_d", {}).get(G, (2, 5))
    place(fill, DM, d0, ds, len(M))
    if extra: fill.append((len(M) - 1, extra))
    interleave(a, M, fill)

TOUCH = [f"buffer_load_dword v125, v124, s[76:79], 0 offen", "v_add_u32 v124, s3, v124"]
def touch(a, cfg, G):
    if G < 2 or not cfg.get("pf", 1): return 0
    L, L2 = lbl("t"), lbl("t")
    a.e("s_cmp_lg_u32 s23, 0"); a.e(f"s_cbranch_scc1 {L}")
    for mw in range(2):
        if G == 2:
            sb, stride = ((SQKV, 6144), (SWIN, 7168))[mw]
            n = stride // 256
            srd_at(a, STCH, sb, 128 * stride, 896 * stride)
            a.e(f"s_mov_b32 s3, {128 * stride}")
            a.e(f"s_mul_i32 s46, s2, {n}"); a.e("v_add_u32 v124, s46, v12"); a.e("v_lshlrev_b32 v124, 7, v124")
            a.e(f"v_cmp_gt_u32 vcc, {n}, v12"); a.e("v_bfrev_b32 v125, 1"); a.e("v_cndmask_b32 v124, v125, v124, vcc")
        else:
            sb, n = ((SWSP, 32768), (SWOUT, 14336))[mw]
            a.e(f"s_mul_i32 s46, s2, {n}"); srd_at(a, STCH, sb, "s46", n)
            a.e("s_mov_b32 s3, 8192"); a.e("v_lshlrev_b32 v124, 7, v12")
        if mw == 0: a.e(f"s_branch {L2}"); a.label(L)
    a.label(L2)
    if G == 3: return 0
    for t in range(cfg.get("tn", 1)): emit(a, TOUCH)
    return cfg.get("tn", 1)

def ln(a, cfg, G):
    LO, SO, T = 64, 65, 66
    wh = "B" if G < 2 else "AB"
    n0, n1 = cfg.get("ln_n0", 1), cfg.get("ln_n1", 1)
    a.e("s_lshr_b32 s30, s22, 1"); a.e("s_and_b32 s31, s22, 1")
    a.e("s_lshl_b32 s32, s21, 2"); a.e("s_lshr_b32 s33, s30, 1"); a.e("s_add_u32 s32, s32, s33"); a.e("s_lshl_b32 s32, s32, 5")
    a.e("s_and_b32 s33, s30, 1"); a.e("s_lshl_b32 s33, s33, 2"); a.e("s_add_u32 s32, s32, s33")
    a.e("s_lshl_b32 s33, s31, 4"); a.e("s_add_u32 s32, s32, s33")
    a.e("s_lshl_b32 s32, s32, 11"); a.e("s_lshl_b32 s33, s20, 8"); a.e("s_add_u32 s32, s32, s33")
    for n in range(2):
        a.e(f"buffer_load_dwordx4 v[{16+4*n}:{19+4*n}], v{LO}, {sr(SX,4)}, s32 offen offset:{128*n}")
    nv = touch(a, cfg, G) if cfg.get("tpos", 1) == 0 else 0
    for s in range(n0):
        for grp in dmas1(G, s, wh): emit(a, grp); nv += 1
    if G == 0:
        a.e("s_lshl_b32 s33, s21, 4"); a.e("s_add_u32 s33, s33, s22"); a.e("s_lshl_b32 s33, s33, 10")
        a.e(f"s_add_u32 s33, s33, {STATS}")
        a.e("s_mul_i32 s34, s22, 6144"); a.e("s_mul_i32 s35, s21, 384"); a.e("s_add_u32 s34, s34, s35")
        a.e(f"s_add_u32 s34, s34, {KVR}")
        a.e("s_cmp_eq_u32 s23, 0")
        a.e("s_cselect_b32 s33, s33, s34")
        a.e("s_cselect_b32 s34, 63, 23")
        a.e(f"v_min_u32 v{T+2}, s34, v12"); a.e(f"v_lshlrev_b32 v{T+2}, 4, v{T+2}")
        for k in range(4): a.e(f"v_mov_b32 v{72+k}, -1")
        a.e(f"buffer_store_dwordx4 v[72:75], v{T+2}, {WS}, s33 offen sc1")
        nv += 1
    a.e("s_lshl_b32 s32, s21, 18"); a.e("s_lshl_b32 s33, s30, 10"); a.e("s_add_u32 s32, s32, s33")
    a.e("s_lshl_b32 s33, s31, 7"); a.e("s_add_u32 s32, s32, s33")
    a.e("s_lshl_b32 s33, s20, 15"); a.e("s_add_u32 s32, s32, s33")
    a.e("s_add_u32 s33, s32, 16384")
    a.e("s_mov_b32 s36, 0xffff0000")
    st(a, cfg, "dma")
    a.e(f"s_waitcnt vmcnt({nv})")
    st(a, cfg, "x")
    if cfg.get("tpos", 1) == 3: touch(a, cfg, G)
    for k in range(8):
        a.e(f"v_lshlrev_b32 v{32+2*k}, 16, v{16+k}")
        a.e(f"v_and_b32 v{33+2*k}, s36, v{16+k}")
    x = lambda k: vr(32 + 2*k, 2)
    p0, p1 = vr(T, 2), vr(T+2, 2)
    a.e(f"v_pk_add_f32 {p0}, {x(0)}, {x(1)}"); a.e(f"v_pk_mul_f32 {p1}, {x(0)}, {x(0)}")
    for k in range(1, 8):
        if k > 1: a.e(f"v_pk_add_f32 {p0}, {p0}, {x(k)}")
        a.e(f"v_pk_fma_f32 {p1}, {x(k)}, {x(k)}, {p1}")
    a.e(f"v_add_f32 v{T}, v{T}, v{T+1}"); a.e(f"v_add_f32 v{T+1}, v{T+2}, v{T+3}")
    a.e("s_nop 1")
    for k in range(2): a.e(f"v_add_f32_dpp v{T+k}, v{T+k}, v{T+k} row_ror:8 row_mask:0xf bank_mask:0xf")
    for op in ("v_permlane16_swap_b32", "v_permlane32_swap_b32"):
        for k in range(2): a.e(f"v_mov_b32 v{T+2+k}, v{T+k}")
        a.e("s_nop 1")
        for k in range(2): a.e(f"{op} v{T+2+k}, v{T+k}")
        a.e("s_nop 1")
        a.e(f"v_pk_add_f32 {p0}, {p0}, {p1}")
    a.e("s_mov_b64 exec, 0xff")
    a.e(f"ds_write_b64 v62, {p0}")
    a.e("s_mov_b64 exec, -1")
    a.e("s_waitcnt lgkmcnt(0)")
    a.e("s_barrier")
    for k in range(4): a.e(f"ds_read_b128 {vr(16+4*k,4)}, v63 offset:{16*k}")
    a.e("s_waitcnt lgkmcnt(0)")
    for lv in (4, 2, 1):
        for k in range(lv): a.e(f"v_pk_add_f32 {vr(16+2*k,2)}, {vr(16+2*k,2)}, {vr(16+2*(k+lv),2)}")
    a.e(f"v_mul_f32 v16, {f2u(1.0/1024):#x}, v16"); a.e(f"v_mul_f32 v17, {f2u(1.0/1024):#x}, v17")
    a.e("v_fma_f32 v17, -v16, v16, v17"); a.e("v_max_f32 v17, 0, v17"); a.e(f"v_add_f32 v17, {f2u(1e-5):#x}, v17")
    a.e("v_rsq_f32 v18, v17")
    a.e("v_mul_f32 v16, -1.0, v16")
    a.e("v_mov_b32 v17, v16"); a.e("v_mov_b32 v19, v18")
    for k in range(8): a.e(f"v_pk_add_f32 {x(k)}, {x(k)}, v[16:17]")
    for k in range(8): a.e(f"v_pk_mul_f32 {x(k)}, {x(k)}, v[18:19]")
    for k in range(8): a.e(f"v_cvt_pk_bf16_f32 v{20+k}, v{32+2*k}, v{33+2*k}")
    for n in range(2):
        a.e(f"buffer_store_dwordx4 v[{20+4*n}:{23+4*n}], v{SO}, {WS}, s{32+n} offen sc1")
    nv = 0
    for s in range(n0, n0 + n1):
        for grp in dmas1(G, s, wh): emit(a, grp); nv += 1
    a.e("s_lshl_b32 s30, s21, 4")
    st(a, cfg, "ln")
    a.e(f"s_waitcnt vmcnt({nv})")
    a.e("s_barrier")
    st(a, cfg, "xn")
    if G == 0:
        L = lbl("noarr")
        a.e("s_cmp_lg_u32 s20, 0"); a.e(f"s_cbranch_scc1 {L}")
        atomic_inc(a, "s30", T)
        a.label(L)
    for s in range(n0 + n1, cfg.get("ln_n2", 4)):
        for grp in dmas1(G, s, wh): emit(a, grp)

def addr2(a):
    a.e("v_lshrrev_b32 v13, 3, v12"); a.e("v_lshrrev_b32 v14, 5, v12"); a.e("v_and_b32 v123, 3, v13")
    a.e("v_lshl_add_u32 v14, v14, 3, v123"); a.e("v_lshlrev_b32 v14, 12, v14")
    a.e("v_lshrrev_b32 v13, 4, v12"); a.e("v_and_b32 v123, 7, v12"); a.e("v_xor_b32 v13, v13, v123")
    a.e("v_lshl_add_u32 v112, v13, 4, v14")
    a.e("v_xor_b32 v113, 64, v112")
    a.e(f"v_add_u32 v114, {16384-2048}, v112")
    a.e(f"v_add_u32 v115, {81920-3072}, v113")
    a.e(f"v_add_u32 v113, {65536-1024}, v113")
    a.e("v_and_b32 v13, 15, v12"); a.e("v_lshrrev_b32 v14, 1, v13"); a.e("v_lshrrev_b32 v123, 4, v12")
    a.e("v_xor_b32 v14, v14, v123"); a.e("v_lshlrev_b32 v14, 4, v14")
    a.e("v_lshl_add_u32 v116, v13, 7, v14")
    a.e("s_and_b32 s36, s20, 3"); a.e("s_lshl_b32 s36, s36, 12")
    a.e("v_add_u32 v116, s36, v116")
    a.e("v_xor_b32 v117, 64, v116")
    a.e(f"v_add_u32 v118, {2*S2}, v116"); a.e(f"v_add_u32 v119, {2*S2}, v117")
    a.e("s_lshr_b32 s36, s20, 2"); a.e("s_lshl_b32 s36, s36, 12"); a.e("s_add_u32 s36, s36, 16384")
    a.e("v_add_u32 v121, s36, v11"); a.e(f"v_add_u32 v122, {2*S2}, v121")
    a.e("v_bfe_u32 v13, v12, 2, 2"); a.e("v_and_b32 v14, 3, v12"); a.e("v_lshl_add_u32 v13, v13, 3, v14")
    a.e("v_lshlrev_b32 v120, 1, v13")

def epi_z2a(a, cfg, G):
    T = tiles_of(G)
    S, Q = 16, 32
    zt = [n for n, t in enumerate(T) if t[0] == "z2"]
    for zi, n in enumerate(zt):
        for p in range(2):
            r0, r1 = acc(n, 2*p), acc(n, 2*p+1)
            xs = [r0, r0+2, r1, r1+2]
            gelu8(a, xs, 104)
            for k in range(4):
                s, q = S + 8*p + 2*k, Q + 8*p + 2*k
                if zi == 0: a.e(f"v_pk_mul_f32 {vr(q,2)}, {vr(xs[k],2)}, {vr(xs[k],2)}")
                else:
                    a.e(f"v_pk_add_f32 {vr(s,2)}, {vr(xs[k]-16,2)}, {vr(xs[k],2)}")
                    a.e(f"v_pk_fma_f32 {vr(q,2)}, {vr(xs[k],2)}, {vr(xs[k],2)}, {vr(q,2)}")
    a.e("s_nop 1")
    src = (lambda k: S + k) if len(zt) > 1 else (lambda k: acc(zt[0], 0) + k)
    for k in range(16): a.e(f"v_add_f32_dpp v{S+k}, v{src(k)}, v{src(k)} row_ror:8 row_mask:0xf bank_mask:0x3")
    for k in range(16): a.e(f"v_add_f32_dpp v{S+k}, v{Q+k}, v{Q+k} row_ror:8 row_mask:0xf bank_mask:0xc")
    for k in range(8): a.e(f"v_add_f32_dpp v{S+k}, v{S+k}, v{S+k} row_shl:4 row_mask:0xf bank_mask:0x5")
    for k in range(8): a.e(f"v_add_f32_dpp v{S+k}, v{S+8+k}, v{S+8+k} row_shr:4 row_mask:0xf bank_mask:0xa")
    for k in range(8): a.e(f"v_add_f32_dpp v{S+k}, v{S+k}, v{S+k} quad_perm:[1,0,3,2] row_mask:0xf bank_mask:0xf")
    for k in range(8): a.e(f"v_add_f32_dpp v{S+k}, v{S+k}, v{S+k} quad_perm:[2,3,0,1] row_mask:0xf bank_mask:0xf")
    a.e("s_mov_b32 s30, 0x11111111"); a.e("s_mov_b32 s31, 0x11111111")
    a.e("s_mov_b64 exec, s[30:31]")
    a.e(f"ds_write_b128 v2, {vr(S,4)} offset:{G*1024}")
    a.e(f"ds_write_b128 v2, {vr(S+4,4)} offset:{G*1024+16}")
    a.e("s_mov_b64 exec, -1")
    st(a, cfg, "g2")
    a.e("s_waitcnt lgkmcnt(0)")
    a.e("s_barrier")
    st(a, cfg, "s1")
    if G == 2:
        for g in range(4): a.e(f"ds_read2st64_b32 {vr(16+2*g,2)}, v3 offset0:{4*g} offset1:{4*g+2}")
        a.e("s_lshl_b32 s34, s21, 14"); a.e(f"s_add_u32 s34, s34, {STATS}")
        a.e("s_lshl_b32 s35, s22, 10"); a.e("s_add_u32 s35, s35, s34")
        a.e("s_waitcnt lgkmcnt(0)")
        a.e("v_pk_add_f32 v[16:17], v[16:17], v[18:19]")
        a.e("v_pk_add_f32 v[20:21], v[20:21], v[22:23]")
        a.e("v_pk_add_f32 v[16:17], v[16:17], v[20:21]")
        a.e(f"buffer_store_dwordx2 v[16:17], v4, {WS}, s35 offen sc1")

def epi_addr(a, G):
    a.e("v_and_b32 v1, 63, v0")
    a.e("v_bfe_u32 v2, v1, 3, 1"); a.e("v_lshlrev_b32 v2, 9, v2")
    a.e("v_bfe_u32 v3, v1, 2, 1"); a.e("v_lshl_add_u32 v2, v3, 7, v2")
    a.e("v_lshrrev_b32 v3, 4, v1"); a.e("v_lshlrev_b32 v5, 5, v3")
    a.e("s_lshl_b32 s30, s23, 8"); a.e(f"s_add_u32 s30, s30, {SS}")
    a.e("v_add_u32 v5, s30, v5")
    a.e("v_add_u32 v2, v2, v5")
    if G == 2:
        a.e("s_lshl_b32 s30, s23, 6"); a.e("v_add_u32 v4, s30, v1")
        a.e("v_lshlrev_b32 v3, 2, v4"); a.e(f"v_add_u32 v3, {SS}, v3")
        a.e("v_lshlrev_b32 v4, 3, v4")
    a.e("s_lshl_b32 s30, s23, 11"); a.e(f"s_add_u32 s30, s30, {ZS}")
    a.e("v_add_u32 v6, s30, v11")

def epi_attn(a, cfg, G):
    if G in (0, 1):
        for k in range(4): a.e(f"v_mov_b32 v{48+k}, 0x3f803f80")
        for et in range(2):
            for p in range(2): pack(a, 32 + 8*et + 4*p, acc(2+et, 2*p), acc(2+et, 2*p+1))
        for dt in range(2):
            for p in range(2):
                r0, r1 = acc(dt, 2*p), acc(dt, 2*p+1)
                phi8(a, [r0, r0+2, r1, r1+2], 104)
                pack(a, 16 + 8*dt + 4*p, r0, r1)
        a.e("s_nop 1")
        for p in range(2):
            for et in range(3):
                for dt in range(2):
                    d = vr(56 + 8*et + 4*dt, 4)
                    Bq = vr(32 + 8*et + 4*p, 4) if et < 2 else vr(48, 4)
                    a.e(f"v_mfma_f32_16x16x32_bf16 {d}, {vr(16+8*dt+4*p,4)}, {Bq}, {'0' if p == 0 else d}")
        a.e(f"s_lshl_b32 s30, s22, 1")
        if G: a.e("s_add_u32 s30, s30, 1")
        a.e("s_lshl_b32 s30, s30, 5"); a.e("s_lshl_b32 s31, s21, 1"); a.e("s_add_u32 s30, s30, s31"); a.e("s_add_u32 s30, s30, s23")
        a.e("s_mul_i32 s30, s30, 6144"); a.e(f"s_add_u32 s30, s30, {KVP}"); a.e("s_add_u32 s31, s30, 4096")
        a.e("s_nop 7")
        for k in range(6):
            a.e(f"buffer_store_dwordx4 {vr(56+4*k,4)}, v11, {WS}, s{30 + (k>>2)} offen offset:{(k&3)*1024} sc1")
    else:
        for m in range(4):
            r0, r1 = acc(0, m), acc(1, m)
            phi8(a, [r0, r0+2, r1, r1+2], 104)
            pack(a, 240 + 4*m, r0, r1)

def epi_z2b(a, cfg, G):
    T = tiles_of(G)
    if G == 2:
        for k in range(1, 4): a.e(f"s_add_u32 s{37+k}, s34, {4096*k}")
        a.e("s_mov_b32 s36, 0")
        L, X = lbl("sp"), lbl("spx")
        a.label(L)
        for k in range(16):
            a.e(f"buffer_load_dwordx2 {vr(32+2*k,2)}, v4, {WS}, s{34 if k < 4 else 37 + (k>>2)} offen offset:{(k&3)*1024} sc1")
        a.e("s_add_u32 s36, s36, 1")
        for lv in (8, 4, 2, 1):
            if lv == 8: a.e("s_waitcnt vmcnt(0)")
            for k in range(lv): a.e(f"v_pk_add_f32 {vr(32+2*k,2)}, {vr(32+2*k,2)}, {vr(32+2*(k+lv),2)}")
        a.e("v_cmp_u_f32 vcc, v32, v33")
        a.e(f"s_cmp_ge_u32 s36, {BOUND}"); a.e(f"s_cbranch_scc1 {X}")
        a.e("s_cmp_lg_u64 vcc, 0"); a.e(f"s_cbranch_scc1 {L}")
        a.label(X)
        a.e(f"v_mul_f32 v32, {f2u(1.0/1792):#x}, v32")
        a.e(f"v_mul_f32 v33, {f2u(1.0/1792):#x}, v33")
        a.e("v_fma_f32 v33, -v32, v32, v33")
        a.e("v_max_f32 v33, 0, v33")
        a.e(f"v_add_f32 v33, {f2u(1e-5):#x}, v33")
        a.e("v_rsq_f32 v33, v33")
        a.e("s_nop 0")
        a.e("v_mul_f32_e64 v32, -v32, v33")
        a.e("ds_write2st64_b32 v3, v33, v32 offset0:16 offset1:18")
        a.e("s_waitcnt lgkmcnt(0)")
    a.e("s_barrier")
    st(a, cfg, 3)
    RS, NM = 16, 32
    for p in range(2):
        for q in range(2):
            a.e(f"ds_read_b128 {vr(RS+8*p+4*q,4)}, v5 offset:{4096 + p*128 + q*16}")
            a.e(f"ds_read_b128 {vr(NM+8*p+4*q,4)}, v5 offset:{4608 + p*128 + q*16}")
    a.e("s_lshl_b32 s32, s22, 6"); a.e("s_lshl_b32 s33, s21, 2"); a.e("s_add_u32 s32, s32, s33")
    a.e("s_lshl_b32 s33, s23, 1"); a.e("s_add_u32 s32, s32, s33")
    a.e("s_mul_i32 s32, s32, 7168"); a.e(f"s_add_u32 s32, s32, {Z2N}")
    a.e("s_waitcnt lgkmcnt(0)")
    k = 0
    for n, (kind, blk, hf, pos) in enumerate(T):
        if kind != "z2": continue
        for p in range(2):
            r0, r1 = acc(n, 2*p), acc(n, 2*p+1)
            xs = [r0, r0+2, r1, r1+2]
            for u in range(4): a.e(f"v_pk_fma_f32 {vr(xs[u],2)}, {vr(xs[u],2)}, {vr(RS+8*p+2*u,2)}, {vr(NM+8*p+2*u,2)}")
            d = 80 + 4 * (k & 3); k += 1
            a.e(f"s_add_u32 s33, s32, {p*7168 + pos*1024}")
            pack(a, d, r0, r1)
            a.e(f"buffer_store_dwordx4 {vr(d,4)}, v11, {WS}, s33 offen sc1")

def epi_z1(a, cfg, G, which):
    zt = [(n, t[3]) for n, t in enumerate(tiles_of(G)) if t[0] == "z1"]
    for n, pos in zt[which:which+1]:
        for p in range(2):
            r0, r1 = acc(n, 2*p), acc(n, 2*p+1)
            gelu8(a, [r0, r0+2, r1, r1+2], 104)
            pack(a, 96 + 4*p, r0, r1)
            a.e(f"ds_write_b128 v6, {vr(96+4*p,4)} offset:{pos*4096 + p*1024}")

def acc2(n, m): return ACC + (n * 2 + m) * 4
def fw(P, m): return 24 + 8 * P + 4 * m
def fz(P, n): return 40 + 16 * P + 4 * n
def ntiles(R): return 4 if R == 0 else 3
def dmas2(R, slot):
    base = slot * S2
    out = []
    D = 3 if R == 2 else 4
    for n in range(D):
        if R == 0: g = [f"buffer_load_dwordx4 v{112+n}, {sr(SWSP,4)}, s24 offen offset:{n*1024} lds"]
        else: g = [f"buffer_load_dwordx4 v11, {WS}, s24 offen offset:{n*1024}{ASC} lds"]
        if n == 0: g = [f"s_add_u32 m0, s27, {base}", "@"] + g
        if n == D - 1: g.append(f"s_add_u32 s24, s24, {128 if R == 0 else 14336}")
        out.append(g)
    return out
def reads2(R, P, slot, sub):
    hi = slot >> 1
    base = (slot & 1) * S2
    out = [f"ds_read_b128 {vr(fw(P,m),4)}, v{116+2*hi+sub} offset:{base + m*2048}" for m in range(2)]
    out += [f"ds_read_b128 {vr(fz(P,n),4)}, v{121+hi} offset:{base + sub*7168 + n*1024}" for n in range(ntiles(R))]
    if XR[1] == 1: out = out[::2]
    if XR[1] == 2: out = out[2:]
    return out
def mfmas2(R, P, first=False):
    return [f"v_mfma_f32_16x16x32_bf16 {vr(acc2(n,m),4)}, {vr(fz(P,n),4)}, {vr(fw(P,m),4)}, {'0' if first else vr(acc2(n,m),4)}"
            for n in range(ntiles(R)) for m in range(2)]
def body2(a, cfg, R, slot, DM, nwait, last=False, prebar=None, dpos=None):
    a.e(f"s_waitcnt vmcnt({nwait}) lgkmcnt(0)" if nwait is not None else "s_waitcnt lgkmcnt(0)")
    if prebar: prebar()
    if not last: a.e("s_barrier")
    d0, ds = dpos or (cfg.get("k2_d0", 1), cfg.get("k2_ds", 3))
    M = mfmas2(R, 1)
    fill = []
    if not last:
        for k, r in enumerate(reads2(R, 0, (slot + 1) & 3, 0)): fill.append((k - 1, [r]))
    h = len(DM) if last else (len(DM) + 1) // 2
    place(fill, DM[:h], d0, ds, len(M))
    interleave(a, M, fill)
    if last: return
    a.e("s_waitcnt lgkmcnt(0)")
    M = mfmas2(R, 0)
    fill = [(k - 1, [r]) for k, r in enumerate(reads2(R, 1, (slot + 1) & 3, 1))]
    place(fill, DM[h:], d0, ds, len(M))
    interleave(a, M, fill)

NS, NT3 = 8, 44
def fa3(T, sub): return 160 + 8 * (T % NS) + 4 * sub
def fw3(P, nt): return 88 + 16 * P + 4 * nt
def acc3(T, nt): return (128 if T < 16 else 144) + 4 * nt
class VM:
    def __init__(self): self.ops = []
    def add(self, tag): self.ops.append(tag)
    def need(self, tags):
        assert all(t in self.ops for t in tags), tags
        return min(63, len(self.ops) - 1 - max(i for i, t in enumerate(self.ops) if t in tags))
def aload(vm, T, sub):
    kp = 2 * T + sub - 32
    r = fa3(T, sub)
    vm.add(("A", T, sub))
    if kp >= 0 and kp % 7 == 3:
        vm.add(("A", T, sub))
        return [f"buffer_load_dwordx2 {vr(r,2)}, v225, {WS}, s24 offen{ASC}",
                f"buffer_load_dwordx2 {vr(r+2,2)}, v225, {WS}, s24 offen offset:1024{ASC}", "s_add_u32 s24, s24, 8192"]
    return [f"buffer_load_dwordx4 {vr(r,4)}, v224, {WS}, s24 offen{ASC}", "s_add_u32 s24, s24, 8192"]
def wdma(vm, T):
    vm.add(("W", T))
    return [f"s_add_u32 m0, s27, {(T % NS) * 8192}", "@",
            f"buffer_load_dwordx4 v226, {sr(SWO if T < 16 else SWOUT, 4)}, s25 offen lds",
            "s_mov_b32 s25, s40" if T == 15 else f"s_add_u32 s25, s25, {64*2048}"]
def loads3(vm, T, LA):
    out = [wdma(vm, T)]
    if T < LA: out += [aload(vm, T, 0), aload(vm, T, 1)]
    return out
def addr3(a):
    a.e("v_and_b32 v12, 63, v0")
    a.e("s_lshl_b32 s27, s20, 10")
    a.e("v_add_u32 v224, s27, v11")
    a.e("s_lshr_b32 s38, s20, 1"); a.e("s_lshl_b32 s39, s38, 11"); a.e("s_and_b32 s30, s20, 1"); a.e("s_lshl_b32 s31, s30, 3")
    a.e("s_add_u32 s39, s39, s31"); a.e("v_add_u32 v225, s39, v11")
    a.e("v_lshrrev_b32 v13, 3, v12"); a.e("v_bfe_u32 v14, v12, 4, 2"); a.e("v_lshlrev_b32 v14, 1, v14")
    a.e("v_and_b32 v15, 7, v12"); a.e("v_xor_b32 v14, v14, v15"); a.e("v_lshlrev_b32 v14, 4, v14")
    a.e("v_lshl_add_u32 v226, v13, 11, v14")
    a.e("s_lshl_b32 s39, s20, 14"); a.e("v_add_u32 v226, s39, v226")
    a.e("v_bfe_u32 v13, v12, 2, 3"); a.e("v_lshrrev_b32 v14, 5, v12"); a.e("v_lshlrev_b32 v14, 10, v14")
    a.e("v_lshl_add_u32 v14, v13, 7, v14"); a.e("v_lshrrev_b32 v13, 1, v13"); a.e("v_lshl_add_u32 v14, v13, 5, v14")
    a.e("v_and_b32 v15, 3, v12")
    a.e("v_lshl_add_u32 v227, v15, 3, v14")
    a.e("v_xor_b32 v228, 32, v227"); a.e("v_xor_b32 v229, 64, v227"); a.e("v_xor_b32 v230, 96, v227")
    a.e("v_bfe_u32 v13, v12, 2, 2"); a.e("v_lshl_add_u32 v13, v13, 3, v15"); a.e("v_lshlrev_b32 v231, 11, v13")
    a.e("v_bfe_u32 v13, v12, 4, 1"); a.e("v_lshl_add_u32 v231, v13, 5, v231")
    a.e("v_lshrrev_b32 v13, 5, v12"); a.e("v_lshl_add_u32 v231, v13, 4, v231")
    a.e("s_lshl_b32 s26, s50, 7"); a.e("s_lshl_b32 s38, s38, 5"); a.e("s_add_u32 s26, s26, s38")
    a.e("s_lshl_b32 s30, s30, 2"); a.e("s_add_u32 s26, s26, s30"); a.e("s_lshl_b32 s26, s26, 11")
    a.e("s_lshl_b32 s40, s51, 7"); a.e("s_add_u32 s26, s26, s40")
    a.e(f"s_mul_i32 s24, s50, {88*8192}"); a.e(f"s_add_u32 s24, s24, {AU}")
    a.e("s_mov_b32 s25, s40")
    a.e("s_lshl_b32 s41, s50, 4"); a.e("s_add_u32 s41, s41, 8")

def stage2(a, cfg, R, vm):
    NT = ntiles(R); D = len(dmas2(R, 0)); nw = 0 if R == 0 else 1
    LA = cfg.get("k3_la", 7); PRE = cfg.get("pre3", 3)
    a.label(f"L_r{R}")
    a.e("s_and_b32 s23, s20, 3")
    if R < 2:
        a.e("s_cmp_ge_u32 s20, 3"); a.e("s_cselect_b32 s36, 1, 0")
        a.e("s_mul_i32 s37, s36, 3"); a.e("s_sub_u32 s37, s20, s37")
        a.e("s_lshl_b32 s38, s22, 1"); a.e("s_add_u32 s38, s38, s36")
        a.e("s_mul_i32 s39, s21, 24"); a.e("s_lshl_b32 s37, s37, 3"); a.e("s_add_u32 s39, s39, s37")
        a.e("v_lshrrev_b32 v17, 3, v1"); a.e("v_add_u32 v17, s39, v17")
        a.e("v_and_b32 v18, 7, v1"); a.e("v_mul_u32_u24 v18, 24576, v18"); a.e("v_lshl_add_u32 v18, v17, 4, v18")
        a.e(f"s_mul_i32 s39, s38, {32*6144}"); a.e(f"s_add_u32 s39, s39, {KVP}")
    if R:
        a.e(f"s_mul_i32 s24, s22, {64*7168}"); a.e(f"s_add_u32 s24, s24, {Z2N}")
        a.e("s_and_b32 s27, s20, 1"); a.e(f"s_mul_i32 s27, s27, {4096 if R == 1 else 3072}")
        if R == 2: a.e("s_add_u32 s27, s27, 8192")
        a.e("s_add_u32 s24, s24, s27"); a.e("s_add_u32 s27, s27, 16384")
    a.e("s_waitcnt lgkmcnt(0)")
    a.e("s_barrier")
    st(a, cfg, 4)
    if R < 2:
        for u in range(4):
            a.e(f"buffer_load_dwordx4 {vr(72+4*u,4)}, v18, {WS}, s39 offen sc1")
            if u < 3: a.e("s_add_u32 s39, s39, 6144")
    if R:
        for s in range(4):
            for grp in dmas2(R, s): emit(a, grp)
        a.e(f"s_waitcnt vmcnt({3*D})")
    a.e("s_barrier")
    st(a, cfg, "d2")
    a("; hot")
    for r in reads2(R, 0, 0, 0): a.e(r)
    a.e("s_waitcnt lgkmcnt(0)")
    interleave(a, mfmas2(R, 0, True), [(k - 1, [r]) for k, r in enumerate(reads2(R, 1, 0, 1))])
    a.e("s_mov_b32 s29, 7")
    a.label(f"L_loop2_{R}")
    for t in range(4): body2(a, cfg, R, t, dmas2(R, t), 2*D)
    a.e("s_sub_u32 s29, s29, 1")
    sides = {0: [6], 1: [6, 4, 3, 2], 2: [5, 4, 3]}[R]
    for s in sides:
        a.e(f"s_cmp_eq_u32 s29, {s}"); a.e(f"s_cbranch_scc1 L_side{R}_{s}")
    a.e("s_cmp_lg_u32 s29, 0")
    a.e(f"s_cbranch_scc1 L_loop2_{R}")
    a("; cold")
    st(a, cfg, "l2")
    addr3(a)
    E = 2
    if R == 0: poll_issue(a, "s41", 20); E = 3
    a.e("s_lshl_b32 s30, s21, 8"); a.e("s_lshl_b32 s31, s23, 6"); a.e("s_add_u32 s30, s30, s31")
    a.e(f"buffer_load_ushort v88, v120, {sr(SB,4)}, s30 offen")
    a.e(f"buffer_load_ushort v90, v120, {sr(SB,4)}, s30 offen offset:8")
    a.e(f"s_lshl_b32 s30, s23, 10"); a.e(f"s_add_u32 s30, s30, {ZS + nw*16384}"); a.e("v_add_u32 v16, s30, v11")
    a("; hot")
    body2(a, cfg, R, 0, [], 2*D + E)
    body2(a, cfg, R, 1, [], D + E)
    vm.ops = []
    L3 = []
    for T in range(PRE): L3 += loads3(vm, T, LA)
    n2 = (len(L3) * 2 + 2) // 3
    body2(a, cfg, R, 2, L3[:n2], 2, prebar=(lambda: poll_spin(a, "s41", 20, pre=True)) if R == 0 else None, dpos=(0, 2))
    body2(a, cfg, R, 3, L3[n2:], None, last=True, dpos=(0, 2))
    a("; cold")
    st(a, cfg, 5)
    for n in range(NT): a.e(f"ds_read_b128 {vr(72+4*n,4)}, v16 offset:{n*4096}")
    a.e("s_mov_b32 s33, 0xffff0000")
    a.e(f"s_mul_i32 s30, s21, {88*8192}"); a.e("s_lshl_b32 s31, s23, 11"); a.e("s_add_u32 s30, s30, s31")
    a.e(f"s_add_u32 s30, s30, {AU + 32*8192}")
    a.e("s_lshr_b32 s32, s22, 1"); a.e(f"s_mul_i32 s32, s32, {7*8192}"); a.e("s_add_u32 s30, s30, s32")
    a.e("s_and_b32 s34, s22, 1")
    a.e("s_lshl_b32 s35, s34, 15"); a.e("s_add_u32 s35, s35, s30")
    if nw == 0: a.e("s_add_u32 s39, s35, 8192")
    else:
        a.e("s_add_u32 s35, s35, 16384")
        a.e("s_lshl_b32 s39, s34, 10"); a.e("s_add_u32 s39, s39, s30"); a.e(f"s_add_u32 s39, s39, {3*8192}")
    a.e(f"s_waitcnt vmcnt({len(vm.ops)})")
    a.e("v_lshlrev_b32 v88, 16, v88"); a.e("v_lshlrev_b32 v90, 16, v90")
    a.e("v_mov_b32 v89, v88"); a.e("v_mov_b32 v91, v90")
    a.e("s_waitcnt lgkmcnt(0)")
    for n in range(NT):
        for m in range(2):
            z = 72 + 4*n + 2*m
            t = 92 + 4 * m
            a.e(f"v_lshlrev_b32 v{t}, 16, v{z}"); a.e(f"v_and_b32 v{t+1}, s33, v{z}")
            a.e(f"v_lshlrev_b32 v{t+2}, 16, v{z+1}"); a.e(f"v_and_b32 v{t+3}, s33, v{z+1}")
            r = acc2(n, m)
            for h in range(2): a.e(f"v_pk_add_f32 {vr(r+2*h,2)}, {vr(r+2*h,2)}, {vr(88+2*m,2)}")
            for h in range(2): a.e(f"v_pk_mul_f32 {vr(r+2*h,2)}, {vr(r+2*h,2)}, {vr(t+2*h,2)}")
        if n & 1:
            for m in range(2):
                d = 48 + 8 * (n >> 1) + 4 * m
                pack(a, d, acc2(n-1, m), acc2(n, m))
                a.e(f"buffer_store_dwordx4 {vr(d,4)}, v11, {WS}, s{35 if n == 1 else 39} offen offset:{m*1024} sc1")
        elif n == 2 and NT == 3:
            pack(a, 56, acc2(n, 0), acc2(n, 1))
            a.e(f"buffer_store_dwordx4 v[56:59], v11, {WS}, s39 offen sc1")
    st(a, cfg, "us")
    for k in range(3): vm.add("U")
    a.e("s_branch L_stage3")
    for s in sides:
        a.label(f"L_side{R}_{s}")
        if s == 6:
            a.e("v_lshrrev_b32 v18, 7, v17"); a.e("v_lshlrev_b32 v18, 10, v18"); a.e("v_and_b32 v19, 63, v17")
            a.e("v_lshl_add_u32 v18, v19, 4, v18"); a.e("v_bfe_u32 v19, v17, 6, 1"); a.e("v_lshl_add_u32 v18, v19, 3, v18")
            a.e("s_mul_i32 s37, s38, 3072"); a.e(f"s_add_u32 s37, s37, {KVR}")
            for h in range(2):
                a.e(f"v_pk_add_f32 {vr(72+2*h,2)}, {vr(72+2*h,2)}, {vr(76+2*h,2)}")
                a.e(f"v_pk_add_f32 {vr(80+2*h,2)}, {vr(80+2*h,2)}, {vr(84+2*h,2)}")
            for h in range(2): a.e(f"v_pk_add_f32 {vr(72+2*h,2)}, {vr(72+2*h,2)}, {vr(80+2*h,2)}")
            for ctl in ("row_half_mirror", "quad_perm:[1,0,3,2]", "quad_perm:[2,3,0,1]"):
                a.e("s_nop 1")
                for k in range(4): a.e(f"v_add_f32_dpp v{72+k}, v{72+k}, v{72+k} {ctl} row_mask:0xf bank_mask:0xf")
            a.e("v_cvt_pk_bf16_f32 v72, v72, v73"); a.e("v_cvt_pk_bf16_f32 v73, v74, v75")
            a.e("s_mov_b32 s36, 0x01010101"); a.e("s_mov_b32 exec_lo, s36"); a.e("s_mov_b32 exec_hi, s36")
            a.e(f"buffer_store_dwordx2 v[72:73], v18, {WS}, s37 offen sc1")
            a.e("s_mov_b64 exec, -1")
        kvr = [f"buffer_load_dwordx4 {vr(100+4*et,4)}, v11, {WS}, s37 offen offset:{et*1024} sc1" for et in range(3)]
        if s == 5:
            a.e("s_cmp_lg_u32 s20, 6"); a.e(f"s_cbranch_scc1 L_loop2_{R}")
            a.e("s_lshl_b32 s30, s2, 13"); a.e("v_lshlrev_b32 v124, 3, v11")
            a.e(f"buffer_load_dword v125, v124, {sr(SWO,4)}, s30 offen")
        if s == 4:
            a.e("s_lshl_b32 s38, s22, 1")
            if R == 2: a.e("s_add_u32 s38, s38, 1")
            a.e("s_mul_i32 s37, s38, 3072"); a.e(f"s_add_u32 s37, s37, {KVR}")
            for l in kvr: a.e(l)
        if s == 3:
            L, X, C = lbl("kv"), lbl("kvx"), lbl("kvc")
            a.e("s_mov_b32 s36, 0"); a.e(f"s_branch {C}")
            a.label(L)
            for l in kvr: a.e(l)
            a.e("s_waitcnt vmcnt(0)")
            a.label(C)
            a.e("v_max3_u32 v19, v100, v101, v102")
            for k in range(103, 111, 2): a.e(f"v_max3_u32 v19, v19, v{k}, v{k+1}")
            a.e("v_max_u32 v19, v19, v111")
            a.e("v_cmp_eq_u32 vcc, -1, v19")
            a.e("s_add_u32 s36, s36, 1")
            a.e(f"s_cmp_ge_u32 s36, {BOUND}"); a.e(f"s_cbranch_scc1 {X}")
            a.e("s_cmp_lg_u64 vcc, 0"); a.e(f"s_cbranch_scc1 {L}")
            a.label(X)
            for m in range(4):
                for et in range(3):
                    a.e(f"v_mfma_f32_16x16x32_bf16 {vr(160+12*m+4*et,4)}, {vr(100+4*et,4)}, {vr(240+4*m,4)}, 0")
            a.e(f"s_mul_i32 s30, s21, {88*8192}"); a.e("s_lshl_b32 s31, s38, 13"); a.e("s_add_u32 s30, s30, s31")
            a.e("s_and_b32 s31, s20, 1"); a.e("s_lshl_b32 s31, s31, 12"); a.e("s_add_u32 s30, s30, s31")
            a.e(f"s_add_u32 s30, s30, {AU}")
            a.e("s_nop 7")
            for m in range(4): a.e(f"v_add_f32 v{168+12*m}, {f2u(1e-6):#x}, v{168+12*m}")
            for m in range(4): a.e(f"v_rcp_f32 v{168+12*m}, v{168+12*m}")
            for m in range(4): a.e(f"v_mov_b32 v{169+12*m}, v{168+12*m}")
            for m in range(4):
                b = 160 + 12 * m
                for h in range(4): a.e(f"v_pk_mul_f32 {vr(b+2*h,2)}, {vr(b+2*h,2)}, {vr(b+8,2)}")
                pack(a, 208 + 4*m, b, b + 4)
                a.e(f"buffer_store_dwordx4 {vr(208+4*m,4)}, v11, {WS}, s30 offen offset:{m*1024} sc1")
        if s == 2:
            a.e("s_cmp_lg_u32 s20, 4"); a.e(f"s_cbranch_scc1 L_loop2_{R}")
            a.e("s_lshl_b32 s30, s21, 4"); a.e("s_add_u32 s30, s30, 8")
            atomic_inc(a, "s30", 20)
        a.e(f"s_branch L_loop2_{R}")

def stage3(a, cfg, vm):
    LA = cfg.get("k3_la", 7); PRE = cfg.get("pre3", 3); MID = cfg.get("mid3", 2)
    cT = 16 - LA; pT = cT - cfg.get("pollgap", 2)
    def reads(P, T, sub):
        return [f"ds_read_b64_tr_b16 {vr(fw3(P,nt)+2*h,2)}, v{227+nt} offset:{(T % NS)*8192 + sub*4096 + h*2048}" for nt in range(4) for h in range(2)][::(2 if XR[2] else 1)]
    def mfmas(P, T, sub):
        first = sub == 0 and T in (0, 16)
        return [f"v_mfma_f32_16x16x32_bf16 {vr(acc3(T,nt),4)}, {vr(fw3(P,nt),4)}, {vr(fa3(T,sub),4)}, {'0' if first else vr(acc3(T,nt),4)}" for nt in range(4)]
    a.label("L_stage3")
    for T in range(PRE, PRE + MID):
        for g in loads3(vm, T, LA): emit(a, g)
    a.e(f"s_waitcnt vmcnt({vm.need(['U'])})")
    a.e("s_barrier")
    st(a, cfg, 6)
    L = lbl("nou")
    a.e("s_cmp_lg_u32 s20, 0"); a.e(f"s_cbranch_scc1 {L}")
    a.e("s_lshl_b32 s30, s21, 4"); a.e("s_add_u32 s30, s30, 12")
    atomic_inc(a, "s30", 20)
    a.label(L)
    a.e("s_add_u32 s41, s41, 4")
    a("; hot")
    for r in reads(0, 0, 0): a.e(r)
    for T in range(PRE + MID, NS):
        for g in loads3(vm, T, LA): emit(a, g)
    a.e("s_waitcnt lgkmcnt(0)")
    interleave(a, mfmas(0, 0, 0), [(k // 2 - 1, [r]) for k, r in enumerate(reads(1, 0, 1))])
    for T in range(NT3):
        if T == NT3 - 1:
            a.e("s_waitcnt lgkmcnt(0)")
            for m in mfmas(1, T, 1): a.e(m)
            break
        if T in (cT, cT + 1, 16, 30): st(a, cfg, f"T{T}")
        if T == cT:
            L = lbl("noc")
            a.e("s_cmp_lg_u32 s20, 0"); a.e(f"s_cbranch_scc1 {L}")
            a.e(f"s_waitcnt vmcnt({len(vm.ops) - pidx})")
            poll_spin(a, "s41", 20, pre=True)
            a.label(L)
        a.e(f"s_waitcnt vmcnt({vm.need([('W',T+1),('A',T+1,0),('A',T+1,1)])}) lgkmcnt(0)")
        a.e("s_barrier")
        if T == pT:
            L = lbl("nop")
            a.e("s_cmp_lg_u32 s20, 0"); a.e(f"s_cbranch_scc1 {L}")
            poll_issue(a, "s41", 20)
            a.label(L)
            pidx = len(vm.ops)
        fill = [(k // 2 - 1, [r]) for k, r in enumerate(reads(0, T + 1, 0))]
        if T + NS < NT3:
            g = wdma(vm, T + NS); i = g.index("@")
            fill.append((0, g[:i])); fill.append((1, g[i+1:]))
        if T + LA < NT3: fill.append((3, aload(vm, T + LA, 0)))
        interleave(a, mfmas(1, T, 1), fill)
        a.e("s_waitcnt lgkmcnt(0)")
        fill = [(k // 2 - 1, [r]) for k, r in enumerate(reads(1, T + 1, 1))]
        if T + LA < NT3: fill.append((2, aload(vm, T + LA, 1)))
        if T == NT3 - LA:
            for cp in range(2):
                vm.add(("X", cp))
                fill.append((2, [f"buffer_load_dwordx4 {vr(16+4*cp,4)}, v231, {sr(SX,4)}, s26 offen offset:{cp*64}"]))
        interleave(a, mfmas(0, T + 1, 0), fill)
    a("; cold")
    st(a, cfg, 7)
    a.e(f"s_mov_b32 s30, {f2u(-LOG2E):#x}"); a.e(f"s_mov_b32 s31, {f2u(-LOG2E):#x}")
    a.e(f"s_mov_b32 s32, 1.0"); a.e(f"s_mov_b32 s33, 1.0")
    a.e("s_mov_b32 s34, 0xffff0000")
    a.e("s_waitcnt vmcnt(0)")
    for cp in range(2):
        a.e(f"v_permlane16_swap_b32 v{16+4*cp}, v{18+4*cp}"); a.e(f"v_permlane16_swap_b32 v{17+4*cp}, v{19+4*cp}")
    a.e("s_nop 4")
    H, S, T_, X = 144, 128, 24, 40
    for k in range(8): a.e(f"v_pk_mul_f32 {vr(T_+2*k,2)}, {vr(H+2*k,2)}, s[30:31]")
    for k in range(16): a.e(f"v_exp_f32 v{T_+k}, v{T_+k}")
    for k in range(8):
        a.e(f"v_lshlrev_b32 v{X+2*k}, 16, v{16+k}"); a.e(f"v_and_b32 v{X+2*k+1}, s34, v{16+k}")
    for k in range(8): a.e(f"v_pk_add_f32 {vr(T_+2*k,2)}, {vr(T_+2*k,2)}, s[32:33]")
    for k in range(16): a.e(f"v_rcp_f32 v{T_+k}, v{T_+k}")
    for k in range(8): a.e(f"v_pk_mul_f32 {vr(H+2*k,2)}, {vr(H+2*k,2)}, {vr(S+2*k,2)}")
    for k in range(8): a.e(f"v_pk_fma_f32 {vr(X+2*k,2)}, {vr(H+2*k,2)}, {vr(T_+2*k,2)}, {vr(X+2*k,2)}")
    for cp in range(2): pack(a, 16 + 4*cp, X + 8*cp, X + 8*cp + 4)
    a.e("s_nop 1")
    for cp in range(2):
        a.e(f"v_permlane16_swap_b32 v{16+4*cp}, v{18+4*cp}"); a.e(f"v_permlane16_swap_b32 v{17+4*cp}, v{19+4*cp}")
    a.e("s_nop 1")
    for cp in range(2):
        a.e(f"buffer_store_dwordx4 {vr(16+4*cp,4)}, v231, {sr(SOUT,4)}, s26 offen offset:{cp*64}")
    if cfg.get("tim"):
        a.e("s_memrealtime s[98:99]")
        a.e(f"{'s_memrealtime' if cfg.get('rt') else 's_memtime'} s[30:31]")
        a.e("s_waitcnt lgkmcnt(0)")
        a.e("s_lshl_b32 s100, s2, 3"); a.e("s_add_u32 s100, s100, s20"); a.e("s_lshl_b32 s100, s100, 6"); a.e(f"s_add_u32 s100, s100, {TIM}")
        a.e("v_mov_b32 v0, 0")
        for k, s in enumerate([80 + 2*k for k in range(8)] + [30, 96, 98]):
            a.e(f"v_mov_b32 v1, s{s}")
            a.e(f"buffer_store_dword v1, v0, {WS}, s100 offen offset:{4*k}")
            a.e("s_nop 1")

def srd_at(a, d, b, soff, nbytes):
    a.e(f"s_add_u32 s{d}, s{b}, {soff}"); a.e(f"s_addc_u32 s{d+1}, s{b+1}, 0"); a.e(f"s_and_b32 s{d+1}, s{d+1}, 0xffff")
    a.e(f"s_mov_b32 s{d+2}, {nbytes}"); a.e(f"s_mov_b32 s{d+3}, 0x00020000")

def fused(a, cfg):
    name = KN + "_kernel"
    kernel_begin(a, name)
    a.e("s_cmp_ge_u32 s2, 256")
    a.e("s_cbranch_scc1 L_end")
    if cfg.get("tim"): a.e("s_memrealtime s[96:97]")
    st(a, cfg, 0)
    a.e("s_load_dwordx16 s[24:39], s[0:1], 0")
    a.e("s_load_dwordx4 s[40:43], s[0:1], 64")
    a.e("s_load_dwordx2 s[44:45], s[0:1], 80")
    if cfg.get("cpf", 1):
        a.e(f"s_getpc_b64 s[{STCH}:{STCH+1}]")
        a.label("L_pc")
        a.e(f"s_and_b32 s{STCH+1}, s{STCH+1}, 0xffff")
        a.e(f"s_mov_b32 s{STCH+2}, L_end-L_pc"); a.e(f"s_mov_b32 s{STCH+3}, 0x00020000")
        a.e("v_lshlrev_b32 v127, 7, v0")
        a.e(f"buffer_load_dword v127, v127, {sr(STCH,4)}, 0 offen")
    a.e("v_lshrrev_b32 v1, 6, v0")
    a.e("v_and_b32 v12, 63, v0")
    a.e("v_readfirstlane_b32 s20, v1")
    a.e("v_and_b32 v13, 7, v12"); a.e("v_lshrrev_b32 v14, 3, v12")
    a.e("v_bfe_u32 v15, v12, 2, 1"); a.e("v_and_b32 v16, 3, v12"); a.e("v_lshl_add_u32 v15, v15, 3, v16")
    a.e("v_lshlrev_b32 v64, 11, v15"); a.e("v_lshl_add_u32 v64, v14, 4, v64")
    a.e("v_and_b32 v15, 3, v14"); a.e("v_lshlrev_b32 v65, 4, v13"); a.e("v_lshl_add_u32 v65, v15, 8, v65")
    a.e("v_lshrrev_b32 v15, 2, v14"); a.e("v_lshl_add_u32 v65, v15, 13, v65")
    a.e("v_lshlrev_b32 v63, 6, v13"); a.e(f"v_add_u32 v63, {SS}, v63"); a.e("v_lshl_add_u32 v62, v1, 3, v63")
    a.e("s_and_b32 s21, s2, 1"); a.e("s_lshl_b32 s21, s21, 3"); a.e("s_bfe_u32 s46, s2, 0x30003"); a.e("s_add_u32 s21, s21, s46")
    a.e("s_bfe_u32 s22, s2, 0x20001"); a.e("s_lshl_b32 s22, s22, 2"); a.e("s_lshr_b32 s46, s2, 6"); a.e("s_add_u32 s22, s22, s46")
    m3 = cfg.get("map3", 4)
    if m3 == 4:
        a.e("s_and_b32 s50, s2, 3"); a.e("s_lshl_b32 s50, s50, 2"); a.e("s_bfe_u32 s46, s2, 0x20003"); a.e("s_add_u32 s50, s50, s46")
        a.e("s_bfe_u32 s51, s2, 0x10002"); a.e("s_lshl_b32 s51, s51, 3"); a.e("s_lshr_b32 s46, s2, 5"); a.e("s_add_u32 s51, s51, s46")
    elif m3 == 2:
        a.e("s_and_b32 s50, s2, 7"); a.e("s_lshl_b32 s50, s50, 1"); a.e("s_bfe_u32 s46, s2, 0x10003"); a.e("s_add_u32 s50, s50, s46")
        a.e("s_lshr_b32 s51, s2, 4")
    elif m3 == 8:
        a.e("s_mov_b32 s50, s21"); a.e("s_mov_b32 s51, s22")
    elif m3 == 41:
        a.e("s_and_b32 s50, s2, 3"); a.e("s_lshl_b32 s50, s50, 2"); a.e("s_bfe_u32 s46, s2, 0x20003"); a.e("s_add_u32 s50, s50, s46")
        a.e("s_bfe_u32 s51, s2, 0x10002"); a.e("s_lshr_b32 s46, s2, 5"); a.e("s_lshl_b32 s46, s46, 1"); a.e("s_add_u32 s51, s51, s46")
    m1 = cfg.get("map1", 8)
    if m1 == 4:
        a.e("s_and_b32 s21, s2, 3"); a.e("s_lshl_b32 s21, s21, 2"); a.e("s_bfe_u32 s46, s2, 0x20003"); a.e("s_add_u32 s21, s21, s46")
        a.e("s_bfe_u32 s22, s2, 0x10002"); a.e("s_lshl_b32 s22, s22, 3"); a.e("s_lshr_b32 s46, s2, 5"); a.e("s_add_u32 s22, s22, s46")
    if m1 == 81:
        a.e("s_bfe_u32 s22, s2, 0x20001"); a.e("s_lshr_b32 s46, s2, 6"); a.e("s_lshl_b32 s46, s46, 2"); a.e("s_add_u32 s22, s22, s46")
    a.e("s_and_b32 s23, s20, 1")
    a.e("v_lshlrev_b32 v11, 4, v12")
    a.e("s_lshl_b32 s46, s20, 11"); a.e("v_add_u32 v2, s46, v11")
    a.e("v_lshrrev_b32 v13, 2, v12"); a.e("s_lshl_b32 s46, s23, 4"); a.e("v_add_u32 v13, s46, v13")
    a.e("v_bfe_u32 v14, v12, 5, 1"); a.e("v_lshlrev_b32 v14, 1, v14"); a.e("v_and_b32 v15, 3, v12"); a.e("v_xor_b32 v14, v14, v15")
    a.e("v_lshrrev_b32 v16, 1, v14")
    a.e("v_lshlrev_b32 v14, 4, v14")
    a.e("v_mul_u32_u24 v3, 6144, v13"); a.e("v_add_u32 v3, v3, v14")
    a.e("v_mul_u32_u24 v4, 7168, v13"); a.e("v_add_u32 v4, v4, v14")
    a.e("s_lshl_b32 s46, s23, 12"); a.e("v_add_u32 v5, s46, v11"); a.e(f"v_add_u32 v6, {2*S1}, v5")
    a.e("v_lshrrev_b32 v13, 5, v12"); a.e("v_mul_u32_u24 v7, 13312, v13")
    a.e("v_bfe_u32 v13, v12, 4, 1"); a.e("v_mul_u32_u24 v14, 544, v13"); a.e("v_add_u32 v7, v7, v14")
    a.e("v_bfe_u32 v14, v12, 2, 2"); a.e("v_lshl_add_u32 v7, v14, 6, v7"); a.e("v_lshl_add_u32 v7, v15, 3, v7")
    a.e("v_add_u32 v7, 8192, v7"); a.e("v_xor_b32 v8, 32, v7")
    a.e(f"v_add_u32 v9, {2*S1}, v7"); a.e(f"v_add_u32 v10, {2*S1}, v8")
    a.e("s_and_b32 s46, s22, 1"); a.e("s_cmp_eq_u32 s46, 0"); a.e("s_cselect_b32 s47, 192, 0"); a.e("s_lshl_b32 s46, s46, 5")
    a.e("v_mul_u32_u24 v15, 3552, v16"); a.e("v_add_u32 v15, v15, v4"); a.e("v_add_u32 v15, s47, v15")
    a.e("v_add_u32 v4, s46, v4")
    a.e("s_waitcnt lgkmcnt(0)")
    st(a, cfg, "ka")
    srd(a, SX, 24, 4 * MB); srd(a, SWS, 44, WS_SIZE); srd(a, SQKV, 26, 1024 * 6144); srd(a, SWIN, 32, 1024 * 7168)
    srd(a, SDBG, 42, 256); srd(a, SWSP, 34, 2048 * 4096); srd(a, SB, 36, 4096); srd(a, SWO, 28, 1024 * 2048)
    srd(a, SWOUT, 38, 1792 * 2048); srd(a, SOUT, 40, 4 * MB)
    a.e("s_lshr_b32 s46, s20, 1")
    for G in (1, 2, 3):
        a.e(f"s_cmp_eq_u32 s46, {G}"); a.e(f"s_cbranch_scc1 L_g{G}")
    vm = VM()
    for G in range(4):
        a.label(f"L_g{G}")
        D = len(dmas1(G, 0))
        a.e("s_lshl_b32 s24, s21, 18")
        a.e("s_lshl_b32 s25, s22, 7")
        if G & 1: a.e(f"s_add_u32 s25, s25, {2048 if G == 1 else 4096}")
        a.e("s_mul_i32 s26, s22, 224")
        a.e("s_lshl_b32 s27, s20, 11")
        a.e("s_mul_i32 s28, s23, 13312")
        TP = cfg.get("pf", 1)
        ln(a, cfg, G)
        if G < 2:
            addr2(a)
            if G == 0:
                L = lbl("nox")
                a.e("s_cmp_lg_u32 s20, 0"); a.e(f"s_cbranch_scc1 {L}")
                poll_spin(a, "s30", 66)
                a.label(L)
            a.e("s_barrier")
            st(a, cfg, 1)
            n2 = cfg.get("ln_n2", 4)
            for s in range(4):
                for grp in dmas1(G, s, "A" if s < n2 else "AB"): emit(a, grp)
            c = [2 if s < n2 else 4 for s in range(4)]
            w0 = [sum(c[1:]), sum(c[2:]), c[3] + 4, 8, 8]
        else:
            nt = touch(a, cfg, G) if cfg.get('tpos', 1) == 1 else 0
            addr2(a)
            a.e("s_barrier")
            st(a, cfg, 1)
            for s in range(cfg.get("ln_n2", 4), 4):
                for grp in dmas1(G, s): emit(a, grp)
            if cfg.get('tpos', 1) == 2: nt = touch(a, cfg, G)
            w0 = [3*D + nt, 2*D + nt, 2*D + nt, 2*D + nt, 2*D]
        a.e(f"s_waitcnt vmcnt({w0[0]})")
        a.e("s_barrier")
        st(a, cfg, "d0")
        a("; hot")
        for r in reads1(G, 0, 0): a.e(r)
        tch = G >= 2 and TP
        for t in range(4):
            step1(a, cfg, G, t, dmas1(G, t), w0[t + 1] + (1 if tch and t else 0), first=(t == 0), extra=TOUCH if tch and t == 0 else None)
        a.e("s_mov_b32 s29, 6")
        a.label(f"L_loop1_{G}")
        for t in range(4):
            step1(a, cfg, G, t, dmas1(G, t), 2*D + (1 if tch and t else 0),
                  extra=TOUCH if tch and t == 0 else None)
        a.e("s_sub_u32 s29, s29, 1"); a.e("s_cmp_lg_u32 s29, 0"); a.e(f"s_cbranch_scc1 L_loop1_{G}")
        for t in range(3): step1(a, cfg, G, t, [], [2*D, D, 0][t])
        DM = []
        if G < 2:
            a.e("s_lshl_b32 s24, s21, 19"); a.e("s_lshl_b32 s36, s20, 17"); a.e("s_add_u32 s24, s24, s36"); a.e("s_lshl_b32 s27, s20, 12")
            for s in range(4): DM += dmas2(0, s)
        step1(a, cfg, G, 3, DM, None, last=True, dpos=(0, 1.6) if False else (0, 2))
        a("; cold")
        st(a, cfg, 2)
        for k, c in ((42, GC1), (44, 1.0), (46, LOG2E), (48, 1e-6)):
            a.e(f"s_mov_b32 s{k}, {f2u(c):#x}"); a.e(f"s_mov_b32 s{k+1}, {f2u(c):#x}")
        a.e(f"v_mov_b32 v12, {f2u(GC0):#x}"); a.e(f"v_mov_b32 v13, {f2u(GC0):#x}")
        epi_addr(a, G)
        epi_z2a(a, cfg, G)
        epi_attn(a, cfg, G)
        st(a, cfg, "at")
        epi_z2b(a, cfg, G)
        st(a, cfg, "zs")
        epi_z1(a, cfg, G, 0)
        st(a, cfg, "z1")
        a.e("s_waitcnt vmcnt(0)")
        a.e("s_barrier")
        st(a, cfg, "s3")
        if G == 0:
            L = lbl("noz")
            a.e("s_cmp_lg_u32 s20, 0"); a.e(f"s_cbranch_scc1 {L}")
            a.e("s_lshl_b32 s30, s22, 4"); a.e("s_add_u32 s30, s30, 4")
            atomic_inc(a, "s30", 20)
            poll_spin(a, "s30", 20)
            a.label(L)
        epi_z1(a, cfg, G, 1)
        if G == 0: a.e("s_branch L_r0")
        else: stage2(a, cfg, G - 1, vm)
    stage3(a, cfg, vm)
    a.label("L_end")
    a.e("s_endpgm")
    return (name, "(256,1,1)", "(512,1,1)", LDS, dict(vgpr=256, sgpr=102, accum=256))

def gen(cfg):
    global BOUND, SLEEP, ASC, XR
    XR = cfg.get('xr', [0, 0, 0])
    ASC = '' if cfg.get('nosc1') else ' sc1'
    BOUND = cfg.get('bound', 6000); SLEEP = cfg.get('sleep', 0)
    Lbl.n = 0
    body = Asm()
    name, g, b, lds, d = fused(body, cfg)
    a = Asm()
    a(f"; @launch grid={g} block={b} lds={lds}")
    a('.amdgcn_target "amdgcn-amd-amdhsa--gfx950"')
    a.lines += [l.strip() if l.startswith("    ") else l for l in body.lines]
    kernel_desc(a, name, **d)
    t = a.text()
    if cfg.get("align", 1):
        from align import align
        t, nfix = align(t)
        if cfg.get("verbose"): print("align fixes (e64, nop, left):", nfix)
    return t
if __name__ == "__main__":
    import sys, json
    cfg = json.loads(sys.argv[2]) if len(sys.argv) > 2 else {}
    if "k1_d" in cfg: cfg["k1_d"] = {int(k): v for k, v in cfg["k1_d"].items()}
    open(sys.argv[1], "w").write(gen(cfg))
```

```python
from gen_common import *
from gen_k1 import gelu8, phi8, pack
import gen_k1
S1 = 34 * 1024
S2 = 30 * 1024
ZS = 4 * S2
SS = ZS + 28 * 1024
CNT = SS + 5 * 1024
LDS = 160 * 1024
BOUND = 6000
SWS, SDBG, SQKV, SWIN, SX, SWSP, SB, SWO, SWOUT, SOUT, STCH = 16, 4, 8, 12, 52, 56, 60, 64, 68, 72, 76
WS, DBG = sr(SWS, 4), sr(SDBG, 4)
ACC = 128
def st(a, cfg, name):
    names = cfg.get("stamps", [0, 1, 2, 3, 4, 5, 6, 7])
    if cfg.get("tim") and name in names:
        idx = names.index(name)
        a.e(f"{'s_memrealtime' if cfg.get('rt') else 's_memtime'} s[{80+2*idx}:{81+2*idx}]")
def emit(a, grp):
    for ins in grp: a.e("s_nop 0" if ins == "@" else ins)
class Lbl:
    n = 0
def lbl(p):
    Lbl.n += 1; return f"L_{p}_{Lbl.n}"
def atomic_inc(a, soff, t=12):
    a.e(f"v_mov_b32 v{t}, 1"); a.e(f"v_mov_b32 v{t+1}, 0")
    a.e("s_mov_b64 exec, 1")
    a.e(f"buffer_atomic_add v{t}, v{t+1}, {DBG}, {soff} offen sc1")
    a.e("s_mov_b64 exec, -1")
def poll_issue(a, soff, t):
    a.e(f"v_mov_b32 v{t+1}, 0")
    a.e("s_mov_b64 exec, 1")
    a.e(f"buffer_load_dword v{t}, v{t+1}, {DBG}, {soff} offen sc1")
    a.e("s_mov_b64 exec, -1")
def poll_spin(a, soff, t, pre=False):
    L, X, C = lbl("poll"), lbl("pollx"), lbl("pollc")
    a.e("s_mov_b32 s36, 0")
    if pre: a.e(f"s_branch {C}")
    a.label(L)
    if SLEEP: a.e(f"s_sleep {SLEEP}")
    poll_issue(a, soff, t)
    a.e("s_waitcnt vmcnt(0)")
    a.label(C)
    a.e(f"v_readfirstlane_b32 s37, v{t}")
    a.e("s_add_u32 s36, s36, 1")
    a.e("s_cmp_ge_u32 s37, 16")
    a.e(f"s_cbranch_scc1 {X}")
    a.e(f"s_cmp_lt_u32 s36, {BOUND}")
    a.e(f"s_cbranch_scc1 {L}")
    a.label(X)

def acc(n, m): return ACC + (n * 4 + m) * 4
def fa(P, m): return 16 + 16 * P + 4 * m
def fb(P, n): return 48 + 28 * P + 4 * n
def tiles_of(G):
    z1 = lambda p: ("z1", 6 + p // 2 if p < 6 else 9, p & 1 if p < 6 else 0, p)
    z2 = lambda p: ("z2", 10 + p // 2 if p < 6 else 9, p & 1 if p < 6 else 1, p)
    if G == 0: return [("k", 2, 0, 0), ("k", 2, 1, 1), ("v", 4, 0, 0), ("v", 4, 1, 1), z2(0), z2(1), z1(0)]
    if G == 1: return [("k", 3, 0, 0), ("k", 3, 1, 1), ("v", 5, 0, 0), ("v", 5, 1, 1), z2(2), z1(1), z1(2)]
    if G == 2: return [("q", 0, 0, 0), ("q", 0, 1, 1), z2(3), z2(4), z1(3), z1(4)]
    if G == 3: return [("q", 1, 0, 0), ("q", 1, 1, 1), z2(5), z2(6), z1(5), z1(6)]
def dmas1(G, slot, which="AB"):
    out = []
    base = slot * S1
    def B(c, imm, v, srd_, so):
        return [f"s_add_u32 m0, s28, {base + 8192 + c*1024 - imm}", "@",
                f"buffer_load_dwordx4 v{v}, {sr(srd_,4)}, s{so} offen offset:{imm} lds"]
    if G in (0, 1):
        if "A" in which:
            out.append([f"s_add_u32 m0, s27, {base}", "@", f"buffer_load_dwordx4 v2, {WS}, s24 offen{ASC} lds"])
            out.append([f"buffer_load_dwordx4 v2, {WS}, s24 offen offset:1024{ASC} lds", "s_add_u32 s24, s24, 8192"])
        if "B" in which:
            c0 = 0 if G == 0 else 2
            out.append(B(c0, 0, 3, SQKV, 25))
            out.append(B(c0 + 1, 64, 3, SQKV, 25) + [f"s_add_u32 s25, s25, {32*6144}"])
    if G == 2:
        for c in range(3): out.append(B(6 + c, 64 * c, 4, SWIN, 26))
        out.append(B(9, 0, 15, SWIN, 26) + [f"s_add_u32 s26, s26, {32*7168}"])
    if G == 3:
        out.append(B(4, 0, 3, SQKV, 25))
        out.append(B(5, 64, 3, SQKV, 25) + [f"s_add_u32 s25, s25, {32*6144}"])
        for c in range(3): out.append(B(10 + c, 3584 + 64 * c, 4, SWIN, 26))
        out[-1].append(f"s_add_u32 s26, s26, {32*7168}")
    return out
def reads1(G, P, slot):
    hi = slot >> 1
    base = (slot & 1) * S1
    out = [f"ds_read_b128 {vr(fa(P,m),4)}, v{5+hi} offset:{base + m*1024}" for m in range(4)]
    for n, (kind, blk, hf, zn) in enumerate(tiles_of(G)):
        for h in range(2):
            out.append(f"ds_read_b64_tr_b16 {vr(fb(P,n)+2*h,2)}, v{7+2*hi+hf} offset:{base + blk*1024 + h*256}")
    if XR[0] == 1: out = out[::2]
    if XR[0] == 2: out = out[4:]
    return out
def mfmas1(G, P, first=False):
    out = []
    for n, (kind, blk, hf, zn) in enumerate(tiles_of(G)):
        for m in range(4):
            A, Bq = vr(fa(P, m), 4), vr(fb(P, n), 4)
            if kind in ("q", "z1"): A, Bq = Bq, A
            out.append(f"v_mfma_f32_16x16x32_bf16 {vr(acc(n,m),4)}, {A}, {Bq}, {'0' if first else vr(acc(n,m),4)}")
    return out
def place(fill, DM, d0, ds, nM):
    used = set()
    for k, grp in enumerate(DM):
        p = min(d0 + k * ds, nM - 2)
        if "@" in grp:
            assert p not in used; used.add(p)
            i = grp.index("@")
            fill.append((p, grp[:i])); fill.append((p + 1, grp[i+1:]))
        else:
            fill.append((p + 1, grp))
def step1(a, cfg, G, t, DM, nwait, first=False, last=False, extra=None, dpos=None):
    P = t & 1
    a.e(f"s_waitcnt vmcnt({nwait}) lgkmcnt(0)" if nwait is not None else "s_waitcnt lgkmcnt(0)")
    a.e("s_barrier")
    M = mfmas1(G, P, first)
    fill = []
    if not last:
        r0 = cfg.get("k1_r0", 0); rs = cfg.get("k1_rs", 1.0)
        for k, r in enumerate(reads1(G, P ^ 1, (t + 1) & 3)): fill.append((int(r0 + k * rs), [r]))
    d0, ds = dpos or cfg.get("k1_d", {}).get(G, (2, 5))
    place(fill, DM, d0, ds, len(M))
    if extra: fill.append((len(M) - 1, extra))
    interleave(a, M, fill)

def TOUCH(G):
    t = [f"buffer_load_dword v125, v124, s[76:79], 0 offen", "v_add_u32 v124, s3, v124"]
    if G == 2 and LT: t += [f"buffer_load_dword v125, v126, s[76:79], 0 offen", "v_add_u32 v126, s3, v126"]
    return t
def NTCH(G): return 2 if G == 2 and LT else 1
def touch(a, cfg, G):
    if G < 2 or not cfg.get("pf", 1): return 0
    L, L2 = lbl("t"), lbl("t")
    a.e("s_cmp_lg_u32 s23, 0"); a.e(f"s_cbranch_scc1 {L}")
    for mw in range(2):
        if G == 2:
            sb, stride = ((SQKV, 6144), (SWIN, 7168))[mw]
            n = stride // 256
            srd_at(a, STCH, sb, 128 * stride, 896 * stride)
            a.e(f"s_mov_b32 s3, {128 * stride}")
            if LT:
                a.e("s_and_b32 s46, s21, 7"); a.e("s_lshl_b32 s46, s46, 4"); a.e("v_and_b32 v124, 15, v12"); a.e("v_add_u32 v124, s46, v124")
                a.e(f"v_mul_u32_u24 v124, {stride}, v124"); a.e("v_lshrrev_b32 v125, 4, v12")
                if mw == 0:
                    a.e("v_lshl_add_u32 v124, v125, 11, v124"); a.e("s_lshl_b32 s46, s101, 7"); a.e("s_lshl_b32 s47, s100, 7")
                    a.e("v_mov_b32 v125, s47"); a.e("v_mov_b32 v126, s46"); a.e("v_cmp_gt_u32 vcc, 16, v12"); a.e("v_cndmask_b32 v125, v125, v126, vcc")
                else:
                    a.e("v_lshlrev_b32 v125, 7, v125"); a.e("v_min_u32 v125, 220, v125"); a.e("s_mul_i32 s46, s22, 224"); a.e("v_add_u32 v125, s46, v125")
                a.e("v_add_u32 v124, v124, v125")
                a.e("v_cmp_gt_u32 vcc, 48, v12"); a.e("v_bfrev_b32 v126, 1"); a.e("v_cndmask_b32 v124, v126, v124, vcc")
                if mw: a.e("v_add_u32 v126, 3584, v124")
                if mw == 0: a.e(f"s_branch {L2}"); a.label(L)
                continue
            a.e(f"s_mul_i32 s46, s2, {n}"); a.e("v_add_u32 v124, s46, v12"); a.e("v_lshlrev_b32 v124, 7, v124")
            a.e(f"v_cmp_gt_u32 vcc, {n}, v12"); a.e("v_bfrev_b32 v125, 1"); a.e("v_cndmask_b32 v124, v125, v124, vcc")
        else:
            sb, n = ((SWSP, 32768), (SWOUT, 14336))[mw]
            a.e(f"s_mul_i32 s46, s2, {n}"); srd_at(a, STCH, sb, "s46", n)
            a.e("s_mov_b32 s3, 8192"); a.e("v_lshlrev_b32 v124, 7, v12")
        if mw == 0: a.e(f"s_branch {L2}"); a.label(L)
    a.label(L2)
    if G == 3: return 0
    for t in range(cfg.get("tn", 1)): emit(a, TOUCH(G))
    return cfg.get("tn", 1) * NTCH(G)

def ln(a, cfg, G):
    LO, SO, T = 64, 65, 66
    wh = "B" if G < 2 else "AB"
    n0, n1 = cfg.get("ln_n0", 1), cfg.get("ln_n1", 1)
    a.e("s_lshr_b32 s30, s22, 1"); a.e("s_and_b32 s31, s22, 1")
    a.e("s_lshl_b32 s32, s21, 2"); a.e("s_lshr_b32 s33, s30, 1"); a.e("s_add_u32 s32, s32, s33"); a.e("s_lshl_b32 s32, s32, 5")
    a.e("s_and_b32 s33, s30, 1"); a.e("s_lshl_b32 s33, s33, 2"); a.e("s_add_u32 s32, s32, s33")
    a.e("s_lshl_b32 s33, s31, 4"); a.e("s_add_u32 s32, s32, s33")
    a.e("s_lshl_b32 s32, s32, 11"); a.e("s_lshl_b32 s33, s20, 8"); a.e("s_add_u32 s32, s32, s33")
    for n in range(2):
        a.e(f"buffer_load_dwordx4 v[{16+4*n}:{19+4*n}], v{LO}, {sr(SX,4)}, s32 offen offset:{128*n}")
    nv = touch(a, cfg, G) if cfg.get("tpos", 1) == 0 else 0
    for s in range(n0):
        for grp in dmas1(G, s, wh): emit(a, grp); nv += 1
    if G == 0:
        a.e("s_lshl_b32 s33, s21, 4"); a.e("s_add_u32 s33, s33, s22"); a.e("s_lshl_b32 s33, s33, 10")
        a.e(f"s_add_u32 s33, s33, {STATS}")
        a.e("s_mul_i32 s34, s100, 6144"); a.e("s_mul_i32 s35, s21, 384"); a.e("s_add_u32 s34, s34, s35")
        a.e(f"s_add_u32 s34, s34, {KVR}")
        a.e("s_cmp_eq_u32 s23, 0")
        a.e("s_cselect_b32 s33, s33, s34")
        a.e("s_cselect_b32 s34, 63, 23")
        a.e(f"v_min_u32 v{T+2}, s34, v12"); a.e(f"v_lshlrev_b32 v{T+2}, 4, v{T+2}")
        for k in range(4): a.e(f"v_mov_b32 v{72+k}, -1")
        a.e(f"buffer_store_dwordx4 v[72:75], v{T+2}, {WS}, s33 offen sc1")
        nv += 1
    a.e("s_lshl_b32 s32, s21, 18"); a.e("s_lshl_b32 s33, s30, 10"); a.e("s_add_u32 s32, s32, s33")
    a.e("s_lshl_b32 s33, s31, 7"); a.e("s_add_u32 s32, s32, s33")
    a.e("s_lshl_b32 s33, s20, 15"); a.e("s_add_u32 s32, s32, s33")
    a.e("s_add_u32 s33, s32, 16384")
    a.e("s_mov_b32 s36, 0xffff0000")
    st(a, cfg, "dma")
    a.e(f"s_waitcnt vmcnt({nv})")
    st(a, cfg, "x")
    if cfg.get("tpos", 1) == 3: touch(a, cfg, G)
    for k in range(8):
        a.e(f"v_lshlrev_b32 v{32+2*k}, 16, v{16+k}")
        a.e(f"v_and_b32 v{33+2*k}, s36, v{16+k}")
    x = lambda k: vr(32 + 2*k, 2)
    p0, p1 = vr(T, 2), vr(T+2, 2)
    a.e(f"v_pk_add_f32 {p0}, {x(0)}, {x(1)}"); a.e(f"v_pk_mul_f32 {p1}, {x(0)}, {x(0)}")
    for k in range(1, 8):
        if k > 1: a.e(f"v_pk_add_f32 {p0}, {p0}, {x(k)}")
        a.e(f"v_pk_fma_f32 {p1}, {x(k)}, {x(k)}, {p1}")
    a.e(f"v_add_f32 v{T}, v{T}, v{T+1}"); a.e(f"v_add_f32 v{T+1}, v{T+2}, v{T+3}")
    a.e("s_nop 1")
    for k in range(2): a.e(f"v_add_f32_dpp v{T+k}, v{T+k}, v{T+k} row_ror:8 row_mask:0xf bank_mask:0xf")
    for op in ("v_permlane16_swap_b32", "v_permlane32_swap_b32"):
        for k in range(2): a.e(f"v_mov_b32 v{T+2+k}, v{T+k}")
        a.e("s_nop 1")
        for k in range(2): a.e(f"{op} v{T+2+k}, v{T+k}")
        a.e("s_nop 1")
        a.e(f"v_pk_add_f32 {p0}, {p0}, {p1}")
    a.e("s_mov_b64 exec, 0xff")
    a.e(f"ds_write_b64 v62, {p0}")
    a.e("s_mov_b64 exec, -1")
    a.e("s_waitcnt lgkmcnt(0)")
    a.e("s_barrier")
    for k in range(4): a.e(f"ds_read_b128 {vr(16+4*k,4)}, v63 offset:{16*k}")
    a.e("s_waitcnt lgkmcnt(0)")
    for lv in (4, 2, 1):
        for k in range(lv): a.e(f"v_pk_add_f32 {vr(16+2*k,2)}, {vr(16+2*k,2)}, {vr(16+2*(k+lv),2)}")
    a.e(f"v_mul_f32 v16, {f2u(1.0/1024):#x}, v16"); a.e(f"v_mul_f32 v17, {f2u(1.0/1024):#x}, v17")
    a.e("v_fma_f32 v17, -v16, v16, v17"); a.e("v_max_f32 v17, 0, v17"); a.e(f"v_add_f32 v17, {f2u(1e-5):#x}, v17")
    a.e("v_rsq_f32 v18, v17")
    a.e("v_mul_f32 v16, -1.0, v16")
    a.e("v_mov_b32 v17, v16"); a.e("v_mov_b32 v19, v18")
    for k in range(8): a.e(f"v_pk_add_f32 {x(k)}, {x(k)}, v[16:17]")
    for k in range(8): a.e(f"v_pk_mul_f32 {x(k)}, {x(k)}, v[18:19]")
    for k in range(8): a.e(f"v_cvt_pk_bf16_f32 v{20+k}, v{32+2*k}, v{33+2*k}")
    for n in range(2):
        a.e(f"buffer_store_dwordx4 v[{20+4*n}:{23+4*n}], v{SO}, {WS}, s{32+n} offen sc1")
    nv = 0
    for s in range(n0, n0 + n1):
        for grp in dmas1(G, s, wh): emit(a, grp); nv += 1
    a.e("s_lshl_b32 s30, s21, 4")
    st(a, cfg, "ln")
    a.e(f"s_waitcnt vmcnt({nv})")
    a.e("s_barrier")
    st(a, cfg, "xn")
    if G == 0:
        L = lbl("noarr")
        a.e("s_cmp_lg_u32 s20, 0"); a.e(f"s_cbranch_scc1 {L}")
        atomic_inc(a, "s30", T)
        a.label(L)
    for s in range(n0 + n1, cfg.get("ln_n2", 4)):
        for grp in dmas1(G, s, wh): emit(a, grp)

def addr2(a):
    a.e("v_lshrrev_b32 v13, 3, v12"); a.e("v_lshrrev_b32 v14, 5, v12"); a.e("v_and_b32 v123, 3, v13")
    a.e("v_lshl_add_u32 v14, v14, 3, v123"); a.e("v_lshlrev_b32 v14, 12, v14")
    a.e("v_lshrrev_b32 v13, 4, v12"); a.e("v_and_b32 v123, 7, v12"); a.e("v_xor_b32 v13, v13, v123")
    a.e("v_lshl_add_u32 v112, v13, 4, v14")
    a.e("v_xor_b32 v113, 64, v112")
    a.e(f"v_add_u32 v114, {16384-2048}, v112")
    a.e(f"v_add_u32 v115, {81920-3072}, v113")
    a.e(f"v_add_u32 v113, {65536-1024}, v113")
    a.e("v_and_b32 v13, 15, v12"); a.e("v_lshrrev_b32 v14, 1, v13"); a.e("v_lshrrev_b32 v123, 4, v12")
    a.e("v_xor_b32 v14, v14, v123"); a.e("v_lshlrev_b32 v14, 4, v14")
    a.e("v_lshl_add_u32 v116, v13, 7, v14")
    a.e("s_and_b32 s36, s20, 3"); a.e("s_lshl_b32 s36, s36, 12")
    a.e("v_add_u32 v116, s36, v116")
    a.e("v_xor_b32 v117, 64, v116")
    a.e(f"v_add_u32 v118, {2*S2}, v116"); a.e(f"v_add_u32 v119, {2*S2}, v117")
    a.e("s_lshr_b32 s36, s20, 2"); a.e("s_lshl_b32 s36, s36, 12"); a.e("s_add_u32 s36, s36, 16384")
    a.e("v_add_u32 v121, s36, v11"); a.e(f"v_add_u32 v122, {2*S2}, v121")
    a.e("v_bfe_u32 v13, v12, 2, 2"); a.e("v_and_b32 v14, 3, v12"); a.e("v_lshl_add_u32 v13, v13, 3, v14")
    a.e("v_lshlrev_b32 v120, 1, v13")

def epi_z2a(a, cfg, G):
    T = tiles_of(G)
    S, Q = 16, 32
    zt = [n for n, t in enumerate(T) if t[0] == "z2"]
    for zi, n in enumerate(zt):
        for p in range(2):
            r0, r1 = acc(n, 2*p), acc(n, 2*p+1)
            xs = [r0, r0+2, r1, r1+2]
            gelu8(a, xs, 104)
            for k in range(4):
                s, q = S + 8*p + 2*k, Q + 8*p + 2*k
                if zi == 0: a.e(f"v_pk_mul_f32 {vr(q,2)}, {vr(xs[k],2)}, {vr(xs[k],2)}")
                else:
                    a.e(f"v_pk_add_f32 {vr(s,2)}, {vr(xs[k]-16,2)}, {vr(xs[k],2)}")
                    a.e(f"v_pk_fma_f32 {vr(q,2)}, {vr(xs[k],2)}, {vr(xs[k],2)}, {vr(q,2)}")
    a.e("s_nop 1")
    src = (lambda k: S + k) if len(zt) > 1 else (lambda k: acc(zt[0], 0) + k)
    for k in range(16): a.e(f"v_add_f32_dpp v{S+k}, v{src(k)}, v{src(k)} row_ror:8 row_mask:0xf bank_mask:0x3")
    for k in range(16): a.e(f"v_add_f32_dpp v{S+k}, v{Q+k}, v{Q+k} row_ror:8 row_mask:0xf bank_mask:0xc")
    for k in range(8): a.e(f"v_add_f32_dpp v{S+k}, v{S+k}, v{S+k} row_shl:4 row_mask:0xf bank_mask:0x5")
    for k in range(8): a.e(f"v_add_f32_dpp v{S+k}, v{S+8+k}, v{S+8+k} row_shr:4 row_mask:0xf bank_mask:0xa")
    for k in range(8): a.e(f"v_add_f32_dpp v{S+k}, v{S+k}, v{S+k} quad_perm:[1,0,3,2] row_mask:0xf bank_mask:0xf")
    for k in range(8): a.e(f"v_add_f32_dpp v{S+k}, v{S+k}, v{S+k} quad_perm:[2,3,0,1] row_mask:0xf bank_mask:0xf")
    a.e("s_mov_b32 s30, 0x11111111"); a.e("s_mov_b32 s31, 0x11111111")
    a.e("s_mov_b64 exec, s[30:31]")
    a.e(f"ds_write_b128 v2, {vr(S,4)} offset:{G*1024}")
    a.e(f"ds_write_b128 v2, {vr(S+4,4)} offset:{G*1024+16}")
    a.e("s_mov_b64 exec, -1")
    st(a, cfg, "g2")
    a.e("s_waitcnt lgkmcnt(0)")
    a.e("s_barrier")
    st(a, cfg, "s1")
    if G == 2:
        for g in range(4): a.e(f"ds_read2st64_b32 {vr(16+2*g,2)}, v3 offset0:{4*g} offset1:{4*g+2}")
        a.e("s_lshl_b32 s34, s21, 14"); a.e(f"s_add_u32 s34, s34, {STATS}")
        a.e("s_lshl_b32 s35, s22, 10"); a.e("s_add_u32 s35, s35, s34")
        a.e("s_waitcnt lgkmcnt(0)")
        a.e("v_pk_add_f32 v[16:17], v[16:17], v[18:19]")
        a.e("v_pk_add_f32 v[20:21], v[20:21], v[22:23]")
        a.e("v_pk_add_f32 v[16:17], v[16:17], v[20:21]")
        a.e(f"buffer_store_dwordx2 v[16:17], v4, {WS}, s35 offen sc1")

def epi_addr(a, G):
    a.e("v_and_b32 v1, 63, v0")
    a.e("v_bfe_u32 v2, v1, 3, 1"); a.e("v_lshlrev_b32 v2, 9, v2")
    a.e("v_bfe_u32 v3, v1, 2, 1"); a.e("v_lshl_add_u32 v2, v3, 7, v2")
    a.e("v_lshrrev_b32 v3, 4, v1"); a.e("v_lshlrev_b32 v5, 5, v3")
    a.e("s_lshl_b32 s30, s23, 8"); a.e(f"s_add_u32 s30, s30, {SS}")
    a.e("v_add_u32 v5, s30, v5")
    a.e("v_add_u32 v2, v2, v5")
    if G == 2:
        a.e("s_lshl_b32 s30, s23, 6"); a.e("v_add_u32 v4, s30, v1")
        a.e("v_lshlrev_b32 v3, 2, v4"); a.e(f"v_add_u32 v3, {SS}, v3")
        a.e("v_lshlrev_b32 v4, 3, v4")
    a.e("s_lshl_b32 s30, s23, 11"); a.e(f"s_add_u32 s30, s30, {ZS}")
    a.e("v_add_u32 v6, s30, v11")

def epi_attn(a, cfg, G):
    if G in (0, 1):
        for k in range(4): a.e(f"v_mov_b32 v{48+k}, 0x3f803f80")
        for et in range(2):
            for p in range(2): pack(a, 32 + 8*et + 4*p, acc(2+et, 2*p), acc(2+et, 2*p+1))
        for dt in range(2):
            for p in range(2):
                r0, r1 = acc(dt, 2*p), acc(dt, 2*p+1)
                phi8(a, [r0, r0+2, r1, r1+2], 104)
                pack(a, 16 + 8*dt + 4*p, r0, r1)
        a.e("s_nop 1")
        for p in range(2):
            for et in range(3):
                for dt in range(2):
                    d = vr(56 + 8*et + 4*dt, 4)
                    Bq = vr(32 + 8*et + 4*p, 4) if et < 2 else vr(48, 4)
                    a.e(f"v_mfma_f32_16x16x32_bf16 {d}, {vr(16+8*dt+4*p,4)}, {Bq}, {'0' if p == 0 else d}")
        a.e(f"s_lshl_b32 s30, s100, 1")
        if G: a.e("s_add_u32 s30, s30, 1")
        a.e("s_lshl_b32 s30, s30, 5"); a.e("s_lshl_b32 s31, s21, 1"); a.e("s_add_u32 s30, s30, s31"); a.e("s_add_u32 s30, s30, s23")
        a.e("s_mul_i32 s30, s30, 6144"); a.e(f"s_add_u32 s30, s30, {KVP}"); a.e("s_add_u32 s31, s30, 4096")
        a.e("s_nop 7")
        for k in range(6):
            a.e(f"buffer_store_dwordx4 {vr(56+4*k,4)}, v11, {WS}, s{30 + (k>>2)} offen offset:{(k&3)*1024} sc1")
    else:
        for m in range(4):
            r0, r1 = acc(0, m), acc(1, m)
            phi8(a, [r0, r0+2, r1, r1+2], 104)
            pack(a, 240 + 4*m, r0, r1)

def epi_z2b(a, cfg, G):
    T = tiles_of(G)
    if G == 2:
        for k in range(1, 4): a.e(f"s_add_u32 s{37+k}, s34, {4096*k}")
        a.e("s_mov_b32 s36, 0")
        L, X = lbl("sp"), lbl("spx")
        a.label(L)
        for k in range(16):
            a.e(f"buffer_load_dwordx2 {vr(32+2*k,2)}, v4, {WS}, s{34 if k < 4 else 37 + (k>>2)} offen offset:{(k&3)*1024} sc1")
        a.e("s_add_u32 s36, s36, 1")
        for lv in (8, 4, 2, 1):
            if lv == 8: a.e("s_waitcnt vmcnt(0)")
            for k in range(lv): a.e(f"v_pk_add_f32 {vr(32+2*k,2)}, {vr(32+2*k,2)}, {vr(32+2*(k+lv),2)}")
        a.e("v_cmp_u_f32 vcc, v32, v33")
        a.e(f"s_cmp_ge_u32 s36, {BOUND}"); a.e(f"s_cbranch_scc1 {X}")
        a.e("s_cmp_lg_u64 vcc, 0"); a.e(f"s_cbranch_scc1 {L}")
        a.label(X)
        a.e(f"v_mul_f32 v32, {f2u(1.0/1792):#x}, v32")
        a.e(f"v_mul_f32 v33, {f2u(1.0/1792):#x}, v33")
        a.e("v_fma_f32 v33, -v32, v32, v33")
        a.e("v_max_f32 v33, 0, v33")
        a.e(f"v_add_f32 v33, {f2u(1e-5):#x}, v33")
        a.e("v_rsq_f32 v33, v33")
        a.e("s_nop 0")
        a.e("v_mul_f32_e64 v32, -v32, v33")
        a.e("ds_write2st64_b32 v3, v33, v32 offset0:16 offset1:18")
        a.e("s_waitcnt lgkmcnt(0)")
    a.e("s_barrier")
    st(a, cfg, 3)
    RS, NM = 16, 32
    for p in range(2):
        for q in range(2):
            a.e(f"ds_read_b128 {vr(RS+8*p+4*q,4)}, v5 offset:{4096 + p*128 + q*16}")
            a.e(f"ds_read_b128 {vr(NM+8*p+4*q,4)}, v5 offset:{4608 + p*128 + q*16}")
    a.e("s_lshl_b32 s32, s22, 6"); a.e("s_lshl_b32 s33, s21, 2"); a.e("s_add_u32 s32, s32, s33")
    a.e("s_lshl_b32 s33, s23, 1"); a.e("s_add_u32 s32, s32, s33")
    a.e("s_mul_i32 s32, s32, 7168"); a.e(f"s_add_u32 s32, s32, {Z2N}")
    a.e("s_waitcnt lgkmcnt(0)")
    k = 0
    for n, (kind, blk, hf, pos) in enumerate(T):
        if kind != "z2": continue
        for p in range(2):
            r0, r1 = acc(n, 2*p), acc(n, 2*p+1)
            xs = [r0, r0+2, r1, r1+2]
            for u in range(4): a.e(f"v_pk_fma_f32 {vr(xs[u],2)}, {vr(xs[u],2)}, {vr(RS+8*p+2*u,2)}, {vr(NM+8*p+2*u,2)}")
            d = 80 + 4 * (k & 3); k += 1
            a.e(f"s_add_u32 s33, s32, {p*7168 + pos*1024}")
            pack(a, d, r0, r1)
            a.e(f"buffer_store_dwordx4 {vr(d,4)}, v11, {WS}, s33 offen sc1")

def epi_z1(a, cfg, G, which):
    zt = [(n, t[3]) for n, t in enumerate(tiles_of(G)) if t[0] == "z1"]
    for n, pos in zt[which:which+1]:
        for p in range(2):
            r0, r1 = acc(n, 2*p), acc(n, 2*p+1)
            gelu8(a, [r0, r0+2, r1, r1+2], 104)
            pack(a, 96 + 4*p, r0, r1)
            a.e(f"ds_write_b128 v6, {vr(96+4*p,4)} offset:{pos*4096 + p*1024}")

def acc2(n, m): return ACC + (n * 2 + m) * 4
def fw(P, m): return 24 + 8 * P + 4 * m
def fz(P, n): return 40 + 16 * P + 4 * n
def ntiles(R): return 4 if R == 0 else 3
def dmas2(R, slot):
    base = slot * S2
    out = []
    D = 3 if R == 2 else 4
    for n in range(D):
        if R == 0: g = [f"buffer_load_dwordx4 v{112+n}, {sr(SWSP,4)}, s24 offen offset:{n*1024} lds"]
        else: g = [f"buffer_load_dwordx4 v11, {WS}, s24 offen offset:{n*1024}{ASC} lds"]
        if n == 0: g = [f"s_add_u32 m0, s27, {base}", "@"] + g
        if n == D - 1:
            g.append(f"s_add_u32 s24, s24, {128 if R == 0 else 14336}")
            if ROT: g += ["s_cmp_eq_u32 s24, s25", "s_cselect_b32 s24, s26, s24"]
        out.append(g)
    return out
def reads2(R, P, slot, sub):
    hi = slot >> 1
    base = (slot & 1) * S2
    out = [f"ds_read_b128 {vr(fw(P,m),4)}, v{116+2*hi+sub} offset:{base + m*2048}" for m in range(2)]
    out += [f"ds_read_b128 {vr(fz(P,n),4)}, v{121+hi} offset:{base + sub*7168 + n*1024}" for n in range(ntiles(R))]
    if XR[1] == 1: out = out[::2]
    if XR[1] == 2: out = out[2:]
    return out
def mfmas2(R, P, first=False):
    return [f"v_mfma_f32_16x16x32_bf16 {vr(acc2(n,m),4)}, {vr(fz(P,n),4)}, {vr(fw(P,m),4)}, {'0' if first else vr(acc2(n,m),4)}"
            for n in range(ntiles(R)) for m in range(2)]
def body2(a, cfg, R, slot, DM, nwait, last=False, prebar=None, dpos=None):
    a.e(f"s_waitcnt vmcnt({nwait}) lgkmcnt(0)" if nwait is not None else "s_waitcnt lgkmcnt(0)")
    if prebar: prebar()
    if not last: a.e("s_barrier")
    d0, ds = dpos or (cfg.get("k2_d0", 1), cfg.get("k2_ds", 3))
    M = mfmas2(R, 1)
    fill = []
    if not last:
        for k, r in enumerate(reads2(R, 0, (slot + 1) & 3, 0)): fill.append((k - 1, [r]))
    h = len(DM) if last else (len(DM) + 1) // 2
    place(fill, DM[:h], d0, ds, len(M))
    interleave(a, M, fill)
    if last: return
    a.e("s_waitcnt lgkmcnt(0)")
    M = mfmas2(R, 0)
    fill = [(k - 1, [r]) for k, r in enumerate(reads2(R, 1, (slot + 1) & 3, 1))]
    place(fill, DM[h:], d0, ds, len(M))
    interleave(a, M, fill)

NS, NT3 = 8, 44
def fa3(T, sub): return 160 + 8 * (T % NS) + 4 * sub
def fw3(P, nt): return 88 + 16 * P + 4 * nt
def acc3(T, nt): return (128 if T < 16 else 144) + 4 * nt
class VM:
    def __init__(self): self.ops = []
    def add(self, tag): self.ops.append(tag)
    def need(self, tags):
        assert all(t in self.ops for t in tags), tags
        return min(63, len(self.ops) - 1 - max(i for i, t in enumerate(self.ops) if t in tags))
def aload(vm, T, sub):
    kp = 2 * T + sub - 32
    r = fa3(T, sub)
    vm.add(("A", T, sub))
    if kp >= 0 and kp % 7 == 3:
        vm.add(("A", T, sub))
        return [f"buffer_load_dwordx2 {vr(r,2)}, v225, {WS}, s24 offen{ASC}",
                f"buffer_load_dwordx2 {vr(r+2,2)}, v225, {WS}, s24 offen offset:1024{ASC}", "s_add_u32 s24, s24, 8192"]
    return [f"buffer_load_dwordx4 {vr(r,4)}, v224, {WS}, s24 offen{ASC}", "s_add_u32 s24, s24, 8192"]
def wdma(vm, T):
    vm.add(("W", T))
    return [f"s_add_u32 m0, s27, {(T % NS) * 8192}", "@",
            f"buffer_load_dwordx4 v226, {sr(SWO if T < 16 else SWOUT, 4)}, s25 offen lds",
            "s_mov_b32 s25, s40" if T == 15 else f"s_add_u32 s25, s25, {64*2048}"]
def loads3(vm, T, LA):
    out = [wdma(vm, T)]
    if T < LA: out += [aload(vm, T, 0), aload(vm, T, 1)]
    return out
def addr3(a):
    a.e("v_and_b32 v12, 63, v0")
    a.e("s_lshl_b32 s27, s20, 10")
    a.e("v_add_u32 v224, s27, v11")
    a.e("s_lshr_b32 s38, s20, 1"); a.e("s_lshl_b32 s39, s38, 11"); a.e("s_and_b32 s30, s20, 1"); a.e("s_lshl_b32 s31, s30, 3")
    a.e("s_add_u32 s39, s39, s31"); a.e("v_add_u32 v225, s39, v11")
    a.e("v_lshrrev_b32 v13, 3, v12"); a.e("v_bfe_u32 v14, v12, 4, 2"); a.e("v_lshlrev_b32 v14, 1, v14")
    a.e("v_and_b32 v15, 7, v12"); a.e("v_xor_b32 v14, v14, v15"); a.e("v_lshlrev_b32 v14, 4, v14")
    a.e("v_lshl_add_u32 v226, v13, 11, v14")
    a.e("s_lshl_b32 s39, s20, 14"); a.e("v_add_u32 v226, s39, v226")
    a.e("v_bfe_u32 v13, v12, 2, 3"); a.e("v_lshrrev_b32 v14, 5, v12"); a.e("v_lshlrev_b32 v14, 10, v14")
    a.e("v_lshl_add_u32 v14, v13, 7, v14"); a.e("v_lshrrev_b32 v13, 1, v13"); a.e("v_lshl_add_u32 v14, v13, 5, v14")
    a.e("v_and_b32 v15, 3, v12")
    a.e("v_lshl_add_u32 v227, v15, 3, v14")
    a.e("v_xor_b32 v228, 32, v227"); a.e("v_xor_b32 v229, 64, v227"); a.e("v_xor_b32 v230, 96, v227")
    a.e("v_bfe_u32 v13, v12, 2, 2"); a.e("v_lshl_add_u32 v13, v13, 3, v15"); a.e("v_lshlrev_b32 v231, 11, v13")
    a.e("v_bfe_u32 v13, v12, 4, 1"); a.e("v_lshl_add_u32 v231, v13, 5, v231")
    a.e("v_lshrrev_b32 v13, 5, v12"); a.e("v_lshl_add_u32 v231, v13, 4, v231")
    a.e("s_lshl_b32 s26, s50, 7"); a.e("s_lshl_b32 s38, s38, 5"); a.e("s_add_u32 s26, s26, s38")
    a.e("s_lshl_b32 s30, s30, 2"); a.e("s_add_u32 s26, s26, s30"); a.e("s_lshl_b32 s26, s26, 11")
    a.e("s_lshl_b32 s40, s51, 7"); a.e("s_add_u32 s26, s26, s40")
    a.e(f"s_mul_i32 s24, s50, {88*8192}"); a.e(f"s_add_u32 s24, s24, {AU}")
    a.e("s_mov_b32 s25, s40")
    a.e("s_lshl_b32 s41, s50, 4"); a.e("s_add_u32 s41, s41, 8")
    if T3:
        a.e("s_lshr_b32 s30, s2, 3"); a.e("s_lshl_b32 s30, s30, 3"); a.e("s_add_u32 s30, s30, s20"); a.e("s_lshl_b32 s30, s30, 13")
        a.e("s_and_b32 s31, s51, 8"); a.e("s_add_u32 s31, s31, 3"); a.e("s_lshl_b32 s31, s31, 7"); a.e("s_add_u32 s30, s30, s31")
        a.e("v_lshlrev_b32 v232, 11, v12"); a.e("v_add_u32 v232, s30, v232")
        a.e("v_cmp_gt_u32 vcc, 4, v12"); a.e("v_bfrev_b32 v233, 1"); a.e("v_cndmask_b32 v232, v233, v232, vcc")

def stage2(a, cfg, R, vm):
    NT = ntiles(R); D = len(dmas2(R, 0)); nw = 0 if R == 0 else 1
    LA = cfg.get("k3_la", 7); PRE = cfg.get("pre3", 3)
    a.label(f"L_r{R}")
    a.e("s_and_b32 s23, s20, 3")
    if R < 2:
        a.e("s_cmp_ge_u32 s20, 3"); a.e("s_cselect_b32 s36, 1, 0")
        a.e("s_mul_i32 s37, s36, 3"); a.e("s_sub_u32 s37, s20, s37")
        a.e("s_lshl_b32 s38, s100, 1"); a.e("s_add_u32 s38, s38, s36")
        a.e("s_mul_i32 s39, s21, 24"); a.e("s_lshl_b32 s37, s37, 3"); a.e("s_add_u32 s39, s39, s37")
        a.e("v_lshrrev_b32 v17, 3, v1"); a.e("v_add_u32 v17, s39, v17")
        a.e("v_and_b32 v18, 7, v1"); a.e("v_mul_u32_u24 v18, 24576, v18"); a.e("v_lshl_add_u32 v18, v17, 4, v18")
        a.e(f"s_mul_i32 s39, s38, {32*6144}"); a.e(f"s_add_u32 s39, s39, {KVP}")
    if R:
        a.e(f"s_mul_i32 s24, s22, {64*7168}"); a.e(f"s_add_u32 s24, s24, {Z2N}")
        a.e("s_and_b32 s27, s20, 1"); a.e(f"s_mul_i32 s27, s27, {4096 if R == 1 else 3072}")
        if R == 2: a.e("s_add_u32 s27, s27, 8192")
        a.e("s_add_u32 s24, s24, s27"); a.e("s_add_u32 s27, s27, 16384")
        if ROT:
            a.e("s_mov_b32 s26, s24"); a.e(f"s_add_u32 s25, s24, {64*7168}")
            a.e(f"s_mul_i32 s36, s21, {ROT}"); a.e("s_and_b32 s36, s36, 31"); a.e("s_mul_i32 s36, s36, 14336"); a.e("s_add_u32 s24, s24, s36")
    a.e("s_waitcnt lgkmcnt(0)")
    a.e("s_barrier")
    st(a, cfg, 4)
    if R < 2:
        for u in range(4):
            a.e(f"buffer_load_dwordx4 {vr(72+4*u,4)}, v18, {WS}, s39 offen sc1")
            if u < 3: a.e("s_add_u32 s39, s39, 6144")
    if R:
        for s in range(4):
            for grp in dmas2(R, s): emit(a, grp)
        a.e(f"s_waitcnt vmcnt({3*D})")
    a.e("s_barrier")
    st(a, cfg, "d2")
    a("; hot")
    for r in reads2(R, 0, 0, 0): a.e(r)
    a.e("s_waitcnt lgkmcnt(0)")
    interleave(a, mfmas2(R, 0, True), [(k - 1, [r]) for k, r in enumerate(reads2(R, 1, 0, 1))])
    a.e("s_mov_b32 s29, 7")
    a.label(f"L_loop2_{R}")
    for t in range(4): body2(a, cfg, R, t, dmas2(R, t), 2*D)
    a.e("s_sub_u32 s29, s29, 1")
    sides = {0: [6], 1: [6, 4, 3, 2], 2: [5, 4, 3]}[R]
    for s in sides:
        a.e(f"s_cmp_eq_u32 s29, {s}"); a.e(f"s_cbranch_scc1 L_side{R}_{s}")
    a.e("s_cmp_lg_u32 s29, 0")
    a.e(f"s_cbranch_scc1 L_loop2_{R}")
    a("; cold")
    st(a, cfg, "l2")
    addr3(a)
    E = 2
    if R == 0: poll_issue(a, "s41", 20); E = 3
    a.e("s_lshl_b32 s30, s21, 8"); a.e("s_lshl_b32 s31, s23, 6"); a.e("s_add_u32 s30, s30, s31")
    a.e(f"buffer_load_ushort v88, v120, {sr(SB,4)}, s30 offen")
    a.e(f"buffer_load_ushort v90, v120, {sr(SB,4)}, s30 offen offset:8")
    a.e(f"s_lshl_b32 s30, s23, 10"); a.e(f"s_add_u32 s30, s30, {ZS + nw*16384}"); a.e("v_add_u32 v16, s30, v11")
    a("; hot")
    tt = 1 if T3 and T3[0] >= 0 else 0
    if tt: a.e(f"buffer_load_dword v233, v232, {sr(SWO,4)}, 0 offen")
    body2(a, cfg, R, 0, [], 2*D + E + tt)
    body2(a, cfg, R, 1, [], D + E + tt)
    vm.ops = ["T3"] * tt
    L3 = []
    for T in range(PRE): L3 += loads3(vm, T, LA)
    n2 = (len(L3) * 2 + 2) // 3
    body2(a, cfg, R, 2, L3[:n2], 2 + tt, prebar=(lambda: poll_spin(a, "s41", 20, pre=True)) if R == 0 else None, dpos=(0, 2))
    body2(a, cfg, R, 3, L3[n2:], None, last=True, dpos=(0, 2))
    a("; cold")
    st(a, cfg, 5)
    for n in range(NT): a.e(f"ds_read_b128 {vr(72+4*n,4)}, v16 offset:{n*4096}")
    a.e("s_mov_b32 s33, 0xffff0000")
    a.e(f"s_mul_i32 s30, s21, {88*8192}"); a.e("s_lshl_b32 s31, s23, 11"); a.e("s_add_u32 s30, s30, s31")
    a.e(f"s_add_u32 s30, s30, {AU + 32*8192}")
    a.e("s_lshr_b32 s32, s22, 1"); a.e(f"s_mul_i32 s32, s32, {7*8192}"); a.e("s_add_u32 s30, s30, s32")
    a.e("s_and_b32 s34, s22, 1")
    a.e("s_lshl_b32 s35, s34, 15"); a.e("s_add_u32 s35, s35, s30")
    if nw == 0: a.e("s_add_u32 s39, s35, 8192")
    else:
        a.e("s_add_u32 s35, s35, 16384")
        a.e("s_lshl_b32 s39, s34, 10"); a.e("s_add_u32 s39, s39, s30"); a.e(f"s_add_u32 s39, s39, {3*8192}")
    a.e(f"s_waitcnt vmcnt({len(vm.ops)})")
    a.e("v_lshlrev_b32 v88, 16, v88"); a.e("v_lshlrev_b32 v90, 16, v90")
    a.e("v_mov_b32 v89, v88"); a.e("v_mov_b32 v91, v90")
    a.e("s_waitcnt lgkmcnt(0)")
    for n in range(NT):
        for m in range(2):
            z = 72 + 4*n + 2*m
            t = 92 + 4 * m
            a.e(f"v_lshlrev_b32 v{t}, 16, v{z}"); a.e(f"v_and_b32 v{t+1}, s33, v{z}")
            a.e(f"v_lshlrev_b32 v{t+2}, 16, v{z+1}"); a.e(f"v_and_b32 v{t+3}, s33, v{z+1}")
            r = acc2(n, m)
            for h in range(2): a.e(f"v_pk_add_f32 {vr(r+2*h,2)}, {vr(r+2*h,2)}, {vr(88+2*m,2)}")
            for h in range(2): a.e(f"v_pk_mul_f32 {vr(r+2*h,2)}, {vr(r+2*h,2)}, {vr(t+2*h,2)}")
        if n & 1:
            for m in range(2):
                d = 48 + 8 * (n >> 1) + 4 * m
                pack(a, d, acc2(n-1, m), acc2(n, m))
                a.e(f"buffer_store_dwordx4 {vr(d,4)}, v11, {WS}, s{35 if n == 1 else 39} offen offset:{m*1024} sc1")
        elif n == 2 and NT == 3:
            pack(a, 56, acc2(n, 0), acc2(n, 1))
            a.e(f"buffer_store_dwordx4 v[56:59], v11, {WS}, s39 offen sc1")
    st(a, cfg, "us")
    for k in range(3): vm.add("U")
    a.e("s_branch L_stage3")
    for s in sides:
        a.label(f"L_side{R}_{s}")
        if s == 6:
            a.e("v_lshrrev_b32 v18, 7, v17"); a.e("v_lshlrev_b32 v18, 10, v18"); a.e("v_and_b32 v19, 63, v17")
            a.e("v_lshl_add_u32 v18, v19, 4, v18"); a.e("v_bfe_u32 v19, v17, 6, 1"); a.e("v_lshl_add_u32 v18, v19, 3, v18")
            a.e("s_mul_i32 s37, s38, 3072"); a.e(f"s_add_u32 s37, s37, {KVR}")
            for h in range(2):
                a.e(f"v_pk_add_f32 {vr(72+2*h,2)}, {vr(72+2*h,2)}, {vr(76+2*h,2)}")
                a.e(f"v_pk_add_f32 {vr(80+2*h,2)}, {vr(80+2*h,2)}, {vr(84+2*h,2)}")
            for h in range(2): a.e(f"v_pk_add_f32 {vr(72+2*h,2)}, {vr(72+2*h,2)}, {vr(80+2*h,2)}")
            for ctl in ("row_half_mirror", "quad_perm:[1,0,3,2]", "quad_perm:[2,3,0,1]"):
                a.e("s_nop 1")
                for k in range(4): a.e(f"v_add_f32_dpp v{72+k}, v{72+k}, v{72+k} {ctl} row_mask:0xf bank_mask:0xf")
            a.e("v_cvt_pk_bf16_f32 v72, v72, v73"); a.e("v_cvt_pk_bf16_f32 v73, v74, v75")
            a.e("s_mov_b32 s36, 0x01010101"); a.e("s_mov_b32 exec_lo, s36"); a.e("s_mov_b32 exec_hi, s36")
            a.e(f"buffer_store_dwordx2 v[72:73], v18, {WS}, s37 offen sc1")
            a.e("s_mov_b64 exec, -1")
        kvr = [f"buffer_load_dwordx4 {vr(100+4*et,4)}, v11, {WS}, s37 offen offset:{et*1024} sc1" for et in range(3)]
        if s == 5:
            a.e("s_cmp_lg_u32 s20, 6"); a.e(f"s_cbranch_scc1 L_loop2_{R}")
            a.e("s_lshl_b32 s30, s2, 13"); a.e("v_lshlrev_b32 v124, 3, v11")
            a.e(f"buffer_load_dword v125, v124, {sr(SWO,4)}, s30 offen")
        if s == 4:
            a.e("s_lshl_b32 s38, s101, 1")
            if R == 2: a.e("s_add_u32 s38, s38, 1")
            a.e("s_mul_i32 s37, s38, 3072"); a.e(f"s_add_u32 s37, s37, {KVR}")
            for l in kvr: a.e(l)
        if s == 3:
            L, X, C = lbl("kv"), lbl("kvx"), lbl("kvc")
            a.e("s_mov_b32 s36, 0"); a.e(f"s_branch {C}")
            a.label(L)
            for l in kvr: a.e(l)
            a.e("s_waitcnt vmcnt(0)")
            a.label(C)
            a.e("v_max3_u32 v19, v100, v101, v102")
            for k in range(103, 111, 2): a.e(f"v_max3_u32 v19, v19, v{k}, v{k+1}")
            a.e("v_max_u32 v19, v19, v111")
            a.e("v_cmp_eq_u32 vcc, -1, v19")
            a.e("s_add_u32 s36, s36, 1")
            a.e(f"s_cmp_ge_u32 s36, {BOUND}"); a.e(f"s_cbranch_scc1 {X}")
            a.e("s_cmp_lg_u64 vcc, 0"); a.e(f"s_cbranch_scc1 {L}")
            a.label(X)
            for m in range(4):
                for et in range(3):
                    a.e(f"v_mfma_f32_16x16x32_bf16 {vr(160+12*m+4*et,4)}, {vr(100+4*et,4)}, {vr(240+4*m,4)}, 0")
            a.e(f"s_mul_i32 s30, s21, {88*8192}"); a.e("s_lshl_b32 s31, s38, 13"); a.e("s_add_u32 s30, s30, s31")
            a.e("s_and_b32 s31, s20, 1"); a.e("s_lshl_b32 s31, s31, 12"); a.e("s_add_u32 s30, s30, s31")
            a.e(f"s_add_u32 s30, s30, {AU}")
            a.e("s_nop 7")
            for m in range(4): a.e(f"v_add_f32 v{168+12*m}, {f2u(1e-6):#x}, v{168+12*m}")
            for m in range(4): a.e(f"v_rcp_f32 v{168+12*m}, v{168+12*m}")
            for m in range(4): a.e(f"v_mov_b32 v{169+12*m}, v{168+12*m}")
            for m in range(4):
                b = 160 + 12 * m
                for h in range(4): a.e(f"v_pk_mul_f32 {vr(b+2*h,2)}, {vr(b+2*h,2)}, {vr(b+8,2)}")
                pack(a, 208 + 4*m, b, b + 4)
                a.e(f"buffer_store_dwordx4 {vr(208+4*m,4)}, v11, {WS}, s30 offen offset:{m*1024} sc1")
        if s == 2:
            a.e("s_cmp_lg_u32 s20, 4"); a.e(f"s_cbranch_scc1 L_loop2_{R}")
            a.e("s_lshl_b32 s30, s21, 4"); a.e("s_add_u32 s30, s30, 8")
            atomic_inc(a, "s30", 20)
        a.e(f"s_branch L_loop2_{R}")

def stage3(a, cfg, vm):
    LA = cfg.get("k3_la", 7); PRE = cfg.get("pre3", 3); MID = cfg.get("mid3", 2)
    cT = 16 - LA; pT = cT - cfg.get("pollgap", 2)
    def reads(P, T, sub):
        return [f"ds_read_b64_tr_b16 {vr(fw3(P,nt)+2*h,2)}, v{227+nt} offset:{(T % NS)*8192 + sub*4096 + h*2048}" for nt in range(4) for h in range(2)][::(2 if XR[2] else 1)]
    def mfmas(P, T, sub):
        first = sub == 0 and T in (0, 16)
        return [f"v_mfma_f32_16x16x32_bf16 {vr(acc3(T,nt),4)}, {vr(fw3(P,nt),4)}, {vr(fa3(T,sub),4)}, {'0' if first else vr(acc3(T,nt),4)}" for nt in range(4)]
    a.label("L_stage3")
    for T in range(PRE, PRE + MID):
        for g in loads3(vm, T, LA): emit(a, g)
    a.e(f"s_waitcnt vmcnt({vm.need(['U'])})")
    a.e("s_barrier")
    st(a, cfg, 6)
    L = lbl("nou")
    a.e("s_cmp_lg_u32 s20, 0"); a.e(f"s_cbranch_scc1 {L}")
    a.e("s_lshl_b32 s30, s21, 4"); a.e("s_add_u32 s30, s30, 12")
    atomic_inc(a, "s30", 20)
    a.label(L)
    a.e("s_add_u32 s41, s41, 4")
    a("; hot")
    for r in reads(0, 0, 0): a.e(r)
    for T in range(PRE + MID, NS):
        for g in loads3(vm, T, LA): emit(a, g)
    a.e("s_waitcnt lgkmcnt(0)")
    interleave(a, mfmas(0, 0, 0), [(k // 2 - 1, [r]) for k, r in enumerate(reads(1, 0, 1))])
    for T in range(NT3):
        if T == NT3 - 1:
            a.e("s_waitcnt lgkmcnt(0)")
            for m in mfmas(1, T, 1): a.e(m)
            break
        if T in (cT, cT + 1, 16, 30): st(a, cfg, f"T{T}")
        if T == cT:
            L = lbl("noc")
            a.e("s_cmp_lg_u32 s20, 0"); a.e(f"s_cbranch_scc1 {L}")
            a.e(f"s_waitcnt vmcnt({len(vm.ops) - pidx})")
            poll_spin(a, "s41", 20, pre=True)
            a.label(L)
        a.e(f"s_waitcnt vmcnt({vm.need([('W',T+1),('A',T+1,0),('A',T+1,1)])}) lgkmcnt(0)")
        a.e("s_barrier")
        if T == pT:
            L = lbl("nop")
            a.e("s_cmp_lg_u32 s20, 0"); a.e(f"s_cbranch_scc1 {L}")
            poll_issue(a, "s41", 20)
            a.label(L)
            pidx = len(vm.ops)
        fill = [(k // 2 - 1, [r]) for k, r in enumerate(reads(0, T + 1, 0))]
        if T + NS < NT3:
            g = wdma(vm, T + NS); i = g.index("@")
            fill.append((0, g[:i])); fill.append((1, g[i+1:]))
        if T + LA < NT3: fill.append((3, aload(vm, T + LA, 0)))
        interleave(a, mfmas(1, T, 1), fill)
        a.e("s_waitcnt lgkmcnt(0)")
        fill = [(k // 2 - 1, [r]) for k, r in enumerate(reads(1, T + 1, 1))]
        if T + LA < NT3: fill.append((2, aload(vm, T + LA, 1)))
        if T3 and T in T3[1:]:
            vm.add("T3")
            fill.append((3, [f"buffer_load_dword v233, v232, {sr(SWOUT,4)}, 0 offen", f"v_add_u32 v232, {1024*2048}, v232"]))
        if T == NT3 - LA:
            for cp in range(2):
                vm.add(("X", cp))
                fill.append((2, [f"buffer_load_dwordx4 {vr(16+4*cp,4)}, v231, {sr(SX,4)}, s26 offen offset:{cp*64}"]))
        interleave(a, mfmas(0, T + 1, 0), fill)
    a("; cold")
    st(a, cfg, 7)
    a.e(f"s_mov_b32 s30, {f2u(-LOG2E):#x}"); a.e(f"s_mov_b32 s31, {f2u(-LOG2E):#x}")
    a.e(f"s_mov_b32 s32, 1.0"); a.e(f"s_mov_b32 s33, 1.0")
    a.e("s_mov_b32 s34, 0xffff0000")
    a.e("s_waitcnt vmcnt(0)")
    for cp in range(2):
        a.e(f"v_permlane16_swap_b32 v{16+4*cp}, v{18+4*cp}"); a.e(f"v_permlane16_swap_b32 v{17+4*cp}, v{19+4*cp}")
    a.e("s_nop 4")
    H, S, T_, X = 144, 128, 24, 40
    for k in range(8): a.e(f"v_pk_mul_f32 {vr(T_+2*k,2)}, {vr(H+2*k,2)}, s[30:31]")
    for k in range(16): a.e(f"v_exp_f32 v{T_+k}, v{T_+k}")
    for k in range(8):
        a.e(f"v_lshlrev_b32 v{X+2*k}, 16, v{16+k}"); a.e(f"v_and_b32 v{X+2*k+1}, s34, v{16+k}")
    for k in range(8): a.e(f"v_pk_add_f32 {vr(T_+2*k,2)}, {vr(T_+2*k,2)}, s[32:33]")
    for k in range(16): a.e(f"v_rcp_f32 v{T_+k}, v{T_+k}")
    for k in range(8): a.e(f"v_pk_mul_f32 {vr(H+2*k,2)}, {vr(H+2*k,2)}, {vr(S+2*k,2)}")
    for k in range(8): a.e(f"v_pk_fma_f32 {vr(X+2*k,2)}, {vr(H+2*k,2)}, {vr(T_+2*k,2)}, {vr(X+2*k,2)}")
    for cp in range(2): pack(a, 16 + 4*cp, X + 8*cp, X + 8*cp + 4)
    a.e("s_nop 1")
    for cp in range(2):
        a.e(f"v_permlane16_swap_b32 v{16+4*cp}, v{18+4*cp}"); a.e(f"v_permlane16_swap_b32 v{17+4*cp}, v{19+4*cp}")
    a.e("s_nop 1")
    for cp in range(2):
        a.e(f"buffer_store_dwordx4 {vr(16+4*cp,4)}, v231, {sr(SOUT,4)}, s26 offen offset:{cp*64}")
    if cfg.get("tim"):
        a.e("s_memrealtime s[98:99]")
        a.e(f"{'s_memrealtime' if cfg.get('rt') else 's_memtime'} s[30:31]")
        a.e("s_waitcnt lgkmcnt(0)")
        a.e("s_lshl_b32 s100, s2, 3"); a.e("s_add_u32 s100, s100, s20"); a.e("s_lshl_b32 s100, s100, 6"); a.e(f"s_add_u32 s100, s100, {TIM}")
        a.e("v_mov_b32 v0, 0")
        for k, s in enumerate([80 + 2*k for k in range(8)] + [30, 96, 98]):
            a.e(f"v_mov_b32 v1, s{s}")
            a.e(f"buffer_store_dword v1, v0, {WS}, s100 offen offset:{4*k}")
            a.e("s_nop 1")

def srd_at(a, d, b, soff, nbytes):
    a.e(f"s_add_u32 s{d}, s{b}, {soff}"); a.e(f"s_addc_u32 s{d+1}, s{b+1}, 0"); a.e(f"s_and_b32 s{d+1}, s{d+1}, 0xffff")
    a.e(f"s_mov_b32 s{d+2}, {nbytes}"); a.e(f"s_mov_b32 s{d+3}, 0x00020000")

def fused(a, cfg):
    name = KN + "_kernel"
    kernel_begin(a, name)
    a.e("s_cmp_ge_u32 s2, 256")
    a.e("s_cbranch_scc1 L_end")
    if cfg.get("tim"): a.e("s_memrealtime s[96:97]")
    st(a, cfg, 0)
    a.e("s_load_dwordx16 s[24:39], s[0:1], 0")
    a.e("s_load_dwordx4 s[40:43], s[0:1], 64")
    a.e("s_load_dwordx2 s[44:45], s[0:1], 80")
    if cfg.get("cpf", 1):
        a.e(f"s_getpc_b64 s[{STCH}:{STCH+1}]")
        a.label("L_pc")
        a.e(f"s_and_b32 s{STCH+1}, s{STCH+1}, 0xffff")
        a.e(f"s_mov_b32 s{STCH+2}, L_end-L_pc"); a.e(f"s_mov_b32 s{STCH+3}, 0x00020000")
        a.e("v_lshlrev_b32 v127, 7, v0")
        a.e(f"buffer_load_dword v127, v127, {sr(STCH,4)}, 0 offen")
    a.e("v_lshrrev_b32 v1, 6, v0")
    a.e("v_and_b32 v12, 63, v0")
    a.e("v_readfirstlane_b32 s20, v1")
    a.e("v_and_b32 v13, 7, v12"); a.e("v_lshrrev_b32 v14, 3, v12")
    a.e("v_bfe_u32 v15, v12, 2, 1"); a.e("v_and_b32 v16, 3, v12"); a.e("v_lshl_add_u32 v15, v15, 3, v16")
    a.e("v_lshlrev_b32 v64, 11, v15"); a.e("v_lshl_add_u32 v64, v14, 4, v64")
    a.e("v_and_b32 v15, 3, v14"); a.e("v_lshlrev_b32 v65, 4, v13"); a.e("v_lshl_add_u32 v65, v15, 8, v65")
    a.e("v_lshrrev_b32 v15, 2, v14"); a.e("v_lshl_add_u32 v65, v15, 13, v65")
    a.e("v_lshlrev_b32 v63, 6, v13"); a.e(f"v_add_u32 v63, {SS}, v63"); a.e("v_lshl_add_u32 v62, v1, 3, v63")
    a.e("s_and_b32 s21, s2, 1"); a.e("s_lshl_b32 s21, s21, 3"); a.e("s_bfe_u32 s46, s2, 0x30003"); a.e("s_add_u32 s21, s21, s46")
    a.e("s_bfe_u32 s22, s2, 0x20001"); a.e("s_lshl_b32 s22, s22, 2"); a.e("s_lshr_b32 s46, s2, 6"); a.e("s_add_u32 s22, s22, s46")
    m3 = cfg.get("map3", 4)
    if m3 == 4:
        a.e("s_and_b32 s50, s2, 3"); a.e("s_lshl_b32 s50, s50, 2"); a.e("s_bfe_u32 s46, s2, 0x20003"); a.e("s_add_u32 s50, s50, s46")
        a.e("s_bfe_u32 s51, s2, 0x10002"); a.e("s_lshl_b32 s51, s51, 3"); a.e("s_lshr_b32 s46, s2, 5"); a.e("s_add_u32 s51, s51, s46")
    elif m3 == 2:
        a.e("s_and_b32 s50, s2, 7"); a.e("s_lshl_b32 s50, s50, 1"); a.e("s_bfe_u32 s46, s2, 0x10003"); a.e("s_add_u32 s50, s50, s46")
        a.e("s_lshr_b32 s51, s2, 4")
    elif m3 == 8:
        a.e("s_mov_b32 s50, s21"); a.e("s_mov_b32 s51, s22")
    elif m3 == 41:
        a.e("s_and_b32 s50, s2, 3"); a.e("s_lshl_b32 s50, s50, 2"); a.e("s_bfe_u32 s46, s2, 0x20003"); a.e("s_add_u32 s50, s50, s46")
        a.e("s_bfe_u32 s51, s2, 0x10002"); a.e("s_lshr_b32 s46, s2, 5"); a.e("s_lshl_b32 s46, s46, 1"); a.e("s_add_u32 s51, s51, s46")
    m1 = cfg.get("map1", 8)
    if m1 == 4:
        a.e("s_and_b32 s21, s2, 3"); a.e("s_lshl_b32 s21, s21, 2"); a.e("s_bfe_u32 s46, s2, 0x20003"); a.e("s_add_u32 s21, s21, s46")
        a.e("s_bfe_u32 s22, s2, 0x10002"); a.e("s_lshl_b32 s22, s22, 3"); a.e("s_lshr_b32 s46, s2, 5"); a.e("s_add_u32 s22, s22, s46")
    if m1 == 81:
        a.e("s_bfe_u32 s22, s2, 0x20001"); a.e("s_lshr_b32 s46, s2, 6"); a.e("s_lshl_b32 s46, s46, 2"); a.e("s_add_u32 s22, s22, s46")
    jm = cfg.get("jm", 2)
    if jm == 0: a.e("s_mov_b32 s100, s22"); a.e("s_mov_b32 s101, s22")
    elif jm == 2:
        tk = cfg.get("tk", [3, 7, 15, 11, 2, 6, 10, 14, 1, 5, 9, 13, 0, 4, 8, 12])
        tq = cfg.get("tq", [0, 4, 8, 12, 7, 3, 15, 11, 2, 6, 10, 14, 1, 5, 9, 13])
        assert sorted(tk) == list(range(16)) and sorted(tq) == list(range(16))
        a.e("s_lshl_b32 s49, s22, 2")
        for d, t in ((100, tk), (101, tq)):
            c = sum(v << (4 * k) for k, v in enumerate(t))
            a.e(f"s_mov_b32 s46, {c & 0xffffffff:#x}"); a.e(f"s_mov_b32 s47, {c >> 32:#x}")
            a.e("s_lshr_b64 s[46:47], s[46:47], s49"); a.e(f"s_and_b32 s{d}, s46, 15")
    else:
        a.e("s_and_b32 s46, s22, 3"); a.e("s_lshl_b32 s46, s46, 2"); a.e("s_lshr_b32 s47, s22, 2")
        a.e("s_sub_u32 s100, 3, s47"); a.e("s_add_u32 s47, s100, 1"); a.e("s_and_b32 s47, s47, 3")
        a.e("s_add_u32 s100, s100, s46"); a.e("s_add_u32 s101, s47, s46")
    a.e("s_and_b32 s23, s20, 1")
    a.e("v_lshlrev_b32 v11, 4, v12")
    a.e("s_lshl_b32 s46, s20, 11"); a.e("v_add_u32 v2, s46, v11")
    a.e("v_lshrrev_b32 v13, 2, v12"); a.e("s_lshl_b32 s46, s23, 4"); a.e("v_add_u32 v13, s46, v13")
    a.e("v_bfe_u32 v14, v12, 5, 1"); a.e("v_lshlrev_b32 v14, 1, v14"); a.e("v_and_b32 v15, 3, v12"); a.e("v_xor_b32 v14, v14, v15")
    a.e("v_lshrrev_b32 v16, 1, v14")
    a.e("v_lshlrev_b32 v14, 4, v14")
    a.e("v_mul_u32_u24 v3, 6144, v13"); a.e("v_add_u32 v3, v3, v14")
    a.e("v_mul_u32_u24 v4, 7168, v13"); a.e("v_add_u32 v4, v4, v14")
    a.e("s_lshl_b32 s46, s23, 12"); a.e("v_add_u32 v5, s46, v11"); a.e(f"v_add_u32 v6, {2*S1}, v5")
    a.e("v_lshrrev_b32 v13, 5, v12"); a.e("v_mul_u32_u24 v7, 13312, v13")
    a.e("v_bfe_u32 v13, v12, 4, 1"); a.e("v_mul_u32_u24 v14, 544, v13"); a.e("v_add_u32 v7, v7, v14")
    a.e("v_bfe_u32 v14, v12, 2, 2"); a.e("v_lshl_add_u32 v7, v14, 6, v7"); a.e("v_lshl_add_u32 v7, v15, 3, v7")
    a.e("v_add_u32 v7, 8192, v7"); a.e("v_xor_b32 v8, 32, v7")
    a.e(f"v_add_u32 v9, {2*S1}, v7"); a.e(f"v_add_u32 v10, {2*S1}, v8")
    a.e("s_and_b32 s46, s22, 1"); a.e("s_cmp_eq_u32 s46, 0"); a.e("s_cselect_b32 s47, 192, 0"); a.e("s_lshl_b32 s46, s46, 5")
    a.e("v_mul_u32_u24 v15, 3552, v16"); a.e("v_add_u32 v15, v15, v4"); a.e("v_add_u32 v15, s47, v15")
    a.e("v_add_u32 v4, s46, v4")
    a.e("s_waitcnt lgkmcnt(0)")
    st(a, cfg, "ka")
    srd(a, SX, 24, 4 * MB); srd(a, SWS, 44, WS_SIZE); srd(a, SQKV, 26, 1024 * 6144); srd(a, SWIN, 32, 1024 * 7168)
    srd(a, SDBG, 42, 256); srd(a, SWSP, 34, 2048 * 4096); srd(a, SB, 36, 4096); srd(a, SWO, 28, 1024 * 2048)
    srd(a, SWOUT, 38, 1792 * 2048); srd(a, SOUT, 40, 4 * MB)
    a.e("s_lshr_b32 s46, s20, 1")
    for G in (1, 2, 3):
        a.e(f"s_cmp_eq_u32 s46, {G}"); a.e(f"s_cbranch_scc1 L_g{G}")
    vm = VM()
    for G in range(4):
        a.label(f"L_g{G}")
        D = len(dmas1(G, 0))
        a.e("s_lshl_b32 s24, s21, 18")
        a.e(f"s_lshl_b32 s25, s{101 if G == 0 else 100}, 7")
        if G & 1: a.e(f"s_add_u32 s25, s25, {2048 if G == 1 else 4096}")
        a.e("s_mul_i32 s26, s22, 224")
        a.e("s_lshl_b32 s27, s20, 11")
        a.e("s_mul_i32 s28, s23, 13312")
        TP = cfg.get("pf", 1)
        ln(a, cfg, G)
        if G < 2:
            addr2(a)
            if G == 0:
                L = lbl("nox")
                a.e("s_cmp_lg_u32 s20, 0"); a.e(f"s_cbranch_scc1 {L}")
                poll_spin(a, "s30", 66)
                a.label(L)
            a.e("s_barrier")
            st(a, cfg, 1)
            n2 = cfg.get("ln_n2", 4)
            for s in range(4):
                for grp in dmas1(G, s, "A" if s < n2 else "AB"): emit(a, grp)
            c = [2 if s < n2 else 4 for s in range(4)]
            w0 = [sum(c[1:]), sum(c[2:]), c[3] + 4, 8, 8]
        else:
            nt = touch(a, cfg, G) if cfg.get('tpos', 1) == 1 else 0
            addr2(a)
            a.e("s_barrier")
            st(a, cfg, 1)
            for s in range(cfg.get("ln_n2", 4), 4):
                for grp in dmas1(G, s): emit(a, grp)
            if cfg.get('tpos', 1) == 2: nt = touch(a, cfg, G)
            w0 = [3*D + nt, 2*D + nt, 2*D + nt, 2*D + nt, 2*D]
        a.e(f"s_waitcnt vmcnt({w0[0]})")
        a.e("s_barrier")
        st(a, cfg, "d0")
        a("; hot")
        for r in reads1(G, 0, 0): a.e(r)
        tch = G >= 2 and TP
        for t in range(4):
            step1(a, cfg, G, t, dmas1(G, t), w0[t + 1] + (NTCH(G) if tch and t else 0), first=(t == 0), extra=TOUCH(G) if tch and t == 0 else None)
        a.e("s_mov_b32 s29, 6")
        a.label(f"L_loop1_{G}")
        for t in range(4):
            step1(a, cfg, G, t, dmas1(G, t), 2*D + (NTCH(G) if tch and t else 0),
                  extra=TOUCH(G) if tch and t == 0 else None)
        a.e("s_sub_u32 s29, s29, 1"); a.e("s_cmp_lg_u32 s29, 0"); a.e(f"s_cbranch_scc1 L_loop1_{G}")
        for t in range(3): step1(a, cfg, G, t, [], [2*D, D, 0][t])
        DM = []
        if G < 2:
            a.e("s_lshl_b32 s24, s21, 19"); a.e("s_lshl_b32 s36, s20, 17"); a.e("s_add_u32 s24, s24, s36"); a.e("s_lshl_b32 s27, s20, 12")
            if ROT:
                a.e("s_mov_b32 s26, s24"); a.e("s_add_u32 s25, s24, 4096")
                a.e(f"s_mul_i32 s36, s21, {128*ROT}"); a.e("s_and_b32 s36, s36, 4095"); a.e("s_add_u32 s24, s24, s36")
            for s in range(4): DM += dmas2(0, s)
        step1(a, cfg, G, 3, DM, None, last=True, dpos=(0, 1.6) if False else (0, 2))
        a("; cold")
        st(a, cfg, 2)
        for k, c in ((42, GC1), (44, 1.0), (46, LOG2E), (48, 1e-6)):
            a.e(f"s_mov_b32 s{k}, {f2u(c):#x}"); a.e(f"s_mov_b32 s{k+1}, {f2u(c):#x}")
        a.e(f"v_mov_b32 v12, {f2u(GC0):#x}"); a.e(f"v_mov_b32 v13, {f2u(GC0):#x}")
        epi_addr(a, G)
        if G == 3 and cfg.get("t2", [3]):
            a.e("s_lshl_b32 s30, s21, 2"); a.e("s_and_b32 s31, s22, 3"); a.e("s_add_u32 s30, s30, s31"); a.e("s_lshl_b32 s30, s30, 1")
            a.e("s_add_u32 s30, s30, s23"); a.e("s_lshl_b32 s30, s30, 16")
            a.e("v_and_b32 v124, 15, v1"); a.e("v_lshlrev_b32 v124, 12, v124"); a.e("v_lshrrev_b32 v125, 4, v1"); a.e("v_lshl_add_u32 v124, v125, 10, v124")
            if cfg.get("t2h", 4) < 4:
                a.e(f"v_cmp_gt_u32 vcc, {16 * cfg['t2h']}, v1"); a.e("v_bfrev_b32 v125, 1"); a.e("v_cndmask_b32 v124, v125, v124, vcc")
            for c in cfg.get("t2", [3]): a.e(f"buffer_load_dword v125, v124, {sr(SWSP,4)}, s30 offen offset:{128*c}")
        epi_z2a(a, cfg, G)
        epi_attn(a, cfg, G)
        st(a, cfg, "at")
        epi_z2b(a, cfg, G)
        st(a, cfg, "zs")
        epi_z1(a, cfg, G, 0)
        st(a, cfg, "z1")
        a.e("s_waitcnt vmcnt(0)")
        a.e("s_barrier")
        st(a, cfg, "s3")
        if G == 0:
            L = lbl("noz")
            a.e("s_cmp_lg_u32 s20, 0"); a.e(f"s_cbranch_scc1 {L}")
            a.e("s_lshl_b32 s30, s22, 4"); a.e("s_add_u32 s30, s30, 4")
            atomic_inc(a, "s30", 20)
            poll_spin(a, "s30", 20)
            a.label(L)
        epi_z1(a, cfg, G, 1)
        if G == 0: a.e("s_branch L_r0")
        else: stage2(a, cfg, G - 1, vm)
    stage3(a, cfg, vm)
    a.label("L_end")
    a.e("s_endpgm")
    return (name, "(256,1,1)", "(512,1,1)", LDS, dict(vgpr=256, sgpr=102, accum=256))

def gen(cfg):
    global BOUND, SLEEP, ASC, XR, ROT, T3, LT
    LT = cfg.get('lt', 1)
    T3 = cfg.get('t3', [0, 2, 16])
    ROT = cfg.get('rot', 0)
    XR = cfg.get('xr', [0, 0, 0])
    ASC = '' if cfg.get('nosc1') else ' sc1'
    BOUND = cfg.get('bound', 6000); SLEEP = cfg.get('sleep', 0)
    Lbl.n = 0
    body = Asm()
    name, g, b, lds, d = fused(body, cfg)
    a = Asm()
    a(f"; @launch grid={g} block={b} lds={lds}")
    a('.amdgcn_target "amdgcn-amd-amdhsa--gfx950"')
    a.lines += [l.strip() if l.startswith("    ") else l for l in body.lines]
    kernel_desc(a, name, **d)
    t = a.text()
    if cfg.get("align", 1):
        from align import align
        t, nfix = align(t)
        if cfg.get("verbose"): print("align fixes (e64, nop, left):", nfix)
    return t
if __name__ == "__main__":
    import sys, json
    cfg = json.loads(sys.argv[2]) if len(sys.argv) > 2 else {}
    if "k1_d" in cfg: cfg["k1_d"] = {int(k): v for k, v in cfg["k1_d"].items()}
    open(sys.argv[1], "w").write(gen(cfg))
```

```python
from gen_common import *
from gen_k1 import gelu8, phi8, pack
import gen_k1
S1 = 34 * 1024
S2 = 30 * 1024
ZS = 4 * S2
SS = ZS + 28 * 1024
CNT = SS + 5 * 1024
LDS = 160 * 1024
BOUND = 6000
SWS, SDBG, SQKV, SWIN, SX, SWSP, SB, SWO, SWOUT, SOUT, STCH = 16, 4, 8, 12, 52, 56, 60, 64, 68, 72, 76
WS, DBG = sr(SWS, 4), sr(SDBG, 4)
ACC = 128
def st(a, cfg, name):
    names = cfg.get("stamps", [0, 1, 2, 3, 4, 5, 6, 7])
    if cfg.get("tim") and name in names:
        idx = names.index(name)
        a.e(f"{'s_memrealtime' if cfg.get('rt') else 's_memtime'} s[{80+2*idx}:{81+2*idx}]")
def emit(a, grp):
    for ins in grp: a.e("s_nop 0" if ins == "@" else ins)
class Lbl:
    n = 0
def lbl(p):
    Lbl.n += 1; return f"L_{p}_{Lbl.n}"
def atomic_inc(a, soff, t=12):
    a.e(f"v_mov_b32 v{t}, 1"); a.e(f"v_mov_b32 v{t+1}, 0")
    a.e("s_mov_b64 exec, 1")
    a.e(f"buffer_atomic_add v{t}, v{t+1}, {DBG}, {soff} offen sc1")
    a.e("s_mov_b64 exec, -1")
def poll_issue(a, soff, t):
    a.e(f"v_mov_b32 v{t+1}, 0")
    a.e("s_mov_b64 exec, 1")
    a.e(f"buffer_load_dword v{t}, v{t+1}, {DBG}, {soff} offen sc1")
    a.e("s_mov_b64 exec, -1")
def poll_spin(a, soff, t, pre=False):
    L, X, C = lbl("poll"), lbl("pollx"), lbl("pollc")
    a.e("s_mov_b32 s36, 0")
    if pre: a.e(f"s_branch {C}")
    a.label(L)
    if SLEEP: a.e(f"s_sleep {SLEEP}")
    poll_issue(a, soff, t)
    a.e("s_waitcnt vmcnt(0)")
    a.label(C)
    a.e(f"v_readfirstlane_b32 s37, v{t}")
    a.e("s_add_u32 s36, s36, 1")
    a.e("s_cmp_ge_u32 s37, 16")
    a.e(f"s_cbranch_scc1 {X}")
    a.e(f"s_cmp_lt_u32 s36, {BOUND}")
    a.e(f"s_cbranch_scc1 {L}")
    a.label(X)

def acc(n, m): return ACC + (n * 4 + m) * 4
def fa(P, m): return 16 + 16 * P + 4 * m
def fb(P, n): return 48 + 28 * P + 4 * n
def tiles_of(G):
    z1 = lambda p: ("z1", 6 + p // 2 if p < 6 else 9, p & 1 if p < 6 else 0, p)
    z2 = lambda p: ("z2", 10 + p // 2 if p < 6 else 9, p & 1 if p < 6 else 1, p)
    if G == 0: return [("k", 2, 0, 0), ("k", 2, 1, 1), ("v", 4, 0, 0), ("v", 4, 1, 1), z2(0), z2(1), z1(0)]
    if G == 1: return [("k", 3, 0, 0), ("k", 3, 1, 1), ("v", 5, 0, 0), ("v", 5, 1, 1), z2(2), z1(1), z1(2)]
    if G == 2: return [("q", 0, 0, 0), ("q", 0, 1, 1), z2(3), z2(4), z1(3), z1(4)]
    if G == 3: return [("q", 1, 0, 0), ("q", 1, 1, 1), z2(5), z2(6), z1(5), z1(6)]
def dmas1(G, slot, which="AB"):
    out = []
    base = slot * S1
    def B(c, imm, v, srd_, so):
        return [f"s_add_u32 m0, s28, {base + 8192 + c*1024 - imm}", "@",
                f"buffer_load_dwordx4 v{v}, {sr(srd_,4)}, s{so} offen offset:{imm} lds"]
    if G in (0, 1):
        if "A" in which:
            out.append([f"s_add_u32 m0, s27, {base}", "@", f"buffer_load_dwordx4 v2, {WS}, s24 offen{ASC} lds"])
            out.append([f"buffer_load_dwordx4 v2, {WS}, s24 offen offset:1024{ASC} lds", "s_add_u32 s24, s24, 8192"])
        if "B" in which:
            c0 = 0 if G == 0 else 2
            out.append(B(c0, 0, 3, SQKV, 25))
            out.append(B(c0 + 1, 64, 3, SQKV, 25) + [f"s_add_u32 s25, s25, {32*6144}"])
    if G == 2:
        for c in range(3): out.append(B(6 + c, 64 * c, 4, SWIN, 26))
        out.append(B(9, 0, 15, SWIN, 26) + [f"s_add_u32 s26, s26, {32*7168}"])
    if G == 3:
        out.append(B(4, 0, 3, SQKV, 25))
        out.append(B(5, 64, 3, SQKV, 25) + [f"s_add_u32 s25, s25, {32*6144}"])
        for c in range(3): out.append(B(10 + c, 3584 + 64 * c, 4, SWIN, 26))
        out[-1].append(f"s_add_u32 s26, s26, {32*7168}")
    return out
def reads1(G, P, slot):
    hi = slot >> 1
    base = (slot & 1) * S1
    out = [f"ds_read_b128 {vr(fa(P,m),4)}, v{5+hi} offset:{base + m*1024}" for m in range(4)]
    for n, (kind, blk, hf, zn) in enumerate(tiles_of(G)):
        for h in range(2):
            out.append(f"ds_read_b64_tr_b16 {vr(fb(P,n)+2*h,2)}, v{7+2*hi+hf} offset:{base + blk*1024 + h*256}")
    if XR[0] == 1: out = out[::2]
    if XR[0] == 2: out = out[4:]
    return out
def mfmas1(G, P, first=False):
    out = []
    for n, (kind, blk, hf, zn) in enumerate(tiles_of(G)):
        for m in range(4):
            A, Bq = vr(fa(P, m), 4), vr(fb(P, n), 4)
            if kind in ("q", "z1"): A, Bq = Bq, A
            out.append(f"v_mfma_f32_16x16x32_bf16 {vr(acc(n,m),4)}, {A}, {Bq}, {'0' if first else vr(acc(n,m),4)}")
    return out
def place(fill, DM, d0, ds, nM):
    used = set()
    for k, grp in enumerate(DM):
        p = min(d0 + k * ds, nM - 2)
        if "@" in grp:
            assert p not in used; used.add(p)
            i = grp.index("@")
            fill.append((p, grp[:i])); fill.append((p + 1, grp[i+1:]))
        else:
            fill.append((p + 1, grp))
def step1(a, cfg, G, t, DM, nwait, first=False, last=False, extra=None, dpos=None):
    P = t & 1
    a.e(f"s_waitcnt vmcnt({nwait}) lgkmcnt(0)" if nwait is not None else "s_waitcnt lgkmcnt(0)")
    a.e("s_barrier")
    M = mfmas1(G, P, first)
    fill = []
    if not last:
        r0 = cfg.get("k1_r0", 0); rs = cfg.get("k1_rs", 1.0)
        for k, r in enumerate(reads1(G, P ^ 1, (t + 1) & 3)): fill.append((int(r0 + k * rs), [r]))
    d0, ds = dpos or cfg.get("k1_d", {}).get(G, (2, 5))
    place(fill, DM, d0, ds, len(M))
    if extra: fill.append((len(M) - 1, extra))
    interleave(a, M, fill)

def TOUCH(G):
    t = [f"buffer_load_dword v125, v124, s[76:79], 0 offen", "v_add_u32 v124, s3, v124"]
    if G == 2 and LT: t += [f"buffer_load_dword v125, v126, s[76:79], 0 offen", "v_add_u32 v126, s3, v126"]
    return t
def NTCH(G): return 2 if G == 2 and LT else 1
def touch(a, cfg, G):
    if G < 2 or not cfg.get("pf", 1): return 0
    L, L2 = lbl("t"), lbl("t")
    a.e("s_cmp_lg_u32 s23, 0"); a.e(f"s_cbranch_scc1 {L}")
    for mw in range(2):
        if G == 2:
            sb, stride = ((SQKV, 6144), (SWIN, 7168))[mw]
            n = stride // 256
            srd_at(a, STCH, sb, 128 * stride, 896 * stride)
            a.e(f"s_mov_b32 s3, {128 * stride}")
            if LT:
                a.e("s_and_b32 s46, s21, 7"); a.e("s_lshl_b32 s46, s46, 4"); a.e("v_and_b32 v124, 15, v12"); a.e("v_add_u32 v124, s46, v124")
                a.e(f"v_mul_u32_u24 v124, {stride}, v124"); a.e("v_lshrrev_b32 v125, 4, v12")
                if mw == 0:
                    a.e("v_lshl_add_u32 v124, v125, 11, v124"); a.e("s_lshl_b32 s46, s101, 7"); a.e("s_lshl_b32 s47, s100, 7")
                    a.e("v_mov_b32 v125, s47"); a.e("v_mov_b32 v126, s46"); a.e("v_cmp_gt_u32 vcc, 16, v12"); a.e("v_cndmask_b32 v125, v125, v126, vcc")
                else:
                    a.e("v_lshlrev_b32 v125, 7, v125"); a.e("v_min_u32 v125, 220, v125"); a.e("s_mul_i32 s46, s22, 224"); a.e("v_add_u32 v125, s46, v125")
                a.e("v_add_u32 v124, v124, v125")
                a.e("v_cmp_gt_u32 vcc, 48, v12"); a.e("v_bfrev_b32 v126, 1"); a.e("v_cndmask_b32 v124, v126, v124, vcc")
                if mw: a.e("v_add_u32 v126, 3584, v124")
                if mw == 0: a.e(f"s_branch {L2}"); a.label(L)
                continue
            a.e(f"s_mul_i32 s46, s2, {n}"); a.e("v_add_u32 v124, s46, v12"); a.e("v_lshlrev_b32 v124, 7, v124")
            a.e(f"v_cmp_gt_u32 vcc, {n}, v12"); a.e("v_bfrev_b32 v125, 1"); a.e("v_cndmask_b32 v124, v125, v124, vcc")
        else:
            sb, n = ((SWSP, 32768), (SWOUT, 14336))[mw]
            a.e(f"s_mul_i32 s46, s2, {n}"); srd_at(a, STCH, sb, "s46", n)
            a.e("s_mov_b32 s3, 8192"); a.e("v_lshlrev_b32 v124, 7, v12")
        if mw == 0: a.e(f"s_branch {L2}"); a.label(L)
    a.label(L2)
    if G == 3:
        tl = cfg.get("tlb", 0)
        if tl:
            a.e(f"v_lshlrev_b32 v126, {tl}, v12"); a.e(f"s_lshl_b32 s46, s23, {tl + 6}"); a.e(f"s_add_u32 s46, s46, {Z2N}")
            a.e(f"buffer_load_dword v125, v126, {WS}, s46 offen sc1")
            a.e("v_lshlrev_b32 v126, 12, v12"); a.e("s_lshl_b32 s46, s50, 18")
            a.e(f"buffer_load_dword v125, v126, {sr(SOUT,4)}, s46 offen")
            return 2
        return 0
    for t in range(cfg.get("tn", 1)): emit(a, TOUCH(G))
    return cfg.get("tn", 1) * NTCH(G)

def ln(a, cfg, G):
    LO, SO, T = 64, 65, 66
    wh = "B" if G < 2 else "AB"
    n0, n1 = cfg.get("ln_n0", 1), cfg.get("ln_n1", 1)
    a.e("s_lshr_b32 s30, s22, 1"); a.e("s_and_b32 s31, s22, 1")
    a.e("s_lshl_b32 s32, s21, 2"); a.e("s_lshr_b32 s33, s30, 1"); a.e("s_add_u32 s32, s32, s33"); a.e("s_lshl_b32 s32, s32, 5")
    a.e("s_and_b32 s33, s30, 1"); a.e("s_lshl_b32 s33, s33, 2"); a.e("s_add_u32 s32, s32, s33")
    a.e("s_lshl_b32 s33, s31, 4"); a.e("s_add_u32 s32, s32, s33")
    a.e("s_lshl_b32 s32, s32, 11"); a.e("s_lshl_b32 s33, s20, 8"); a.e("s_add_u32 s32, s32, s33")
    for n in range(2):
        a.e(f"buffer_load_dwordx4 v[{16+4*n}:{19+4*n}], v{LO}, {sr(SX,4)}, s32 offen offset:{128*n}")
    nv = touch(a, cfg, G) if cfg.get("tpos", 1) == 0 else 0
    for s in range(n0):
        for grp in dmas1(G, s, wh): emit(a, grp); nv += 1
    if G == 0:
        a.e("s_lshl_b32 s33, s21, 4"); a.e("s_add_u32 s33, s33, s22"); a.e("s_lshl_b32 s33, s33, 10")
        a.e(f"s_add_u32 s33, s33, {STATS}")
        a.e("s_mul_i32 s34, s100, 6144"); a.e("s_mul_i32 s35, s21, 384"); a.e("s_add_u32 s34, s34, s35")
        a.e(f"s_add_u32 s34, s34, {KVR}")
        a.e("s_cmp_eq_u32 s23, 0")
        a.e("s_cselect_b32 s33, s33, s34")
        a.e("s_cselect_b32 s34, 63, 23")
        a.e(f"v_min_u32 v{T+2}, s34, v12"); a.e(f"v_lshlrev_b32 v{T+2}, 4, v{T+2}")
        for k in range(4): a.e(f"v_mov_b32 v{72+k}, -1")
        a.e(f"buffer_store_dwordx4 v[72:75], v{T+2}, {WS}, s33 offen sc1")
        nv += 1
    a.e("s_lshl_b32 s32, s21, 18"); a.e("s_lshl_b32 s33, s30, 10"); a.e("s_add_u32 s32, s32, s33")
    a.e("s_lshl_b32 s33, s31, 7"); a.e("s_add_u32 s32, s32, s33")
    a.e("s_lshl_b32 s33, s20, 15"); a.e("s_add_u32 s32, s32, s33")
    a.e("s_add_u32 s33, s32, 16384")
    a.e("s_mov_b32 s36, 0xffff0000")
    st(a, cfg, "dma")
    a.e(f"s_waitcnt vmcnt({nv})")
    st(a, cfg, "x")
    if cfg.get("tpos", 1) == 3: touch(a, cfg, G)
    for k in range(8):
        a.e(f"v_lshlrev_b32 v{32+2*k}, 16, v{16+k}")
        a.e(f"v_and_b32 v{33+2*k}, s36, v{16+k}")
    x = lambda k: vr(32 + 2*k, 2)
    p0, p1 = vr(T, 2), vr(T+2, 2)
    a.e(f"v_pk_add_f32 {p0}, {x(0)}, {x(1)}"); a.e(f"v_pk_mul_f32 {p1}, {x(0)}, {x(0)}")
    for k in range(1, 8):
        if k > 1: a.e(f"v_pk_add_f32 {p0}, {p0}, {x(k)}")
        a.e(f"v_pk_fma_f32 {p1}, {x(k)}, {x(k)}, {p1}")
    a.e(f"v_add_f32 v{T}, v{T}, v{T+1}"); a.e(f"v_add_f32 v{T+1}, v{T+2}, v{T+3}")
    a.e("s_nop 1")
    for k in range(2): a.e(f"v_add_f32_dpp v{T+k}, v{T+k}, v{T+k} row_ror:8 row_mask:0xf bank_mask:0xf")
    for op in ("v_permlane16_swap_b32", "v_permlane32_swap_b32"):
        for k in range(2): a.e(f"v_mov_b32 v{T+2+k}, v{T+k}")
        a.e("s_nop 1")
        for k in range(2): a.e(f"{op} v{T+2+k}, v{T+k}")
        a.e("s_nop 1")
        a.e(f"v_pk_add_f32 {p0}, {p0}, {p1}")
    a.e("s_mov_b64 exec, 0xff")
    a.e(f"ds_write_b64 v62, {p0}")
    a.e("s_mov_b64 exec, -1")
    a.e("s_waitcnt lgkmcnt(0)")
    a.e("s_barrier")
    for k in range(4): a.e(f"ds_read_b128 {vr(16+4*k,4)}, v63 offset:{16*k}")
    a.e("s_waitcnt lgkmcnt(0)")
    for lv in (4, 2, 1):
        for k in range(lv): a.e(f"v_pk_add_f32 {vr(16+2*k,2)}, {vr(16+2*k,2)}, {vr(16+2*(k+lv),2)}")
    a.e(f"v_mul_f32 v16, {f2u(1.0/1024):#x}, v16"); a.e(f"v_mul_f32 v17, {f2u(1.0/1024):#x}, v17")
    a.e("v_fma_f32 v17, -v16, v16, v17"); a.e("v_max_f32 v17, 0, v17"); a.e(f"v_add_f32 v17, {f2u(1e-5):#x}, v17")
    a.e("v_rsq_f32 v18, v17")
    a.e("v_mul_f32 v16, -1.0, v16")
    a.e("v_mov_b32 v17, v16"); a.e("v_mov_b32 v19, v18")
    for k in range(8): a.e(f"v_pk_add_f32 {x(k)}, {x(k)}, v[16:17]")
    for k in range(8): a.e(f"v_pk_mul_f32 {x(k)}, {x(k)}, v[18:19]")
    for k in range(8): a.e(f"v_cvt_pk_bf16_f32 v{20+k}, v{32+2*k}, v{33+2*k}")
    for n in range(2):
        a.e(f"buffer_store_dwordx4 v[{20+4*n}:{23+4*n}], v{SO}, {WS}, s{32+n} offen sc1")
    nv = 0
    for s in range(n0, n0 + n1):
        for grp in dmas1(G, s, wh): emit(a, grp); nv += 1
    a.e("s_lshl_b32 s30, s21, 4")
    st(a, cfg, "ln")
    a.e(f"s_waitcnt vmcnt({nv})")
    a.e("s_barrier")
    st(a, cfg, "xn")
    if G == 0:
        L = lbl("noarr")
        a.e("s_cmp_lg_u32 s20, 0"); a.e(f"s_cbranch_scc1 {L}")
        atomic_inc(a, "s30", T)
        a.label(L)
    for s in range(n0 + n1, cfg.get("ln_n2", 4)):
        for grp in dmas1(G, s, wh): emit(a, grp)

def addr2(a):
    a.e("v_lshrrev_b32 v13, 3, v12"); a.e("v_lshrrev_b32 v14, 5, v12"); a.e("v_and_b32 v123, 3, v13")
    a.e("v_lshl_add_u32 v14, v14, 3, v123"); a.e("v_lshlrev_b32 v14, 12, v14")
    a.e("v_lshrrev_b32 v13, 4, v12"); a.e("v_and_b32 v123, 7, v12"); a.e("v_xor_b32 v13, v13, v123")
    a.e("v_lshl_add_u32 v112, v13, 4, v14")
    a.e("v_xor_b32 v113, 64, v112")
    a.e(f"v_add_u32 v114, {16384-2048}, v112")
    a.e(f"v_add_u32 v115, {81920-3072}, v113")
    a.e(f"v_add_u32 v113, {65536-1024}, v113")
    a.e("v_and_b32 v13, 15, v12"); a.e("v_lshrrev_b32 v14, 1, v13"); a.e("v_lshrrev_b32 v123, 4, v12")
    a.e("v_xor_b32 v14, v14, v123"); a.e("v_lshlrev_b32 v14, 4, v14")
    a.e("v_lshl_add_u32 v116, v13, 7, v14")
    a.e("s_and_b32 s36, s20, 3"); a.e("s_lshl_b32 s36, s36, 12")
    a.e("v_add_u32 v116, s36, v116")
    a.e("v_xor_b32 v117, 64, v116")
    a.e(f"v_add_u32 v118, {2*S2}, v116"); a.e(f"v_add_u32 v119, {2*S2}, v117")
    a.e("s_lshr_b32 s36, s20, 2"); a.e("s_lshl_b32 s36, s36, 12"); a.e("s_add_u32 s36, s36, 16384")
    a.e("v_add_u32 v121, s36, v11"); a.e(f"v_add_u32 v122, {2*S2}, v121")
    a.e("v_bfe_u32 v13, v12, 2, 2"); a.e("v_and_b32 v14, 3, v12"); a.e("v_lshl_add_u32 v13, v13, 3, v14")
    a.e("v_lshlrev_b32 v120, 1, v13")

def epi_z2a(a, cfg, G):
    T = tiles_of(G)
    S, Q = 16, 32
    zt = [n for n, t in enumerate(T) if t[0] == "z2"]
    for zi, n in enumerate(zt):
        for p in range(2):
            r0, r1 = acc(n, 2*p), acc(n, 2*p+1)
            xs = [r0, r0+2, r1, r1+2]
            gelu8(a, xs, 104)
            for k in range(4):
                s, q = S + 8*p + 2*k, Q + 8*p + 2*k
                if zi == 0: a.e(f"v_pk_mul_f32 {vr(q,2)}, {vr(xs[k],2)}, {vr(xs[k],2)}")
                else:
                    a.e(f"v_pk_add_f32 {vr(s,2)}, {vr(xs[k]-16,2)}, {vr(xs[k],2)}")
                    a.e(f"v_pk_fma_f32 {vr(q,2)}, {vr(xs[k],2)}, {vr(xs[k],2)}, {vr(q,2)}")
    a.e("s_nop 1")
    src = (lambda k: S + k) if len(zt) > 1 else (lambda k: acc(zt[0], 0) + k)
    for k in range(16): a.e(f"v_add_f32_dpp v{S+k}, v{src(k)}, v{src(k)} row_ror:8 row_mask:0xf bank_mask:0x3")
    for k in range(16): a.e(f"v_add_f32_dpp v{S+k}, v{Q+k}, v{Q+k} row_ror:8 row_mask:0xf bank_mask:0xc")
    for k in range(8): a.e(f"v_add_f32_dpp v{S+k}, v{S+k}, v{S+k} row_shl:4 row_mask:0xf bank_mask:0x5")
    for k in range(8): a.e(f"v_add_f32_dpp v{S+k}, v{S+8+k}, v{S+8+k} row_shr:4 row_mask:0xf bank_mask:0xa")
    for k in range(8): a.e(f"v_add_f32_dpp v{S+k}, v{S+k}, v{S+k} quad_perm:[1,0,3,2] row_mask:0xf bank_mask:0xf")
    for k in range(8): a.e(f"v_add_f32_dpp v{S+k}, v{S+k}, v{S+k} quad_perm:[2,3,0,1] row_mask:0xf bank_mask:0xf")
    a.e("s_mov_b32 s30, 0x11111111"); a.e("s_mov_b32 s31, 0x11111111")
    a.e("s_mov_b64 exec, s[30:31]")
    a.e(f"ds_write_b128 v2, {vr(S,4)} offset:{G*1024}")
    a.e(f"ds_write_b128 v2, {vr(S+4,4)} offset:{G*1024+16}")
    a.e("s_mov_b64 exec, -1")
    st(a, cfg, "g2")
    a.e("s_waitcnt lgkmcnt(0)")
    a.e("s_barrier")
    st(a, cfg, "s1")
    if G == 2:
        for g in range(4): a.e(f"ds_read2st64_b32 {vr(16+2*g,2)}, v3 offset0:{4*g} offset1:{4*g+2}")
        a.e("s_lshl_b32 s34, s21, 14"); a.e(f"s_add_u32 s34, s34, {STATS}")
        a.e("s_lshl_b32 s35, s22, 10"); a.e("s_add_u32 s35, s35, s34")
        a.e("s_waitcnt lgkmcnt(0)")
        a.e("v_pk_add_f32 v[16:17], v[16:17], v[18:19]")
        a.e("v_pk_add_f32 v[20:21], v[20:21], v[22:23]")
        a.e("v_pk_add_f32 v[16:17], v[16:17], v[20:21]")
        a.e(f"buffer_store_dwordx2 v[16:17], v4, {WS}, s35 offen sc1")

def epi_addr(a, G):
    a.e("v_and_b32 v1, 63, v0")
    a.e("v_bfe_u32 v2, v1, 3, 1"); a.e("v_lshlrev_b32 v2, 9, v2")
    a.e("v_bfe_u32 v3, v1, 2, 1"); a.e("v_lshl_add_u32 v2, v3, 7, v2")
    a.e("v_lshrrev_b32 v3, 4, v1"); a.e("v_lshlrev_b32 v5, 5, v3")
    a.e("s_lshl_b32 s30, s23, 8"); a.e(f"s_add_u32 s30, s30, {SS}")
    a.e("v_add_u32 v5, s30, v5")
    a.e("v_add_u32 v2, v2, v5")
    if G == 2:
        a.e("s_lshl_b32 s30, s23, 6"); a.e("v_add_u32 v4, s30, v1")
        a.e("v_lshlrev_b32 v3, 2, v4"); a.e(f"v_add_u32 v3, {SS}, v3")
        a.e("v_lshlrev_b32 v4, 3, v4")
    a.e("s_lshl_b32 s30, s23, 11"); a.e(f"s_add_u32 s30, s30, {ZS}")
    a.e("v_add_u32 v6, s30, v11")

def epi_attn(a, cfg, G):
    if G in (0, 1):
        for k in range(4): a.e(f"v_mov_b32 v{48+k}, 0x3f803f80")
        for et in range(2):
            for p in range(2): pack(a, 32 + 8*et + 4*p, acc(2+et, 2*p), acc(2+et, 2*p+1))
        for dt in range(2):
            for p in range(2):
                r0, r1 = acc(dt, 2*p), acc(dt, 2*p+1)
                phi8(a, [r0, r0+2, r1, r1+2], 104)
                pack(a, 16 + 8*dt + 4*p, r0, r1)
        a.e("s_nop 1")
        for p in range(2):
            for et in range(3):
                for dt in range(2):
                    d = vr(56 + 8*et + 4*dt, 4)
                    Bq = vr(32 + 8*et + 4*p, 4) if et < 2 else vr(48, 4)
                    a.e(f"v_mfma_f32_16x16x32_bf16 {d}, {vr(16+8*dt+4*p,4)}, {Bq}, {'0' if p == 0 else d}")
        a.e(f"s_lshl_b32 s30, s100, 1")
        if G: a.e("s_add_u32 s30, s30, 1")
        a.e("s_lshl_b32 s30, s30, 5"); a.e("s_lshl_b32 s31, s21, 1"); a.e("s_add_u32 s30, s30, s31"); a.e("s_add_u32 s30, s30, s23")
        a.e("s_mul_i32 s30, s30, 6144"); a.e(f"s_add_u32 s30, s30, {KVP}"); a.e("s_add_u32 s31, s30, 4096")
        a.e("s_nop 7")
        for k in range(6):
            a.e(f"buffer_store_dwordx4 {vr(56+4*k,4)}, v11, {WS}, s{30 + (k>>2)} offen offset:{(k&3)*1024} sc1")
    else:
        for m in range(4):
            r0, r1 = acc(0, m), acc(1, m)
            phi8(a, [r0, r0+2, r1, r1+2], 104)
            pack(a, 240 + 4*m, r0, r1)

def epi_z2b(a, cfg, G):
    T = tiles_of(G)
    if G == 2:
        for k in range(1, 4): a.e(f"s_add_u32 s{37+k}, s34, {4096*k}")
        a.e("s_mov_b32 s36, 0")
        L, X = lbl("sp"), lbl("spx")
        a.label(L)
        for k in range(16):
            a.e(f"buffer_load_dwordx2 {vr(32+2*k,2)}, v4, {WS}, s{34 if k < 4 else 37 + (k>>2)} offen offset:{(k&3)*1024} sc1")
        a.e("s_add_u32 s36, s36, 1")
        for lv in (8, 4, 2, 1):
            if lv == 8: a.e("s_waitcnt vmcnt(0)")
            for k in range(lv): a.e(f"v_pk_add_f32 {vr(32+2*k,2)}, {vr(32+2*k,2)}, {vr(32+2*(k+lv),2)}")
        a.e("v_cmp_u_f32 vcc, v32, v33")
        a.e(f"s_cmp_ge_u32 s36, {BOUND}"); a.e(f"s_cbranch_scc1 {X}")
        a.e("s_cmp_lg_u64 vcc, 0"); a.e(f"s_cbranch_scc1 {L}")
        a.label(X)
        a.e(f"v_mul_f32 v32, {f2u(1.0/1792):#x}, v32")
        a.e(f"v_mul_f32 v33, {f2u(1.0/1792):#x}, v33")
        a.e("v_fma_f32 v33, -v32, v32, v33")
        a.e("v_max_f32 v33, 0, v33")
        a.e(f"v_add_f32 v33, {f2u(1e-5):#x}, v33")
        a.e("v_rsq_f32 v33, v33")
        a.e("s_nop 0")
        a.e("v_mul_f32_e64 v32, -v32, v33")
        a.e("ds_write2st64_b32 v3, v33, v32 offset0:16 offset1:18")
        a.e("s_waitcnt lgkmcnt(0)")
    a.e("s_barrier")
    st(a, cfg, 3)
    RS, NM = 16, 32
    for p in range(2):
        for q in range(2):
            a.e(f"ds_read_b128 {vr(RS+8*p+4*q,4)}, v5 offset:{4096 + p*128 + q*16}")
            a.e(f"ds_read_b128 {vr(NM+8*p+4*q,4)}, v5 offset:{4608 + p*128 + q*16}")
    a.e("s_lshl_b32 s32, s22, 6"); a.e("s_lshl_b32 s33, s21, 2"); a.e("s_add_u32 s32, s32, s33")
    a.e("s_lshl_b32 s33, s23, 1"); a.e("s_add_u32 s32, s32, s33")
    a.e("s_mul_i32 s32, s32, 7168"); a.e(f"s_add_u32 s32, s32, {Z2N}")
    a.e("s_waitcnt lgkmcnt(0)")
    k = 0
    for n, (kind, blk, hf, pos) in enumerate(T):
        if kind != "z2": continue
        for p in range(2):
            r0, r1 = acc(n, 2*p), acc(n, 2*p+1)
            xs = [r0, r0+2, r1, r1+2]
            for u in range(4): a.e(f"v_pk_fma_f32 {vr(xs[u],2)}, {vr(xs[u],2)}, {vr(RS+8*p+2*u,2)}, {vr(NM+8*p+2*u,2)}")
            d = 80 + 4 * (k & 3); k += 1
            a.e(f"s_add_u32 s33, s32, {p*7168 + pos*1024}")
            pack(a, d, r0, r1)
            a.e(f"buffer_store_dwordx4 {vr(d,4)}, v11, {WS}, s33 offen sc1")

def epi_z1(a, cfg, G, which):
    zt = [(n, t[3]) for n, t in enumerate(tiles_of(G)) if t[0] == "z1"]
    for n, pos in zt[which:which+1]:
        for p in range(2):
            r0, r1 = acc(n, 2*p), acc(n, 2*p+1)
            gelu8(a, [r0, r0+2, r1, r1+2], 104)
            pack(a, 96 + 4*p, r0, r1)
            a.e(f"ds_write_b128 v6, {vr(96+4*p,4)} offset:{pos*4096 + p*1024}")

def acc2(n, m): return ACC + (n * 2 + m) * 4
def fw(P, m): return 24 + 8 * P + 4 * m
def fz(P, n): return 40 + 16 * P + 4 * n
def ntiles(R): return 4 if R == 0 else 3
def dmas2(R, slot):
    base = slot * S2
    out = []
    D = 3 if R == 2 else 4
    for n in range(D):
        if R == 0: g = [f"buffer_load_dwordx4 v{112+n}, {sr(SWSP,4)}, s24 offen offset:{n*1024} lds"]
        else: g = [f"buffer_load_dwordx4 v11, {WS}, s24 offen offset:{n*1024}{ASC} lds"]
        if n == 0: g = [f"s_add_u32 m0, s27, {base}", "@"] + g
        if n == D - 1:
            g.append(f"s_add_u32 s24, s24, {128 if R == 0 else 14336}")
            if ROT: g += ["s_cmp_eq_u32 s24, s25", "s_cselect_b32 s24, s26, s24"]
        out.append(g)
    return out
def reads2(R, P, slot, sub):
    hi = slot >> 1
    base = (slot & 1) * S2
    out = [f"ds_read_b128 {vr(fw(P,m),4)}, v{116+2*hi+sub} offset:{base + m*2048}" for m in range(2)]
    out += [f"ds_read_b128 {vr(fz(P,n),4)}, v{121+hi} offset:{base + sub*7168 + n*1024}" for n in range(ntiles(R))]
    if XR[1] == 1: out = out[::2]
    if XR[1] == 2: out = out[2:]
    return out
def mfmas2(R, P, first=False):
    return [f"v_mfma_f32_16x16x32_bf16 {vr(acc2(n,m),4)}, {vr(fz(P,n),4)}, {vr(fw(P,m),4)}, {'0' if first else vr(acc2(n,m),4)}"
            for n in range(ntiles(R)) for m in range(2)]
def body2(a, cfg, R, slot, DM, nwait, last=False, prebar=None, dpos=None):
    a.e(f"s_waitcnt vmcnt({nwait}) lgkmcnt(0)" if nwait is not None else "s_waitcnt lgkmcnt(0)")
    if prebar: prebar()
    if not last: a.e("s_barrier")
    d0, ds = dpos or (cfg.get("k2_d0", 1), cfg.get("k2_ds", 3))
    M = mfmas2(R, 1)
    fill = []
    if not last:
        for k, r in enumerate(reads2(R, 0, (slot + 1) & 3, 0)): fill.append((k - 1, [r]))
    h = len(DM) if last else (len(DM) + 1) // 2
    place(fill, DM[:h], d0, ds, len(M))
    interleave(a, M, fill)
    if last: return
    a.e("s_waitcnt lgkmcnt(0)")
    M = mfmas2(R, 0)
    fill = [(k - 1, [r]) for k, r in enumerate(reads2(R, 1, (slot + 1) & 3, 1))]
    place(fill, DM[h:], d0, ds, len(M))
    interleave(a, M, fill)

NS, NT3 = 8, 44
def fa3(T, sub): return 160 + 8 * (T % NS) + 4 * sub
def fw3(P, nt): return 88 + 16 * P + 4 * nt
def acc3(T, nt): return (128 if T < 16 else 144) + 4 * nt
class VM:
    def __init__(self): self.ops = []
    def add(self, tag): self.ops.append(tag)
    def need(self, tags):
        assert all(t in self.ops for t in tags), tags
        return min(63, len(self.ops) - 1 - max(i for i, t in enumerate(self.ops) if t in tags))
def aload(vm, T, sub):
    kp = 2 * T + sub - 32
    r = fa3(T, sub)
    vm.add(("A", T, sub))
    if kp >= 0 and kp % 7 == 3:
        vm.add(("A", T, sub))
        return [f"buffer_load_dwordx2 {vr(r,2)}, v225, {WS}, s24 offen{ASC}",
                f"buffer_load_dwordx2 {vr(r+2,2)}, v225, {WS}, s24 offen offset:1024{ASC}", "s_add_u32 s24, s24, 8192"]
    return [f"buffer_load_dwordx4 {vr(r,4)}, v224, {WS}, s24 offen{ASC}", "s_add_u32 s24, s24, 8192"]
def wdma(vm, T):
    vm.add(("W", T))
    return [f"s_add_u32 m0, s27, {(T % NS) * 8192}", "@",
            f"buffer_load_dwordx4 v226, {sr(SWO if T < 16 else SWOUT, 4)}, s25 offen lds",
            "s_mov_b32 s25, s40" if T == 15 else f"s_add_u32 s25, s25, {64*2048}"]
def loads3(vm, T, LA):
    out = [wdma(vm, T)]
    if T < LA: out += [aload(vm, T, 0), aload(vm, T, 1)]
    return out
def addr3(a):
    a.e("v_and_b32 v12, 63, v0")
    a.e("s_lshl_b32 s27, s20, 10")
    a.e("v_add_u32 v224, s27, v11")
    a.e("s_lshr_b32 s38, s20, 1"); a.e("s_lshl_b32 s39, s38, 11"); a.e("s_and_b32 s30, s20, 1"); a.e("s_lshl_b32 s31, s30, 3")
    a.e("s_add_u32 s39, s39, s31"); a.e("v_add_u32 v225, s39, v11")
    a.e("v_lshrrev_b32 v13, 3, v12"); a.e("v_bfe_u32 v14, v12, 4, 2"); a.e("v_lshlrev_b32 v14, 1, v14")
    a.e("v_and_b32 v15, 7, v12"); a.e("v_xor_b32 v14, v14, v15"); a.e("v_lshlrev_b32 v14, 4, v14")
    a.e("v_lshl_add_u32 v226, v13, 11, v14")
    a.e("s_lshl_b32 s39, s20, 14"); a.e("v_add_u32 v226, s39, v226")
    a.e("v_bfe_u32 v13, v12, 2, 3"); a.e("v_lshrrev_b32 v14, 5, v12"); a.e("v_lshlrev_b32 v14, 10, v14")
    a.e("v_lshl_add_u32 v14, v13, 7, v14"); a.e("v_lshrrev_b32 v13, 1, v13"); a.e("v_lshl_add_u32 v14, v13, 5, v14")
    a.e("v_and_b32 v15, 3, v12")
    a.e("v_lshl_add_u32 v227, v15, 3, v14")
    a.e("v_xor_b32 v228, 32, v227"); a.e("v_xor_b32 v229, 64, v227"); a.e("v_xor_b32 v230, 96, v227")
    a.e("v_bfe_u32 v13, v12, 2, 2"); a.e("v_lshl_add_u32 v13, v13, 3, v15"); a.e("v_lshlrev_b32 v231, 11, v13")
    a.e("v_bfe_u32 v13, v12, 4, 1"); a.e("v_lshl_add_u32 v231, v13, 5, v231")
    a.e("v_lshrrev_b32 v13, 5, v12"); a.e("v_lshl_add_u32 v231, v13, 4, v231")
    a.e("s_lshl_b32 s26, s50, 7"); a.e("s_lshl_b32 s38, s38, 5"); a.e("s_add_u32 s26, s26, s38")
    a.e("s_lshl_b32 s30, s30, 2"); a.e("s_add_u32 s26, s26, s30"); a.e("s_lshl_b32 s26, s26, 11")
    a.e("s_lshl_b32 s40, s51, 7"); a.e("s_add_u32 s26, s26, s40")
    a.e(f"s_mul_i32 s24, s50, {88*8192}"); a.e(f"s_add_u32 s24, s24, {AU}")
    a.e("s_mov_b32 s25, s40")
    a.e("s_lshl_b32 s41, s50, 4"); a.e("s_add_u32 s41, s41, 8")
    if T3:
        a.e("s_lshr_b32 s30, s2, 3"); a.e("s_lshl_b32 s30, s30, 3"); a.e("s_add_u32 s30, s30, s20"); a.e("s_lshl_b32 s30, s30, 13")
        a.e("s_and_b32 s31, s51, 8"); a.e("s_add_u32 s31, s31, 3"); a.e("s_lshl_b32 s31, s31, 7"); a.e("s_add_u32 s30, s30, s31")
        a.e("v_lshlrev_b32 v232, 11, v12"); a.e("v_add_u32 v232, s30, v232")
        a.e("v_cmp_gt_u32 vcc, 4, v12"); a.e("v_bfrev_b32 v233, 1"); a.e("v_cndmask_b32 v232, v233, v232, vcc")

def stage2(a, cfg, R, vm):
    NT = ntiles(R); D = len(dmas2(R, 0)); nw = 0 if R == 0 else 1
    LA = cfg.get("k3_la", 7); PRE = cfg.get("pre3", 3)
    a.label(f"L_r{R}")
    a.e("s_and_b32 s23, s20, 3")
    if R < 2:
        a.e("s_cmp_ge_u32 s20, 3"); a.e("s_cselect_b32 s36, 1, 0")
        a.e("s_mul_i32 s37, s36, 3"); a.e("s_sub_u32 s37, s20, s37")
        a.e("s_lshl_b32 s38, s100, 1"); a.e("s_add_u32 s38, s38, s36")
        a.e("s_mul_i32 s39, s21, 24"); a.e("s_lshl_b32 s37, s37, 3"); a.e("s_add_u32 s39, s39, s37")
        a.e("v_lshrrev_b32 v17, 3, v1"); a.e("v_add_u32 v17, s39, v17")
        a.e("v_and_b32 v18, 7, v1"); a.e("v_mul_u32_u24 v18, 24576, v18"); a.e("v_lshl_add_u32 v18, v17, 4, v18")
        a.e(f"s_mul_i32 s39, s38, {32*6144}"); a.e(f"s_add_u32 s39, s39, {KVP}")
    if R:
        a.e(f"s_mul_i32 s24, s22, {64*7168}"); a.e(f"s_add_u32 s24, s24, {Z2N}")
        a.e("s_and_b32 s27, s20, 1"); a.e(f"s_mul_i32 s27, s27, {4096 if R == 1 else 3072}")
        if R == 2: a.e("s_add_u32 s27, s27, 8192")
        a.e("s_add_u32 s24, s24, s27"); a.e("s_add_u32 s27, s27, 16384")
        if ROT:
            a.e("s_mov_b32 s26, s24"); a.e(f"s_add_u32 s25, s24, {64*7168}")
            a.e(f"s_mul_i32 s36, s21, {ROT}"); a.e("s_and_b32 s36, s36, 31"); a.e("s_mul_i32 s36, s36, 14336"); a.e("s_add_u32 s24, s24, s36")
    a.e("s_waitcnt lgkmcnt(0)")
    a.e("s_barrier")
    st(a, cfg, 4)
    if R < 2:
        for u in range(4):
            a.e(f"buffer_load_dwordx4 {vr(72+4*u,4)}, v18, {WS}, s39 offen sc1")
            if u < 3: a.e("s_add_u32 s39, s39, 6144")
    if R:
        for s in range(4):
            for grp in dmas2(R, s): emit(a, grp)
        a.e(f"s_waitcnt vmcnt({3*D})")
    a.e("s_barrier")
    st(a, cfg, "d2")
    a("; hot")
    for r in reads2(R, 0, 0, 0): a.e(r)
    a.e("s_waitcnt lgkmcnt(0)")
    interleave(a, mfmas2(R, 0, True), [(k - 1, [r]) for k, r in enumerate(reads2(R, 1, 0, 1))])
    a.e("s_mov_b32 s29, 7")
    a.label(f"L_loop2_{R}")
    for t in range(4): body2(a, cfg, R, t, dmas2(R, t), 2*D)
    a.e("s_sub_u32 s29, s29, 1")
    sides = {0: [6], 1: [6, 4, 3, 2], 2: [5, 4, 3]}[R]
    for s in sides:
        a.e(f"s_cmp_eq_u32 s29, {s}"); a.e(f"s_cbranch_scc1 L_side{R}_{s}")
    a.e("s_cmp_lg_u32 s29, 0")
    a.e(f"s_cbranch_scc1 L_loop2_{R}")
    a("; cold")
    st(a, cfg, "l2")
    addr3(a)
    E = 2
    if R == 0: poll_issue(a, "s41", 20); E = 3
    a.e("s_lshl_b32 s30, s21, 8"); a.e("s_lshl_b32 s31, s23, 6"); a.e("s_add_u32 s30, s30, s31")
    a.e(f"buffer_load_ushort v88, v120, {sr(SB,4)}, s30 offen")
    a.e(f"buffer_load_ushort v90, v120, {sr(SB,4)}, s30 offen offset:8")
    a.e(f"s_lshl_b32 s30, s23, 10"); a.e(f"s_add_u32 s30, s30, {ZS + nw*16384}"); a.e("v_add_u32 v16, s30, v11")
    a("; hot")
    tt = 1 if T3 and T3[0] >= 0 else 0
    if tt: a.e(f"buffer_load_dword v233, v232, {sr(SWO,4)}, 0 offen")
    body2(a, cfg, R, 0, [], 2*D + E + tt)
    body2(a, cfg, R, 1, [], D + E + tt)
    vm.ops = ["T3"] * tt
    L3 = []
    for T in range(PRE): L3 += loads3(vm, T, LA)
    n2 = (len(L3) * 2 + 2) // 3
    body2(a, cfg, R, 2, L3[:n2], 2 + tt, prebar=(lambda: poll_spin(a, "s41", 20, pre=True)) if R == 0 else None, dpos=(0, 2))
    body2(a, cfg, R, 3, L3[n2:], None, last=True, dpos=(0, 2))
    a("; cold")
    st(a, cfg, 5)
    for n in range(NT): a.e(f"ds_read_b128 {vr(72+4*n,4)}, v16 offset:{n*4096}")
    a.e("s_mov_b32 s33, 0xffff0000")
    a.e(f"s_mul_i32 s30, s21, {88*8192}"); a.e("s_lshl_b32 s31, s23, 11"); a.e("s_add_u32 s30, s30, s31")
    a.e(f"s_add_u32 s30, s30, {AU + 32*8192}")
    a.e("s_lshr_b32 s32, s22, 1"); a.e(f"s_mul_i32 s32, s32, {7*8192}"); a.e("s_add_u32 s30, s30, s32")
    a.e("s_and_b32 s34, s22, 1")
    a.e("s_lshl_b32 s35, s34, 15"); a.e("s_add_u32 s35, s35, s30")
    if nw == 0: a.e("s_add_u32 s39, s35, 8192")
    else:
        a.e("s_add_u32 s35, s35, 16384")
        a.e("s_lshl_b32 s39, s34, 10"); a.e("s_add_u32 s39, s39, s30"); a.e(f"s_add_u32 s39, s39, {3*8192}")
    a.e(f"s_waitcnt vmcnt({len(vm.ops)})")
    a.e("v_lshlrev_b32 v88, 16, v88"); a.e("v_lshlrev_b32 v90, 16, v90")
    a.e("v_mov_b32 v89, v88"); a.e("v_mov_b32 v91, v90")
    a.e("s_waitcnt lgkmcnt(0)")
    for n in range(NT):
        for m in range(2):
            z = 72 + 4*n + 2*m
            t = 92 + 4 * m
            a.e(f"v_lshlrev_b32 v{t}, 16, v{z}"); a.e(f"v_and_b32 v{t+1}, s33, v{z}")
            a.e(f"v_lshlrev_b32 v{t+2}, 16, v{z+1}"); a.e(f"v_and_b32 v{t+3}, s33, v{z+1}")
            r = acc2(n, m)
            for h in range(2): a.e(f"v_pk_add_f32 {vr(r+2*h,2)}, {vr(r+2*h,2)}, {vr(88+2*m,2)}")
            for h in range(2): a.e(f"v_pk_mul_f32 {vr(r+2*h,2)}, {vr(r+2*h,2)}, {vr(t+2*h,2)}")
        if n & 1:
            for m in range(2):
                d = 48 + 8 * (n >> 1) + 4 * m
                pack(a, d, acc2(n-1, m), acc2(n, m))
                a.e(f"buffer_store_dwordx4 {vr(d,4)}, v11, {WS}, s{35 if n == 1 else 39} offen offset:{m*1024} sc1")
        elif n == 2 and NT == 3:
            pack(a, 56, acc2(n, 0), acc2(n, 1))
            a.e(f"buffer_store_dwordx4 v[56:59], v11, {WS}, s39 offen sc1")
    st(a, cfg, "us")
    for k in range(3): vm.add("U")
    a.e("s_branch L_stage3")
    for s in sides:
        a.label(f"L_side{R}_{s}")
        if s == 6:
            a.e("v_lshrrev_b32 v18, 7, v17"); a.e("v_lshlrev_b32 v18, 10, v18"); a.e("v_and_b32 v19, 63, v17")
            a.e("v_lshl_add_u32 v18, v19, 4, v18"); a.e("v_bfe_u32 v19, v17, 6, 1"); a.e("v_lshl_add_u32 v18, v19, 3, v18")
            a.e("s_mul_i32 s37, s38, 3072"); a.e(f"s_add_u32 s37, s37, {KVR}")
            for h in range(2):
                a.e(f"v_pk_add_f32 {vr(72+2*h,2)}, {vr(72+2*h,2)}, {vr(76+2*h,2)}")
                a.e(f"v_pk_add_f32 {vr(80+2*h,2)}, {vr(80+2*h,2)}, {vr(84+2*h,2)}")
            for h in range(2): a.e(f"v_pk_add_f32 {vr(72+2*h,2)}, {vr(72+2*h,2)}, {vr(80+2*h,2)}")
            for ctl in ("row_half_mirror", "quad_perm:[1,0,3,2]", "quad_perm:[2,3,0,1]"):
                a.e("s_nop 1")
                for k in range(4): a.e(f"v_add_f32_dpp v{72+k}, v{72+k}, v{72+k} {ctl} row_mask:0xf bank_mask:0xf")
            a.e("v_cvt_pk_bf16_f32 v72, v72, v73"); a.e("v_cvt_pk_bf16_f32 v73, v74, v75")
            a.e("s_mov_b32 s36, 0x01010101"); a.e("s_mov_b32 exec_lo, s36"); a.e("s_mov_b32 exec_hi, s36")
            a.e(f"buffer_store_dwordx2 v[72:73], v18, {WS}, s37 offen sc1")
            a.e("s_mov_b64 exec, -1")
        kvr = [f"buffer_load_dwordx4 {vr(100+4*et,4)}, v11, {WS}, s37 offen offset:{et*1024} sc1" for et in range(3)]
        if s == 5:
            a.e("s_cmp_lg_u32 s20, 6"); a.e(f"s_cbranch_scc1 L_loop2_{R}")
            a.e("s_lshl_b32 s30, s2, 13"); a.e("v_lshlrev_b32 v124, 3, v11")
            a.e(f"buffer_load_dword v125, v124, {sr(SWO,4)}, s30 offen")
        if s == 4:
            a.e("s_lshl_b32 s38, s101, 1")
            if R == 2: a.e("s_add_u32 s38, s38, 1")
            a.e("s_mul_i32 s37, s38, 3072"); a.e(f"s_add_u32 s37, s37, {KVR}")
            for l in kvr: a.e(l)
        if s == 3:
            L, X, C = lbl("kv"), lbl("kvx"), lbl("kvc")
            a.e("s_mov_b32 s36, 0"); a.e(f"s_branch {C}")
            a.label(L)
            for l in kvr: a.e(l)
            a.e("s_waitcnt vmcnt(0)")
            a.label(C)
            a.e("v_max3_u32 v19, v100, v101, v102")
            for k in range(103, 111, 2): a.e(f"v_max3_u32 v19, v19, v{k}, v{k+1}")
            a.e("v_max_u32 v19, v19, v111")
            a.e("v_cmp_eq_u32 vcc, -1, v19")
            a.e("s_add_u32 s36, s36, 1")
            a.e(f"s_cmp_ge_u32 s36, {BOUND}"); a.e(f"s_cbranch_scc1 {X}")
            a.e("s_cmp_lg_u64 vcc, 0"); a.e(f"s_cbranch_scc1 {L}")
            a.label(X)
            for m in range(4):
                for et in range(3):
                    a.e(f"v_mfma_f32_16x16x32_bf16 {vr(160+12*m+4*et,4)}, {vr(100+4*et,4)}, {vr(240+4*m,4)}, 0")
            a.e(f"s_mul_i32 s30, s21, {88*8192}"); a.e("s_lshl_b32 s31, s38, 13"); a.e("s_add_u32 s30, s30, s31")
            a.e("s_and_b32 s31, s20, 1"); a.e("s_lshl_b32 s31, s31, 12"); a.e("s_add_u32 s30, s30, s31")
            a.e(f"s_add_u32 s30, s30, {AU}")
            a.e("s_nop 7")
            for m in range(4): a.e(f"v_add_f32 v{168+12*m}, {f2u(1e-6):#x}, v{168+12*m}")
            for m in range(4): a.e(f"v_rcp_f32 v{168+12*m}, v{168+12*m}")
            for m in range(4): a.e(f"v_mov_b32 v{169+12*m}, v{168+12*m}")
            for m in range(4):
                b = 160 + 12 * m
                for h in range(4): a.e(f"v_pk_mul_f32 {vr(b+2*h,2)}, {vr(b+2*h,2)}, {vr(b+8,2)}")
                pack(a, 208 + 4*m, b, b + 4)
                a.e(f"buffer_store_dwordx4 {vr(208+4*m,4)}, v11, {WS}, s30 offen offset:{m*1024} sc1")
        if s == 2:
            a.e("s_cmp_lg_u32 s20, 4"); a.e(f"s_cbranch_scc1 L_loop2_{R}")
            a.e("s_lshl_b32 s30, s21, 4"); a.e("s_add_u32 s30, s30, 8")
            atomic_inc(a, "s30", 20)
        a.e(f"s_branch L_loop2_{R}")

def stage3(a, cfg, vm):
    LA = cfg.get("k3_la", 7); PRE = cfg.get("pre3", 3); MID = cfg.get("mid3", 2)
    cT = 16 - LA; pT = cT - cfg.get("pollgap", 2)
    def reads(P, T, sub):
        return [f"ds_read_b64_tr_b16 {vr(fw3(P,nt)+2*h,2)}, v{227+nt} offset:{(T % NS)*8192 + sub*4096 + h*2048}" for nt in range(4) for h in range(2)][::(2 if XR[2] else 1)]
    def mfmas(P, T, sub):
        first = sub == 0 and T in (0, 16)
        return [f"v_mfma_f32_16x16x32_bf16 {vr(acc3(T,nt),4)}, {vr(fw3(P,nt),4)}, {vr(fa3(T,sub),4)}, {'0' if first else vr(acc3(T,nt),4)}" for nt in range(4)]
    a.label("L_stage3")
    for T in range(PRE, PRE + MID):
        for g in loads3(vm, T, LA): emit(a, g)
    a.e(f"s_waitcnt vmcnt({vm.need(['U'])})")
    a.e("s_barrier")
    st(a, cfg, 6)
    L = lbl("nou")
    a.e("s_cmp_lg_u32 s20, 0"); a.e(f"s_cbranch_scc1 {L}")
    a.e("s_lshl_b32 s30, s21, 4"); a.e("s_add_u32 s30, s30, 12")
    atomic_inc(a, "s30", 20)
    a.label(L)
    a.e("s_add_u32 s41, s41, 4")
    a("; hot")
    for r in reads(0, 0, 0): a.e(r)
    for T in range(PRE + MID, NS):
        for g in loads3(vm, T, LA): emit(a, g)
    a.e("s_waitcnt lgkmcnt(0)")
    interleave(a, mfmas(0, 0, 0), [(k // 2 - 1, [r]) for k, r in enumerate(reads(1, 0, 1))])
    for T in range(NT3):
        if T == NT3 - 1:
            a.e("s_waitcnt lgkmcnt(0)")
            for m in mfmas(1, T, 1): a.e(m)
            break
        if T in (cT, cT + 1, 16, 30): st(a, cfg, f"T{T}")
        if T == cT:
            L = lbl("noc")
            a.e("s_cmp_lg_u32 s20, 0"); a.e(f"s_cbranch_scc1 {L}")
            a.e(f"s_waitcnt vmcnt({len(vm.ops) - pidx})")
            poll_spin(a, "s41", 20, pre=True)
            a.label(L)
        a.e(f"s_waitcnt vmcnt({vm.need([('W',T+1),('A',T+1,0),('A',T+1,1)])}) lgkmcnt(0)")
        a.e("s_barrier")
        if T == pT:
            L = lbl("nop")
            a.e("s_cmp_lg_u32 s20, 0"); a.e(f"s_cbranch_scc1 {L}")
            poll_issue(a, "s41", 20)
            a.label(L)
            pidx = len(vm.ops)
        fill = [(k // 2 - 1, [r]) for k, r in enumerate(reads(0, T + 1, 0))]
        if T + NS < NT3:
            g = wdma(vm, T + NS); i = g.index("@")
            fill.append((0, g[:i])); fill.append((1, g[i+1:]))
        if T + LA < NT3: fill.append((3, aload(vm, T + LA, 0)))
        interleave(a, mfmas(1, T, 1), fill)
        a.e("s_waitcnt lgkmcnt(0)")
        fill = [(k // 2 - 1, [r]) for k, r in enumerate(reads(1, T + 1, 1))]
        if T + LA < NT3: fill.append((2, aload(vm, T + LA, 1)))
        if T3 and T in T3[1:]:
            vm.add("T3")
            fill.append((3, [f"buffer_load_dword v233, v232, {sr(SWOUT,4)}, 0 offen", f"v_add_u32 v232, {1024*2048}, v232"]))
        if T == NT3 - LA:
            for cp in range(2):
                vm.add(("X", cp))
                fill.append((2, [f"buffer_load_dwordx4 {vr(16+4*cp,4)}, v231, {sr(SX,4)}, s26 offen offset:{cp*64}"]))
        interleave(a, mfmas(0, T + 1, 0), fill)
    a("; cold")
    st(a, cfg, 7)
    a.e(f"s_mov_b32 s30, {f2u(-LOG2E):#x}"); a.e(f"s_mov_b32 s31, {f2u(-LOG2E):#x}")
    a.e(f"s_mov_b32 s32, 1.0"); a.e(f"s_mov_b32 s33, 1.0")
    a.e("s_mov_b32 s34, 0xffff0000")
    a.e("s_waitcnt vmcnt(0)")
    for cp in range(2):
        a.e(f"v_permlane16_swap_b32 v{16+4*cp}, v{18+4*cp}"); a.e(f"v_permlane16_swap_b32 v{17+4*cp}, v{19+4*cp}")
    a.e("s_nop 4")
    H, S, T_, X = 144, 128, 24, 40
    for k in range(8): a.e(f"v_pk_mul_f32 {vr(T_+2*k,2)}, {vr(H+2*k,2)}, s[30:31]")
    for k in range(16): a.e(f"v_exp_f32 v{T_+k}, v{T_+k}")
    for k in range(8):
        a.e(f"v_lshlrev_b32 v{X+2*k}, 16, v{16+k}"); a.e(f"v_and_b32 v{X+2*k+1}, s34, v{16+k}")
    for k in range(8): a.e(f"v_pk_add_f32 {vr(T_+2*k,2)}, {vr(T_+2*k,2)}, s[32:33]")
    for k in range(16): a.e(f"v_rcp_f32 v{T_+k}, v{T_+k}")
    for k in range(8): a.e(f"v_pk_mul_f32 {vr(H+2*k,2)}, {vr(H+2*k,2)}, {vr(S+2*k,2)}")
    for k in range(8): a.e(f"v_pk_fma_f32 {vr(X+2*k,2)}, {vr(H+2*k,2)}, {vr(T_+2*k,2)}, {vr(X+2*k,2)}")
    for cp in range(2): pack(a, 16 + 4*cp, X + 8*cp, X + 8*cp + 4)
    a.e("s_nop 1")
    for cp in range(2):
        a.e(f"v_permlane16_swap_b32 v{16+4*cp}, v{18+4*cp}"); a.e(f"v_permlane16_swap_b32 v{17+4*cp}, v{19+4*cp}")
    a.e("s_nop 1")
    for cp in range(2):
        a.e(f"buffer_store_dwordx4 {vr(16+4*cp,4)}, v231, {sr(SOUT,4)}, s26 offen offset:{cp*64}")
    if cfg.get("tim"):
        a.e("s_memrealtime s[98:99]")
        a.e(f"{'s_memrealtime' if cfg.get('rt') else 's_memtime'} s[30:31]")
        a.e("s_waitcnt lgkmcnt(0)")
        a.e("s_lshl_b32 s100, s2, 3"); a.e("s_add_u32 s100, s100, s20"); a.e("s_lshl_b32 s100, s100, 6"); a.e(f"s_add_u32 s100, s100, {TIM}")
        a.e("v_mov_b32 v0, 0")
        for k, s in enumerate([80 + 2*k for k in range(8)] + [30, 96, 98]):
            a.e(f"v_mov_b32 v1, s{s}")
            a.e(f"buffer_store_dword v1, v0, {WS}, s100 offen offset:{4*k}")
            a.e("s_nop 1")

def srd_at(a, d, b, soff, nbytes):
    a.e(f"s_add_u32 s{d}, s{b}, {soff}"); a.e(f"s_addc_u32 s{d+1}, s{b+1}, 0"); a.e(f"s_and_b32 s{d+1}, s{d+1}, 0xffff")
    a.e(f"s_mov_b32 s{d+2}, {nbytes}"); a.e(f"s_mov_b32 s{d+3}, 0x00020000")

def fused(a, cfg):
    name = KN + "_kernel"
    kernel_begin(a, name)
    a.e("s_cmp_ge_u32 s2, 256")
    a.e("s_cbranch_scc1 L_end")
    if cfg.get("tim"): a.e("s_memrealtime s[96:97]")
    st(a, cfg, 0)
    a.e("s_load_dwordx16 s[24:39], s[0:1], 0")
    a.e("s_load_dwordx4 s[40:43], s[0:1], 64")
    a.e("s_load_dwordx2 s[44:45], s[0:1], 80")
    if cfg.get("cpf", 0):
        a.e(f"s_getpc_b64 s[{STCH}:{STCH+1}]")
        a.label("L_pc")
        a.e(f"s_and_b32 s{STCH+1}, s{STCH+1}, 0xffff")
        a.e(f"s_mov_b32 s{STCH+2}, L_end-L_pc"); a.e(f"s_mov_b32 s{STCH+3}, 0x00020000")
        a.e("v_lshlrev_b32 v127, 7, v0")
        a.e(f"buffer_load_dword v127, v127, {sr(STCH,4)}, 0 offen")
    a.e("v_lshrrev_b32 v1, 6, v0")
    a.e("v_and_b32 v12, 63, v0")
    a.e("v_readfirstlane_b32 s20, v1")
    a.e("v_and_b32 v13, 7, v12"); a.e("v_lshrrev_b32 v14, 3, v12")
    a.e("v_bfe_u32 v15, v12, 2, 1"); a.e("v_and_b32 v16, 3, v12"); a.e("v_lshl_add_u32 v15, v15, 3, v16")
    a.e("v_lshlrev_b32 v64, 11, v15"); a.e("v_lshl_add_u32 v64, v14, 4, v64")
    a.e("v_and_b32 v15, 3, v14"); a.e("v_lshlrev_b32 v65, 4, v13"); a.e("v_lshl_add_u32 v65, v15, 8, v65")
    a.e("v_lshrrev_b32 v15, 2, v14"); a.e("v_lshl_add_u32 v65, v15, 13, v65")
    a.e("v_lshlrev_b32 v63, 6, v13"); a.e(f"v_add_u32 v63, {SS}, v63"); a.e("v_lshl_add_u32 v62, v1, 3, v63")
    a.e("s_and_b32 s21, s2, 1"); a.e("s_lshl_b32 s21, s21, 3"); a.e("s_bfe_u32 s46, s2, 0x30003"); a.e("s_add_u32 s21, s21, s46")
    a.e("s_bfe_u32 s22, s2, 0x20001"); a.e("s_lshl_b32 s22, s22, 2"); a.e("s_lshr_b32 s46, s2, 6"); a.e("s_add_u32 s22, s22, s46")
    m3 = cfg.get("map3", 4)
    if m3 == 4:
        a.e("s_and_b32 s50, s2, 3"); a.e("s_lshl_b32 s50, s50, 2"); a.e("s_bfe_u32 s46, s2, 0x20003"); a.e("s_add_u32 s50, s50, s46")
        a.e("s_bfe_u32 s51, s2, 0x10002"); a.e("s_lshl_b32 s51, s51, 3"); a.e("s_lshr_b32 s46, s2, 5"); a.e("s_add_u32 s51, s51, s46")
    elif m3 == 2:
        a.e("s_and_b32 s50, s2, 7"); a.e("s_lshl_b32 s50, s50, 1"); a.e("s_bfe_u32 s46, s2, 0x10003"); a.e("s_add_u32 s50, s50, s46")
        a.e("s_lshr_b32 s51, s2, 4")
    elif m3 == 8:
        a.e("s_mov_b32 s50, s21"); a.e("s_mov_b32 s51, s22")
    elif m3 == 41:
        a.e("s_and_b32 s50, s2, 3"); a.e("s_lshl_b32 s50, s50, 2"); a.e("s_bfe_u32 s46, s2, 0x20003"); a.e("s_add_u32 s50, s50, s46")
        a.e("s_bfe_u32 s51, s2, 0x10002"); a.e("s_lshr_b32 s46, s2, 5"); a.e("s_lshl_b32 s46, s46, 1"); a.e("s_add_u32 s51, s51, s46")
    m1 = cfg.get("map1", 8)
    if m1 == 4:
        a.e("s_and_b32 s21, s2, 3"); a.e("s_lshl_b32 s21, s21, 2"); a.e("s_bfe_u32 s46, s2, 0x20003"); a.e("s_add_u32 s21, s21, s46")
        a.e("s_bfe_u32 s22, s2, 0x10002"); a.e("s_lshl_b32 s22, s22, 3"); a.e("s_lshr_b32 s46, s2, 5"); a.e("s_add_u32 s22, s22, s46")
    if m1 == 81:
        a.e("s_bfe_u32 s22, s2, 0x20001"); a.e("s_lshr_b32 s46, s2, 6"); a.e("s_lshl_b32 s46, s46, 2"); a.e("s_add_u32 s22, s22, s46")
    jm = cfg.get("jm", 2)
    if jm == 0: a.e("s_mov_b32 s100, s22"); a.e("s_mov_b32 s101, s22")
    elif jm == 2:
        tk = cfg.get("tk", [3, 7, 15, 11, 2, 6, 10, 14, 1, 5, 9, 13, 0, 4, 8, 12])
        tq = cfg.get("tq", [0, 4, 8, 12, 7, 3, 15, 11, 2, 6, 10, 14, 1, 5, 9, 13])
        assert sorted(tk) == list(range(16)) and sorted(tq) == list(range(16))
        a.e("s_lshl_b32 s49, s22, 2")
        for d, t in ((100, tk), (101, tq)):
            c = sum(v << (4 * k) for k, v in enumerate(t))
            a.e(f"s_mov_b32 s46, {c & 0xffffffff:#x}"); a.e(f"s_mov_b32 s47, {c >> 32:#x}")
            a.e("s_lshr_b64 s[46:47], s[46:47], s49"); a.e(f"s_and_b32 s{d}, s46, 15")
    else:
        a.e("s_and_b32 s46, s22, 3"); a.e("s_lshl_b32 s46, s46, 2"); a.e("s_lshr_b32 s47, s22, 2")
        a.e("s_sub_u32 s100, 3, s47"); a.e("s_add_u32 s47, s100, 1"); a.e("s_and_b32 s47, s47, 3")
        a.e("s_add_u32 s100, s100, s46"); a.e("s_add_u32 s101, s47, s46")
    a.e("s_and_b32 s23, s20, 1")
    a.e("v_lshlrev_b32 v11, 4, v12")
    a.e("s_lshl_b32 s46, s20, 11"); a.e("v_add_u32 v2, s46, v11")
    a.e("v_lshrrev_b32 v13, 2, v12"); a.e("s_lshl_b32 s46, s23, 4"); a.e("v_add_u32 v13, s46, v13")
    a.e("v_bfe_u32 v14, v12, 5, 1"); a.e("v_lshlrev_b32 v14, 1, v14"); a.e("v_and_b32 v15, 3, v12"); a.e("v_xor_b32 v14, v14, v15")
    a.e("v_lshrrev_b32 v16, 1, v14")
    a.e("v_lshlrev_b32 v14, 4, v14")
    a.e("v_mul_u32_u24 v3, 6144, v13"); a.e("v_add_u32 v3, v3, v14")
    a.e("v_mul_u32_u24 v4, 7168, v13"); a.e("v_add_u32 v4, v4, v14")
    a.e("s_lshl_b32 s46, s23, 12"); a.e("v_add_u32 v5, s46, v11"); a.e(f"v_add_u32 v6, {2*S1}, v5")
    a.e("v_lshrrev_b32 v13, 5, v12"); a.e("v_mul_u32_u24 v7, 13312, v13")
    a.e("v_bfe_u32 v13, v12, 4, 1"); a.e("v_mul_u32_u24 v14, 544, v13"); a.e("v_add_u32 v7, v7, v14")
    a.e("v_bfe_u32 v14, v12, 2, 2"); a.e("v_lshl_add_u32 v7, v14, 6, v7"); a.e("v_lshl_add_u32 v7, v15, 3, v7")
    a.e("v_add_u32 v7, 8192, v7"); a.e("v_xor_b32 v8, 32, v7")
    a.e(f"v_add_u32 v9, {2*S1}, v7"); a.e(f"v_add_u32 v10, {2*S1}, v8")
    a.e("s_and_b32 s46, s22, 1"); a.e("s_cmp_eq_u32 s46, 0"); a.e("s_cselect_b32 s47, 192, 0"); a.e("s_lshl_b32 s46, s46, 5")
    a.e("v_mul_u32_u24 v15, 3552, v16"); a.e("v_add_u32 v15, v15, v4"); a.e("v_add_u32 v15, s47, v15")
    a.e("v_add_u32 v4, s46, v4")
    a.e("s_waitcnt lgkmcnt(0)")
    st(a, cfg, "ka")
    srd(a, SX, 24, 4 * MB); srd(a, SWS, 44, WS_SIZE); srd(a, SQKV, 26, 1024 * 6144); srd(a, SWIN, 32, 1024 * 7168)
    srd(a, SDBG, 42, 256); srd(a, SWSP, 34, 2048 * 4096); srd(a, SB, 36, 4096); srd(a, SWO, 28, 1024 * 2048)
    srd(a, SWOUT, 38, 1792 * 2048); srd(a, SOUT, 40, 4 * MB)
    a.e("s_lshr_b32 s46, s20, 1")
    for G in (1, 2, 3):
        a.e(f"s_cmp_eq_u32 s46, {G}"); a.e(f"s_cbranch_scc1 L_g{G}")
    vm = VM()
    for G in range(4):
        a.label(f"L_g{G}")
        D = len(dmas1(G, 0))
        a.e("s_lshl_b32 s24, s21, 18")
        a.e(f"s_lshl_b32 s25, s{101 if G == 0 else 100}, 7")
        if G & 1: a.e(f"s_add_u32 s25, s25, {2048 if G == 1 else 4096}")
        a.e("s_mul_i32 s26, s22, 224")
        a.e("s_lshl_b32 s27, s20, 11")
        a.e("s_mul_i32 s28, s23, 13312")
        TP = cfg.get("pf", 1)
        ln(a, cfg, G)
        if G < 2:
            addr2(a)
            if G == 0:
                L = lbl("nox")
                a.e("s_cmp_lg_u32 s20, 0"); a.e(f"s_cbranch_scc1 {L}")
                poll_spin(a, "s30", 66)
                a.label(L)
            a.e("s_barrier")
            st(a, cfg, 1)
            n2 = cfg.get("ln_n2", 4)
            for s in range(4):
                for grp in dmas1(G, s, "A" if s < n2 else "AB"): emit(a, grp)
            c = [2 if s < n2 else 4 for s in range(4)]
            w0 = [sum(c[1:]), sum(c[2:]), c[3] + 4, 8, 8]
        else:
            nt = touch(a, cfg, G) if cfg.get('tpos', 1) == 1 else 0
            addr2(a)
            a.e("s_barrier")
            st(a, cfg, 1)
            for s in range(cfg.get("ln_n2", 4), 4):
                for grp in dmas1(G, s): emit(a, grp)
            if cfg.get('tpos', 1) == 2: nt = touch(a, cfg, G)
            w0 = [3*D + nt, 2*D + nt, 2*D + nt, 2*D + nt, 2*D]
        a.e(f"s_waitcnt vmcnt({w0[0]})")
        a.e("s_barrier")
        st(a, cfg, "d0")
        a("; hot")
        for r in reads1(G, 0, 0): a.e(r)
        tch = G >= 2 and TP
        for t in range(4):
            step1(a, cfg, G, t, dmas1(G, t), w0[t + 1] + (NTCH(G) if tch and t else 0), first=(t == 0), extra=TOUCH(G) if tch and t == 0 else None)
        a.e("s_mov_b32 s29, 6")
        a.label(f"L_loop1_{G}")
        for t in range(4):
            step1(a, cfg, G, t, dmas1(G, t), 2*D + (NTCH(G) if tch and t else 0),
                  extra=TOUCH(G) if tch and t == 0 else None)
        a.e("s_sub_u32 s29, s29, 1"); a.e("s_cmp_lg_u32 s29, 0"); a.e(f"s_cbranch_scc1 L_loop1_{G}")
        for t in range(3): step1(a, cfg, G, t, [], [2*D, D, 0][t])
        DM = []
        if G < 2:
            a.e("s_lshl_b32 s24, s21, 19"); a.e("s_lshl_b32 s36, s20, 17"); a.e("s_add_u32 s24, s24, s36"); a.e("s_lshl_b32 s27, s20, 12")
            if ROT:
                a.e("s_mov_b32 s26, s24"); a.e("s_add_u32 s25, s24, 4096")
                a.e(f"s_mul_i32 s36, s21, {128*ROT}"); a.e("s_and_b32 s36, s36, 4095"); a.e("s_add_u32 s24, s24, s36")
            for s in range(4): DM += dmas2(0, s)
        step1(a, cfg, G, 3, DM, None, last=True, dpos=(0, 1.6) if False else (0, 2))
        a("; cold")
        st(a, cfg, 2)
        for k, c in ((42, GC1), (44, 1.0), (46, LOG2E), (48, 1e-6)):
            a.e(f"s_mov_b32 s{k}, {f2u(c):#x}"); a.e(f"s_mov_b32 s{k+1}, {f2u(c):#x}")
        a.e(f"v_mov_b32 v12, {f2u(GC0):#x}"); a.e(f"v_mov_b32 v13, {f2u(GC0):#x}")
        epi_addr(a, G)
        if G == 3 and cfg.get("t2", [3]):
            a.e("s_lshl_b32 s30, s21, 2"); a.e("s_and_b32 s31, s22, 3"); a.e("s_add_u32 s30, s30, s31"); a.e("s_lshl_b32 s30, s30, 1")
            a.e("s_add_u32 s30, s30, s23"); a.e("s_lshl_b32 s30, s30, 16")
            a.e("v_and_b32 v124, 15, v1"); a.e("v_lshlrev_b32 v124, 12, v124"); a.e("v_lshrrev_b32 v125, 4, v1"); a.e("v_lshl_add_u32 v124, v125, 10, v124")
            if cfg.get("t2h", 4) < 4:
                a.e(f"v_cmp_gt_u32 vcc, {16 * cfg['t2h']}, v1"); a.e("v_bfrev_b32 v125, 1"); a.e("v_cndmask_b32 v124, v125, v124, vcc")
            for c in cfg.get("t2", [3]): a.e(f"buffer_load_dword v125, v124, {sr(SWSP,4)}, s30 offen offset:{128*c}")
        epi_z2a(a, cfg, G)
        epi_attn(a, cfg, G)
        st(a, cfg, "at")
        epi_z2b(a, cfg, G)
        st(a, cfg, "zs")
        epi_z1(a, cfg, G, 0)
        st(a, cfg, "z1")
        a.e("s_waitcnt vmcnt(0)")
        a.e("s_barrier")
        st(a, cfg, "s3")
        if G == 0:
            L = lbl("noz")
            a.e("s_cmp_lg_u32 s20, 0"); a.e(f"s_cbranch_scc1 {L}")
            a.e("s_lshl_b32 s30, s22, 4"); a.e("s_add_u32 s30, s30, 4")
            atomic_inc(a, "s30", 20)
            poll_spin(a, "s30", 20)
            a.label(L)
        epi_z1(a, cfg, G, 1)
        if G == 0: a.e("s_branch L_r0")
        else: stage2(a, cfg, G - 1, vm)
    stage3(a, cfg, vm)
    a.label("L_end")
    a.e("s_endpgm")
    return (name, "(256,1,1)", "(512,1,1)", LDS, dict(vgpr=256, sgpr=102, accum=256))

def gen(cfg):
    global BOUND, SLEEP, ASC, XR, ROT, T3, LT
    LT = cfg.get('lt', 1)
    T3 = cfg.get('t3', [0, 2, 16])
    ROT = cfg.get('rot', 0)
    XR = cfg.get('xr', [0, 0, 0])
    ASC = '' if cfg.get('nosc1') else ' sc1'
    BOUND = cfg.get('bound', 6000); SLEEP = cfg.get('sleep', 0)
    Lbl.n = 0
    body = Asm()
    name, g, b, lds, d = fused(body, cfg)
    a = Asm()
    a(f"; @launch grid={g} block={b} lds={lds}")
    a('.amdgcn_target "amdgcn-amd-amdhsa--gfx950"')
    a.lines += [l.strip() if l.startswith("    ") else l for l in body.lines]
    kernel_desc(a, name, **d)
    t = a.text()
    if cfg.get("align", 1):
        from align import align
        t, nfix = align(t)
        if cfg.get("verbose"): print("align fixes (e64, nop, left):", nfix)
    return t
if __name__ == "__main__":
    import sys, json
    cfg = json.loads(sys.argv[2]) if len(sys.argv) > 2 else {}
    if "k1_d" in cfg: cfg["k1_d"] = {int(k): v for k, v in cfg["k1_d"].items()}
    open(sys.argv[1], "w").write(gen(cfg))
```

```python
from gen_common import *
from gen_k1 import gelu8, phi8, pack
import gen_k1
S1 = 34 * 1024
S2 = 30 * 1024
ZS = 4 * S2
SS = ZS + 28 * 1024
CNT = SS + 5 * 1024
LDS = 160 * 1024
BOUND = 6000
SWS, SDBG, SQKV, SWIN, SX, SWSP, SB, SWO, SWOUT, SOUT, STCH = 16, 4, 8, 12, 52, 56, 60, 64, 68, 72, 76
WS, DBG = sr(SWS, 4), sr(SDBG, 4)
ACC = 128
def st(a, cfg, name):
    names = cfg.get("stamps", [0, 1, 2, 3, 4, 5, 6, 7])
    if cfg.get("tim") and name in names:
        idx = names.index(name)
        a.e(f"{'s_memrealtime' if cfg.get('rt') else 's_memtime'} s[{80+2*idx}:{81+2*idx}]")
def emit(a, grp):
    for ins in grp: a.e("s_nop 0" if ins == "@" else ins)
class Lbl:
    n = 0
def lbl(p):
    Lbl.n += 1; return f"L_{p}_{Lbl.n}"
def atomic_inc(a, soff, t=12):
    a.e(f"v_mov_b32 v{t}, 1"); a.e(f"v_mov_b32 v{t+1}, 0")
    a.e("s_mov_b64 exec, 1")
    a.e(f"buffer_atomic_add v{t}, v{t+1}, {DBG}, {soff} offen sc1")
    a.e("s_mov_b64 exec, -1")
def poll_issue(a, soff, t):
    a.e(f"v_mov_b32 v{t+1}, 0")
    a.e("s_mov_b64 exec, 1")
    a.e(f"buffer_load_dword v{t}, v{t+1}, {DBG}, {soff} offen sc1")
    a.e("s_mov_b64 exec, -1")
def poll_spin(a, soff, t, pre=False):
    L, X, C = lbl("poll"), lbl("pollx"), lbl("pollc")
    a.e("s_mov_b32 s36, 0")
    if pre: a.e(f"s_branch {C}")
    a.label(L)
    if SLEEP: a.e(f"s_sleep {SLEEP}")
    poll_issue(a, soff, t)
    a.e("s_waitcnt vmcnt(0)")
    a.label(C)
    a.e(f"v_readfirstlane_b32 s37, v{t}")
    a.e("s_add_u32 s36, s36, 1")
    a.e("s_cmp_ge_u32 s37, 16")
    a.e(f"s_cbranch_scc1 {X}")
    a.e(f"s_cmp_lt_u32 s36, {BOUND}")
    a.e(f"s_cbranch_scc1 {L}")
    a.label(X)

FLG = 45 * MB
def flag_set(a, which, t):
    A, B = ("s22", "s21") if which == 0 else ("s21", "s22")
    a.e(f"s_lshl_b32 s30, {A}, 4"); a.e(f"s_add_u32 s30, s30, {B}"); a.e("s_lshl_b32 s30, s30, 7"); a.e(f"s_add_u32 s30, s30, {FLG + which*32768}")
    for k in range(4): a.e(f"v_mov_b32 v{t+k}, 0")
    a.e("s_mov_b64 exec, 0xff")
    a.e(f"buffer_store_dwordx4 {vr(t,4)}, v11, {WS}, s30 offen sc1")
    a.e("s_mov_b64 exec, -1")
def flag_issue(a, soff, t):
    a.e(f"v_mov_b32 v{t}, 0"); a.e(f"v_lshlrev_b32 v{t+1}, 3, v11")
    a.e("s_mov_b64 exec, 0xffff")
    a.e(f"buffer_load_dword v{t}, v{t+1}, {WS}, {soff} offen sc1")
    a.e("s_mov_b64 exec, -1")
def flag_spin(a, soff, t, pre=False):
    L, X, C = lbl("poll"), lbl("pollx"), lbl("pollc")
    a.e("s_mov_b32 s36, 0")
    if pre: a.e(f"s_branch {C}")
    a.label(L)
    flag_issue(a, soff, t)
    a.e("s_waitcnt vmcnt(0)")
    a.label(C)
    a.e(f"v_cmp_eq_u32 vcc, -1, v{t}")
    a.e("s_add_u32 s36, s36, 1")
    a.e(f"s_cmp_ge_u32 s36, {BOUND}"); a.e(f"s_cbranch_scc1 {X}")
    a.e("s_cmp_lg_u64 vcc, 0"); a.e(f"s_cbranch_scc1 {L}")
    a.label(X)

def acc(n, m): return ACC + (n * 4 + m) * 4
def fa(P, m): return 16 + 16 * P + 4 * m
def fb(P, n): return 48 + 28 * P + 4 * n
def tiles_of(G):
    z1 = lambda p: ("z1", 6 + p // 2 if p < 6 else 9, p & 1 if p < 6 else 0, p)
    z2 = lambda p: ("z2", 10 + p // 2 if p < 6 else 9, p & 1 if p < 6 else 1, p)
    if G == 0: return [("k", 2, 0, 0), ("k", 2, 1, 1), ("v", 4, 0, 0), ("v", 4, 1, 1), z2(0), z2(1), z1(0)]
    if G == 1: return [("k", 3, 0, 0), ("k", 3, 1, 1), ("v", 5, 0, 0), ("v", 5, 1, 1), z2(2), z1(1), z1(2)]
    if G == 2: return [("q", 0, 0, 0), ("q", 0, 1, 1), z2(3), z2(4), z1(3), z1(4)]
    if G == 3: return [("q", 1, 0, 0), ("q", 1, 1, 1), z2(5), z2(6), z1(5), z1(6)]
def dmas1(G, slot, which="AB"):
    out = []
    base = slot * S1
    def B(c, imm, v, srd_, so):
        return [f"s_add_u32 m0, s28, {base + 8192 + c*1024 - imm}", "@",
                f"buffer_load_dwordx4 v{v}, {sr(srd_,4)}, s{so} offen offset:{imm} lds"]
    if G in (0, 1):
        if "A" in which:
            out.append([f"s_add_u32 m0, s27, {base}", "@", f"buffer_load_dwordx4 v2, {WS}, s24 offen{ASC} lds"])
            out.append([f"buffer_load_dwordx4 v2, {WS}, s24 offen offset:1024{ASC} lds", "s_add_u32 s24, s24, 8192"])
        if "B" in which:
            c0 = 0 if G == 0 else 2
            out.append(B(c0, 0, 3, SQKV, 25))
            out.append(B(c0 + 1, 64, 3, SQKV, 25) + [f"s_add_u32 s25, s25, {32*6144}"])
    if G == 2:
        for c in range(3): out.append(B(6 + c, 64 * c, 4, SWIN, 26))
        out.append(B(9, 0, 15, SWIN, 26) + [f"s_add_u32 s26, s26, {32*7168}"])
    if G == 3:
        out.append(B(4, 0, 3, SQKV, 25))
        out.append(B(5, 64, 3, SQKV, 25) + [f"s_add_u32 s25, s25, {32*6144}"])
        for c in range(3): out.append(B(10 + c, 3584 + 64 * c, 4, SWIN, 26))
        out[-1].append(f"s_add_u32 s26, s26, {32*7168}")
    return out
def reads1(G, P, slot):
    hi = slot >> 1
    base = (slot & 1) * S1
    out = [f"ds_read_b128 {vr(fa(P,m),4)}, v{5+hi} offset:{base + m*1024}" for m in range(4)]
    for n, (kind, blk, hf, zn) in enumerate(tiles_of(G)):
        for h in range(2):
            out.append(f"ds_read_b64_tr_b16 {vr(fb(P,n)+2*h,2)}, v{7+2*hi+hf} offset:{base + blk*1024 + h*256}")
    if XR[0] == 1: out = out[::2]
    if XR[0] == 2: out = out[4:]
    return out
def mfmas1(G, P, first=False):
    out = []
    for n, (kind, blk, hf, zn) in enumerate(tiles_of(G)):
        for m in range(4):
            A, Bq = vr(fa(P, m), 4), vr(fb(P, n), 4)
            if kind in ("q", "z1"): A, Bq = Bq, A
            out.append(f"v_mfma_f32_16x16x32_bf16 {vr(acc(n,m),4)}, {A}, {Bq}, {'0' if first else vr(acc(n,m),4)}")
    return out
def place(fill, DM, d0, ds, nM):
    used = set()
    for k, grp in enumerate(DM):
        p = min(d0 + k * ds, nM - 2)
        if "@" in grp:
            assert p not in used; used.add(p)
            i = grp.index("@")
            fill.append((p, grp[:i])); fill.append((p + 1, grp[i+1:]))
        else:
            fill.append((p + 1, grp))
def step1(a, cfg, G, t, DM, nwait, first=False, last=False, extra=None, dpos=None):
    P = t & 1
    a.e(f"s_waitcnt vmcnt({nwait}) lgkmcnt(0)" if nwait is not None else "s_waitcnt lgkmcnt(0)")
    a.e("s_barrier")
    M = mfmas1(G, P, first)
    fill = []
    if not last:
        r0 = cfg.get("k1_r0", 0); rs = cfg.get("k1_rs", 1.0)
        for k, r in enumerate(reads1(G, P ^ 1, (t + 1) & 3)): fill.append((int(r0 + k * rs), [r]))
    d0, ds = dpos or cfg.get("k1_d", {}).get(G, (2, 5))
    place(fill, DM, d0, ds, len(M))
    if cfg.get("dot"):
        nt = len(tiles_of(G))
        ops = [f"v_dot2_f32_bf16 v{240+n}, v{fb(P,n)+h}, s49, v{240+n}" for h in range(2) for n in range(nt)]
        ops += [f"v_dot2_f32_bf16 v{248+u}, v{fa(P,G)+h}, {'s49' if u == 0 else 'v%d' % (fa(P,G)+h)}, v{248+u}" for h in range(4) for u in range(2)]
        for k, o in enumerate(ops): fill.append((int(k * (len(M) - 1) / len(ops)), [o]))
    if extra: fill.append((len(M) - 1, extra))
    interleave(a, M, fill)

def TOUCH(G):
    t = [f"buffer_load_dword v125, v124, s[76:79], 0 offen", "v_add_u32 v124, s3, v124"]
    if G == 2 and LT: t += [f"buffer_load_dword v125, v126, s[76:79], 0 offen", "v_add_u32 v126, s3, v126"]
    return t
def NTCH(G): return 2 if G == 2 and LT else 1
def touch(a, cfg, G):
    if G < 2 or not cfg.get("pf", 1): return 0
    L, L2 = lbl("t"), lbl("t")
    a.e("s_cmp_lg_u32 s23, 0"); a.e(f"s_cbranch_scc1 {L}")
    for mw in range(2):
        if G == 2:
            sb, stride = ((SQKV, 6144), (SWIN, 7168))[mw]
            n = stride // 256
            srd_at(a, STCH, sb, 128 * stride, 896 * stride)
            a.e(f"s_mov_b32 s3, {128 * stride}")
            if LT:
                a.e("s_and_b32 s46, s21, 7"); a.e("s_lshl_b32 s46, s46, 4"); a.e("v_and_b32 v124, 15, v12"); a.e("v_add_u32 v124, s46, v124")
                a.e(f"v_mul_u32_u24 v124, {stride}, v124"); a.e("v_lshrrev_b32 v125, 4, v12")
                if mw == 0:
                    a.e("v_lshl_add_u32 v124, v125, 11, v124"); a.e("s_lshl_b32 s46, s101, 7"); a.e("s_lshl_b32 s47, s100, 7")
                    a.e("v_mov_b32 v125, s47"); a.e("v_mov_b32 v126, s46"); a.e("v_cmp_gt_u32 vcc, 16, v12"); a.e("v_cndmask_b32 v125, v125, v126, vcc")
                else:
                    a.e("v_lshlrev_b32 v125, 7, v125"); a.e("v_min_u32 v125, 220, v125"); a.e("s_mul_i32 s46, s22, 224"); a.e("v_add_u32 v125, s46, v125")
                a.e("v_add_u32 v124, v124, v125")
                a.e("v_cmp_gt_u32 vcc, 48, v12"); a.e("v_bfrev_b32 v126, 1"); a.e("v_cndmask_b32 v124, v126, v124, vcc")
                if mw: a.e("v_add_u32 v126, 3584, v124")
                if mw == 0: a.e(f"s_branch {L2}"); a.label(L)
                continue
            a.e(f"s_mul_i32 s46, s2, {n}"); a.e("v_add_u32 v124, s46, v12"); a.e("v_lshlrev_b32 v124, 7, v124")
            a.e(f"v_cmp_gt_u32 vcc, {n}, v12"); a.e("v_bfrev_b32 v125, 1"); a.e("v_cndmask_b32 v124, v125, v124, vcc")
        else:
            sb, n = ((SWSP, 32768), (SWOUT, 14336))[mw]
            a.e(f"s_mul_i32 s46, s2, {n}"); srd_at(a, STCH, sb, "s46", n)
            a.e("s_mov_b32 s3, 8192"); a.e("v_lshlrev_b32 v124, 7, v12")
        if mw == 0: a.e(f"s_branch {L2}"); a.label(L)
    a.label(L2)
    if G == 3:
        if cfg.get("cpf", 0) >= 2:
            Lp = lbl("pc")
            a.e("s_getpc_b64 s[40:41]"); a.label(Lp)
            a.e(f"s_sub_u32 s40, s40, {Lp}-L_start"); a.e("s_subb_u32 s41, s41, 0"); a.e("s_and_b32 s41, s41, 0xffff")
            a.e("s_mov_b32 s42, L_end-L_start"); a.e("s_mov_b32 s43, 0x00020000")
            if cfg["cpf"] == 2:
                a.e("s_lshr_b32 s46, s2, 3"); a.e("s_lshl_b32 s46, s46, 1"); a.e("s_add_u32 s46, s46, s23"); a.e("s_mul_i32 s46, s46, 9")
                a.e("v_min_u32 v126, 8, v12"); a.e("v_add_u32 v126, s46, v126"); a.e("v_lshlrev_b32 v126, 7, v126")
                a.e("buffer_load_dword v125, v126, s[40:43], 0 offen")
                return 1
            a.e("s_lshl_b32 s46, s23, 6"); a.e("v_add_u32 v126, s46, v12"); a.e("v_lshlrev_b32 v126, 7, v126")
            for k in range(5):
                a.e("buffer_load_dword v125, v126, s[40:43], 0 offen")
                if k < 4: a.e("v_add_u32 v126, 16384, v126")
            return 5
        tl = cfg.get("tlb", 0)
        if tl:
            a.e(f"v_lshlrev_b32 v126, {tl}, v12"); a.e(f"s_lshl_b32 s46, s23, {tl + 6}"); a.e(f"s_add_u32 s46, s46, {Z2N}")
            a.e(f"buffer_load_dword v125, v126, {WS}, s46 offen sc1")
            a.e("v_lshlrev_b32 v126, 12, v12"); a.e("s_lshl_b32 s46, s50, 18")
            a.e(f"buffer_load_dword v125, v126, {sr(SOUT,4)}, s46 offen")
            return 2
        return 0
    for t in range(cfg.get("tn", 1)): emit(a, TOUCH(G))
    return cfg.get("tn", 1) * NTCH(G)

def ln(a, cfg, G):
    LO, SO, T = 64, 65, 66
    wh = "B" if G < 2 else "AB"
    n0, n1 = cfg.get("ln_n0", 1), cfg.get("ln_n1", 1)
    a.e("s_lshr_b32 s30, s22, 1"); a.e("s_and_b32 s31, s22, 1")
    a.e("s_lshl_b32 s32, s21, 2"); a.e("s_lshr_b32 s33, s30, 1"); a.e("s_add_u32 s32, s32, s33"); a.e("s_lshl_b32 s32, s32, 5")
    a.e("s_and_b32 s33, s30, 1"); a.e("s_lshl_b32 s33, s33, 2"); a.e("s_add_u32 s32, s32, s33")
    a.e("s_lshl_b32 s33, s31, 4"); a.e("s_add_u32 s32, s32, s33")
    a.e("s_lshl_b32 s32, s32, 11"); a.e("s_lshl_b32 s33, s20, 8"); a.e("s_add_u32 s32, s32, s33")
    for n in range(2):
        a.e(f"buffer_load_dwordx4 v[{16+4*n}:{19+4*n}], v{LO}, {sr(SX,4)}, s32 offen offset:{128*n}")
    nv = touch(a, cfg, G) if cfg.get("tpos", 1) == 0 else 0
    for s in range(n0):
        for grp in dmas1(G, s, wh): emit(a, grp); nv += 1
    if G == 0:
        a.e("s_lshl_b32 s33, s21, 4"); a.e("s_add_u32 s33, s33, s22"); a.e("s_lshl_b32 s33, s33, 10")
        a.e(f"s_add_u32 s33, s33, {STATS}")
        a.e("s_mul_i32 s34, s100, 6144"); a.e("s_mul_i32 s35, s21, 384"); a.e("s_add_u32 s34, s34, s35")
        a.e(f"s_add_u32 s34, s34, {KVR}")
        a.e("s_cmp_eq_u32 s23, 0")
        a.e("s_cselect_b32 s33, s33, s34")
        a.e("s_cselect_b32 s34, 63, 23")
        a.e(f"v_min_u32 v{T+2}, s34, v12"); a.e(f"v_lshlrev_b32 v{T+2}, 4, v{T+2}")
        for k in range(4): a.e(f"v_mov_b32 v{72+k}, -1")
        a.e(f"buffer_store_dwordx4 v[72:75], v{T+2}, {WS}, s33 offen sc1")
        nv += 1
    if G == 1:
        a.e("s_lshl_b32 s33, s22, 4"); a.e("s_add_u32 s33, s33, s21"); a.e("s_lshl_b32 s34, s21, 4"); a.e("s_add_u32 s34, s34, s22")
        a.e(f"v_mov_b32 v72, s33"); a.e("v_mov_b32 v73, s34"); a.e("v_cmp_gt_u32 vcc, 8, v12"); a.e("v_cndmask_b32 v72, v73, v72, vcc")
        a.e("v_min_u32 v73, 23, v12"); a.e("v_lshrrev_b32 v74, 3, v73"); a.e("v_lshl_add_u32 v72, v74, 8, v72")
        a.e("v_and_b32 v73, 7, v73"); a.e("v_lshlrev_b32 v73, 4, v73"); a.e(f"v_lshl_add_u32 v{T+2}, v72, 7, v73")
        a.e(f"s_mov_b32 s33, {FLG}")
        for k in range(4): a.e(f"v_mov_b32 v{72+k}, -1")
        a.e(f"buffer_store_dwordx4 v[72:75], v{T+2}, {WS}, s33 offen sc1")
        nv += 1
    a.e("s_lshl_b32 s32, s21, 18"); a.e("s_lshl_b32 s33, s30, 10"); a.e("s_add_u32 s32, s32, s33")
    a.e("s_lshl_b32 s33, s31, 7"); a.e("s_add_u32 s32, s32, s33")
    a.e("s_lshl_b32 s33, s20, 15"); a.e("s_add_u32 s32, s32, s33")
    a.e("s_add_u32 s33, s32, 16384")
    a.e("s_mov_b32 s36, 0xffff0000")
    st(a, cfg, "dma")
    a.e(f"s_waitcnt vmcnt({nv})")
    st(a, cfg, "x")
    if cfg.get("tpos", 1) == 3: touch(a, cfg, G)
    for k in range(8):
        a.e(f"v_lshlrev_b32 v{32+2*k}, 16, v{16+k}")
        a.e(f"v_and_b32 v{33+2*k}, s36, v{16+k}")
    x = lambda k: vr(32 + 2*k, 2)
    p0, p1 = vr(T, 2), vr(T+2, 2)
    a.e(f"v_pk_add_f32 {p0}, {x(0)}, {x(1)}"); a.e(f"v_pk_mul_f32 {p1}, {x(0)}, {x(0)}")
    for k in range(1, 8):
        if k > 1: a.e(f"v_pk_add_f32 {p0}, {p0}, {x(k)}")
        a.e(f"v_pk_fma_f32 {p1}, {x(k)}, {x(k)}, {p1}")
    a.e(f"v_add_f32 v{T}, v{T}, v{T+1}"); a.e(f"v_add_f32 v{T+1}, v{T+2}, v{T+3}")
    a.e("s_nop 1")
    for k in range(2): a.e(f"v_add_f32_dpp v{T+k}, v{T+k}, v{T+k} row_ror:8 row_mask:0xf bank_mask:0xf")
    for op in ("v_permlane16_swap_b32", "v_permlane32_swap_b32"):
        for k in range(2): a.e(f"v_mov_b32 v{T+2+k}, v{T+k}")
        a.e("s_nop 1")
        for k in range(2): a.e(f"{op} v{T+2+k}, v{T+k}")
        a.e("s_nop 1")
        a.e(f"v_pk_add_f32 {p0}, {p0}, {p1}")
    a.e("s_mov_b64 exec, 0xff")
    a.e(f"ds_write_b64 v62, {p0}")
    a.e("s_mov_b64 exec, -1")
    a.e("s_waitcnt lgkmcnt(0)")
    a.e("s_barrier")
    for k in range(4): a.e(f"ds_read_b128 {vr(16+4*k,4)}, v63 offset:{16*k}")
    a.e("s_waitcnt lgkmcnt(0)")
    for lv in (4, 2, 1):
        for k in range(lv): a.e(f"v_pk_add_f32 {vr(16+2*k,2)}, {vr(16+2*k,2)}, {vr(16+2*(k+lv),2)}")
    a.e(f"v_mul_f32 v16, {f2u(1.0/1024):#x}, v16"); a.e(f"v_mul_f32 v17, {f2u(1.0/1024):#x}, v17")
    a.e("v_fma_f32 v17, -v16, v16, v17"); a.e("v_max_f32 v17, 0, v17"); a.e(f"v_add_f32 v17, {f2u(1e-5):#x}, v17")
    a.e("v_rsq_f32 v18, v17")
    a.e("v_mul_f32 v16, -1.0, v16")
    a.e("v_mov_b32 v17, v16"); a.e("v_mov_b32 v19, v18")
    for k in range(8): a.e(f"v_pk_add_f32 {x(k)}, {x(k)}, v[16:17]")
    for k in range(8): a.e(f"v_pk_mul_f32 {x(k)}, {x(k)}, v[18:19]")
    for k in range(8): a.e(f"v_cvt_pk_bf16_f32 v{20+k}, v{32+2*k}, v{33+2*k}")
    for n in range(2):
        a.e(f"buffer_store_dwordx4 v[{20+4*n}:{23+4*n}], v{SO}, {WS}, s{32+n} offen sc1")
    nv = 0
    for s in range(n0, n0 + n1):
        for grp in dmas1(G, s, wh): emit(a, grp); nv += 1
    a.e("s_lshl_b32 s30, s21, 4")
    st(a, cfg, "ln")
    a.e(f"s_waitcnt vmcnt({nv})")
    a.e("s_barrier")
    st(a, cfg, "xn")
    if G == 0:
        L = lbl("noarr")
        a.e("s_cmp_lg_u32 s20, 0"); a.e(f"s_cbranch_scc1 {L}")
        atomic_inc(a, "s30", T)
        a.label(L)
    for s in range(n0 + n1, cfg.get("ln_n2", 4)):
        for grp in dmas1(G, s, wh): emit(a, grp)

def addr2(a):
    a.e("v_lshrrev_b32 v13, 3, v12"); a.e("v_lshrrev_b32 v14, 5, v12"); a.e("v_and_b32 v123, 3, v13")
    a.e("v_lshl_add_u32 v14, v14, 3, v123"); a.e("v_lshlrev_b32 v14, 12, v14")
    a.e("v_lshrrev_b32 v13, 4, v12"); a.e("v_and_b32 v123, 7, v12"); a.e("v_xor_b32 v13, v13, v123")
    a.e("v_lshl_add_u32 v112, v13, 4, v14")
    a.e("v_xor_b32 v113, 64, v112")
    a.e(f"v_add_u32 v114, {16384-2048}, v112")
    a.e(f"v_add_u32 v115, {81920-3072}, v113")
    a.e(f"v_add_u32 v113, {65536-1024}, v113")
    a.e("v_and_b32 v13, 15, v12"); a.e("v_lshrrev_b32 v14, 1, v13"); a.e("v_lshrrev_b32 v123, 4, v12")
    a.e("v_xor_b32 v14, v14, v123"); a.e("v_lshlrev_b32 v14, 4, v14")
    a.e("v_lshl_add_u32 v116, v13, 7, v14")
    a.e("s_and_b32 s36, s20, 3"); a.e("s_lshl_b32 s36, s36, 12")
    a.e("v_add_u32 v116, s36, v116")
    a.e("v_xor_b32 v117, 64, v116")
    a.e(f"v_add_u32 v118, {2*S2}, v116"); a.e(f"v_add_u32 v119, {2*S2}, v117")
    a.e("s_lshr_b32 s36, s20, 2"); a.e("s_lshl_b32 s36, s36, 12"); a.e("s_add_u32 s36, s36, 16384")
    a.e("v_add_u32 v121, s36, v11"); a.e(f"v_add_u32 v122, {2*S2}, v121")
    a.e("v_bfe_u32 v13, v12, 2, 2"); a.e("v_and_b32 v14, 3, v12"); a.e("v_lshl_add_u32 v13, v13, 3, v14")
    a.e("v_lshlrev_b32 v120, 1, v13")

def epi_z2a(a, cfg, G):
    T = tiles_of(G)
    S, Q = 16, 32
    zt = [n for n, t in enumerate(T) if t[0] == "z2"]
    for zi, n in enumerate(zt):
        for p in range(2):
            r0, r1 = acc(n, 2*p), acc(n, 2*p+1)
            xs = [r0, r0+2, r1, r1+2]
            gelu8(a, xs, 104)
            for k in range(4):
                s, q = S + 8*p + 2*k, Q + 8*p + 2*k
                if zi == 0: a.e(f"v_pk_mul_f32 {vr(q,2)}, {vr(xs[k],2)}, {vr(xs[k],2)}")
                else:
                    a.e(f"v_pk_add_f32 {vr(s,2)}, {vr(xs[k]-16,2)}, {vr(xs[k],2)}")
                    a.e(f"v_pk_fma_f32 {vr(q,2)}, {vr(xs[k],2)}, {vr(xs[k],2)}, {vr(q,2)}")
    a.e("s_nop 1")
    src = (lambda k: S + k) if len(zt) > 1 else (lambda k: acc(zt[0], 0) + k)
    for k in range(16): a.e(f"v_add_f32_dpp v{S+k}, v{src(k)}, v{src(k)} row_ror:8 row_mask:0xf bank_mask:0x3")
    for k in range(16): a.e(f"v_add_f32_dpp v{S+k}, v{Q+k}, v{Q+k} row_ror:8 row_mask:0xf bank_mask:0xc")
    for k in range(8): a.e(f"v_add_f32_dpp v{S+k}, v{S+k}, v{S+k} row_shl:4 row_mask:0xf bank_mask:0x5")
    for k in range(8): a.e(f"v_add_f32_dpp v{S+k}, v{S+8+k}, v{S+8+k} row_shr:4 row_mask:0xf bank_mask:0xa")
    for k in range(8): a.e(f"v_add_f32_dpp v{S+k}, v{S+k}, v{S+k} quad_perm:[1,0,3,2] row_mask:0xf bank_mask:0xf")
    for k in range(8): a.e(f"v_add_f32_dpp v{S+k}, v{S+k}, v{S+k} quad_perm:[2,3,0,1] row_mask:0xf bank_mask:0xf")
    a.e("s_mov_b32 s30, 0x11111111"); a.e("s_mov_b32 s31, 0x11111111")
    a.e("s_mov_b64 exec, s[30:31]")
    a.e(f"ds_write_b128 v2, {vr(S,4)} offset:{G*1024}")
    a.e(f"ds_write_b128 v2, {vr(S+4,4)} offset:{G*1024+16}")
    a.e("s_mov_b64 exec, -1")
    st(a, cfg, "g2")
    a.e("s_waitcnt lgkmcnt(0)")
    a.e("s_barrier")
    st(a, cfg, "s1")
    if G == 2:
        for g in range(4): a.e(f"ds_read2st64_b32 {vr(16+2*g,2)}, v3 offset0:{4*g} offset1:{4*g+2}")
        a.e("s_lshl_b32 s34, s21, 14"); a.e(f"s_add_u32 s34, s34, {STATS}")
        a.e("s_lshl_b32 s35, s22, 10"); a.e("s_add_u32 s35, s35, s34")
        a.e("s_waitcnt lgkmcnt(0)")
        a.e("v_pk_add_f32 v[16:17], v[16:17], v[18:19]")
        a.e("v_pk_add_f32 v[20:21], v[20:21], v[22:23]")
        a.e("v_pk_add_f32 v[16:17], v[16:17], v[20:21]")
        a.e(f"buffer_store_dwordx2 v[16:17], v4, {WS}, s35 offen sc1")

def epi_addr(a, G):
    a.e("v_and_b32 v1, 63, v0")
    a.e("v_bfe_u32 v2, v1, 3, 1"); a.e("v_lshlrev_b32 v2, 9, v2")
    a.e("v_bfe_u32 v3, v1, 2, 1"); a.e("v_lshl_add_u32 v2, v3, 7, v2")
    a.e("v_lshrrev_b32 v3, 4, v1"); a.e("v_lshlrev_b32 v5, 5, v3")
    a.e("s_lshl_b32 s30, s23, 8"); a.e(f"s_add_u32 s30, s30, {SS}")
    a.e("v_add_u32 v5, s30, v5")
    a.e("v_add_u32 v2, v2, v5")
    if G == 2:
        a.e("s_lshl_b32 s30, s23, 6"); a.e("v_add_u32 v4, s30, v1")
        a.e("v_lshlrev_b32 v3, 2, v4"); a.e(f"v_add_u32 v3, {SS}, v3")
        a.e("v_lshlrev_b32 v4, 3, v4")
    a.e("s_lshl_b32 s30, s23, 11"); a.e(f"s_add_u32 s30, s30, {ZS}")
    a.e("v_add_u32 v6, s30, v11")

def epi_attn(a, cfg, G):
    if G in (0, 1):
        for k in range(4): a.e(f"v_mov_b32 v{48+k}, 0x3f803f80")
        for et in range(2):
            for p in range(2): pack(a, 32 + 8*et + 4*p, acc(2+et, 2*p), acc(2+et, 2*p+1))
        for dt in range(2):
            for p in range(2):
                r0, r1 = acc(dt, 2*p), acc(dt, 2*p+1)
                phi8(a, [r0, r0+2, r1, r1+2], 104)
                pack(a, 16 + 8*dt + 4*p, r0, r1)
        a.e("s_nop 1")
        for p in range(2):
            for et in range(3):
                for dt in range(2):
                    d = vr(56 + 8*et + 4*dt, 4)
                    Bq = vr(32 + 8*et + 4*p, 4) if et < 2 else vr(48, 4)
                    a.e(f"v_mfma_f32_16x16x32_bf16 {d}, {vr(16+8*dt+4*p,4)}, {Bq}, {'0' if p == 0 else d}")
        a.e(f"s_lshl_b32 s30, s100, 1")
        if G: a.e("s_add_u32 s30, s30, 1")
        a.e("s_lshl_b32 s30, s30, 5"); a.e("s_lshl_b32 s31, s21, 1"); a.e("s_add_u32 s30, s30, s31"); a.e("s_add_u32 s30, s30, s23")
        a.e("s_mul_i32 s30, s30, 6144"); a.e(f"s_add_u32 s30, s30, {KVP}"); a.e("s_add_u32 s31, s30, 4096")
        a.e("s_nop 7")
        for k in range(6):
            a.e(f"buffer_store_dwordx4 {vr(56+4*k,4)}, v11, {WS}, s{30 + (k>>2)} offen offset:{(k&3)*1024} sc1")
    else:
        for m in range(4):
            r0, r1 = acc(0, m), acc(1, m)
            phi8(a, [r0, r0+2, r1, r1+2], 104)
            pack(a, 240 + 4*m, r0, r1)

def epi_z2b(a, cfg, G):
    T = tiles_of(G)
    if G == 2:
        for k in range(1, 4): a.e(f"s_add_u32 s{37+k}, s34, {4096*k}")
        a.e("s_mov_b32 s36, 0")
        L, X = lbl("sp"), lbl("spx")
        a.label(L)
        for k in range(16):
            a.e(f"buffer_load_dwordx2 {vr(32+2*k,2)}, v4, {WS}, s{34 if k < 4 else 37 + (k>>2)} offen offset:{(k&3)*1024} sc1")
        a.e("s_add_u32 s36, s36, 1")
        for lv in (8, 4, 2, 1):
            if lv == 8: a.e("s_waitcnt vmcnt(0)")
            for k in range(lv): a.e(f"v_pk_add_f32 {vr(32+2*k,2)}, {vr(32+2*k,2)}, {vr(32+2*(k+lv),2)}")
        a.e("v_cmp_u_f32 vcc, v32, v33")
        a.e(f"s_cmp_ge_u32 s36, {BOUND}"); a.e(f"s_cbranch_scc1 {X}")
        a.e("s_cmp_lg_u64 vcc, 0"); a.e(f"s_cbranch_scc1 {L}")
        a.label(X)
        a.e(f"v_mul_f32 v32, {f2u(1.0/1792):#x}, v32")
        a.e(f"v_mul_f32 v33, {f2u(1.0/1792):#x}, v33")
        a.e("v_fma_f32 v33, -v32, v32, v33")
        a.e("v_max_f32 v33, 0, v33")
        a.e(f"v_add_f32 v33, {f2u(1e-5):#x}, v33")
        a.e("v_rsq_f32 v33, v33")
        a.e("s_nop 0")
        a.e("v_mul_f32_e64 v32, -v32, v33")
        a.e("ds_write2st64_b32 v3, v33, v32 offset0:16 offset1:18")
        a.e("s_waitcnt lgkmcnt(0)")
    a.e("s_barrier")
    st(a, cfg, 3)
    RS, NM = 16, 32
    for p in range(2):
        for q in range(2):
            a.e(f"ds_read_b128 {vr(RS+8*p+4*q,4)}, v5 offset:{4096 + p*128 + q*16}")
            a.e(f"ds_read_b128 {vr(NM+8*p+4*q,4)}, v5 offset:{4608 + p*128 + q*16}")
    a.e("s_lshl_b32 s32, s22, 6"); a.e("s_lshl_b32 s33, s21, 2"); a.e("s_add_u32 s32, s32, s33")
    a.e("s_lshl_b32 s33, s23, 1"); a.e("s_add_u32 s32, s32, s33")
    a.e("s_mul_i32 s32, s32, 7168"); a.e(f"s_add_u32 s32, s32, {Z2N}")
    a.e("s_waitcnt lgkmcnt(0)")
    k = 0
    for n, (kind, blk, hf, pos) in enumerate(T):
        if kind != "z2": continue
        for p in range(2):
            r0, r1 = acc(n, 2*p), acc(n, 2*p+1)
            xs = [r0, r0+2, r1, r1+2]
            for u in range(4): a.e(f"v_pk_fma_f32 {vr(xs[u],2)}, {vr(xs[u],2)}, {vr(RS+8*p+2*u,2)}, {vr(NM+8*p+2*u,2)}")
            d = 80 + 4 * (k & 3); k += 1
            a.e(f"s_add_u32 s33, s32, {p*7168 + pos*1024}")
            pack(a, d, r0, r1)
            a.e(f"buffer_store_dwordx4 {vr(d,4)}, v11, {WS}, s33 offen sc1")

def epi_z1(a, cfg, G, which):
    zt = [(n, t[3]) for n, t in enumerate(tiles_of(G)) if t[0] == "z1"]
    for n, pos in zt[which:which+1]:
        for p in range(2):
            r0, r1 = acc(n, 2*p), acc(n, 2*p+1)
            gelu8(a, [r0, r0+2, r1, r1+2], 104)
            pack(a, 96 + 4*p, r0, r1)
            a.e(f"ds_write_b128 v6, {vr(96+4*p,4)} offset:{pos*4096 + p*1024}")

def acc2(n, m): return ACC + (n * 2 + m) * 4
def fw(P, m): return 24 + 8 * P + 4 * m
def fz(P, n): return 40 + 16 * P + 4 * n
def ntiles(R): return 4 if R == 0 else 3
def dmas2(R, slot):
    base = slot * S2
    out = []
    D = 3 if R == 2 else 4
    for n in range(D):
        if R == 0: g = [f"buffer_load_dwordx4 v{112+n}, {sr(SWSP,4)}, s24 offen offset:{n*1024} lds"]
        else: g = [f"buffer_load_dwordx4 v11, {WS}, s24 offen offset:{n*1024}{ASC} lds"]
        if n == 0: g = [f"s_add_u32 m0, s27, {base}", "@"] + g
        if n == D - 1:
            g.append(f"s_add_u32 s24, s24, {128 if R == 0 else 14336}")
            if ROT: g += ["s_cmp_eq_u32 s24, s25", "s_cselect_b32 s24, s26, s24"]
        out.append(g)
    return out
def reads2(R, P, slot, sub):
    hi = slot >> 1
    base = (slot & 1) * S2
    out = [f"ds_read_b128 {vr(fw(P,m),4)}, v{116+2*hi+sub} offset:{base + m*2048}" for m in range(2)]
    out += [f"ds_read_b128 {vr(fz(P,n),4)}, v{121+hi} offset:{base + sub*7168 + n*1024}" for n in range(ntiles(R))]
    if XR[1] == 1: out = out[::2]
    if XR[1] == 2: out = out[2:]
    return out
def mfmas2(R, P, first=False):
    return [f"v_mfma_f32_16x16x32_bf16 {vr(acc2(n,m),4)}, {vr(fz(P,n),4)}, {vr(fw(P,m),4)}, {'0' if first else vr(acc2(n,m),4)}"
            for n in range(ntiles(R)) for m in range(2)]
def body2(a, cfg, R, slot, DM, nwait, last=False, prebar=None, dpos=None):
    a.e(f"s_waitcnt vmcnt({nwait}) lgkmcnt(0)" if nwait is not None else "s_waitcnt lgkmcnt(0)")
    if prebar: prebar()
    if not last: a.e("s_barrier")
    d0, ds = dpos or (cfg.get("k2_d0", 1), cfg.get("k2_ds", 3))
    M = mfmas2(R, 1)
    fill = []
    if not last:
        for k, r in enumerate(reads2(R, 0, (slot + 1) & 3, 0)): fill.append((k - 1, [r]))
    h = len(DM) if last else (len(DM) + 1) // 2
    place(fill, DM[:h], d0, ds, len(M))
    interleave(a, M, fill)
    if last: return
    a.e("s_waitcnt lgkmcnt(0)")
    M = mfmas2(R, 0)
    fill = [(k - 1, [r]) for k, r in enumerate(reads2(R, 1, (slot + 1) & 3, 1))]
    place(fill, DM[h:], d0, ds, len(M))
    interleave(a, M, fill)

NS, NT3 = 8, 44
def fa3(T, sub): return 160 + 8 * (T % NS) + 4 * sub
def fw3(P, nt): return 88 + 16 * P + 4 * nt
def acc3(T, nt): return (128 if T < 16 else 144) + 4 * nt
class VM:
    def __init__(self): self.ops = []
    def add(self, tag): self.ops.append(tag)
    def need(self, tags):
        assert all(t in self.ops for t in tags), tags
        return min(63, len(self.ops) - 1 - max(i for i, t in enumerate(self.ops) if t in tags))
def aload(vm, T, sub):
    kp = 2 * T + sub - 32
    r = fa3(T, sub)
    vm.add(("A", T, sub))
    if kp >= 0 and kp % 7 == 3:
        vm.add(("A", T, sub))
        return [f"buffer_load_dwordx2 {vr(r,2)}, v225, {WS}, s24 offen{ASC}",
                f"buffer_load_dwordx2 {vr(r+2,2)}, v225, {WS}, s24 offen offset:1024{ASC}", "s_add_u32 s24, s24, 8192"]
    return [f"buffer_load_dwordx4 {vr(r,4)}, v224, {WS}, s24 offen{ASC}", "s_add_u32 s24, s24, 8192"]
def wdma(vm, T):
    vm.add(("W", T))
    return [f"s_add_u32 m0, s27, {(T % NS) * 8192}", "@",
            f"buffer_load_dwordx4 v226, {sr(SWO if T < 16 else SWOUT, 4)}, s25 offen lds",
            "s_mov_b32 s25, s40" if T == 15 else f"s_add_u32 s25, s25, {64*2048}"]
def loads3(vm, T, LA):
    out = [wdma(vm, T)]
    if T < LA: out += [aload(vm, T, 0), aload(vm, T, 1)]
    return out
def addr3(a):
    a.e("v_and_b32 v12, 63, v0")
    a.e("s_lshl_b32 s27, s20, 10")
    a.e("v_add_u32 v224, s27, v11")
    a.e("s_lshr_b32 s38, s20, 1"); a.e("s_lshl_b32 s39, s38, 11"); a.e("s_and_b32 s30, s20, 1"); a.e("s_lshl_b32 s31, s30, 3")
    a.e("s_add_u32 s39, s39, s31"); a.e("v_add_u32 v225, s39, v11")
    a.e("v_lshrrev_b32 v13, 3, v12"); a.e("v_bfe_u32 v14, v12, 4, 2"); a.e("v_lshlrev_b32 v14, 1, v14")
    a.e("v_and_b32 v15, 7, v12"); a.e("v_xor_b32 v14, v14, v15"); a.e("v_lshlrev_b32 v14, 4, v14")
    a.e("v_lshl_add_u32 v226, v13, 11, v14")
    a.e("s_lshl_b32 s39, s20, 14"); a.e("v_add_u32 v226, s39, v226")
    a.e("v_bfe_u32 v13, v12, 2, 3"); a.e("v_lshrrev_b32 v14, 5, v12"); a.e("v_lshlrev_b32 v14, 10, v14")
    a.e("v_lshl_add_u32 v14, v13, 7, v14"); a.e("v_lshrrev_b32 v13, 1, v13"); a.e("v_lshl_add_u32 v14, v13, 5, v14")
    a.e("v_and_b32 v15, 3, v12")
    a.e("v_lshl_add_u32 v227, v15, 3, v14")
    a.e("v_xor_b32 v228, 32, v227"); a.e("v_xor_b32 v229, 64, v227"); a.e("v_xor_b32 v230, 96, v227")
    a.e("v_bfe_u32 v13, v12, 2, 2"); a.e("v_lshl_add_u32 v13, v13, 3, v15"); a.e("v_lshlrev_b32 v231, 11, v13")
    a.e("v_bfe_u32 v13, v12, 4, 1"); a.e("v_lshl_add_u32 v231, v13, 5, v231")
    a.e("v_lshrrev_b32 v13, 5, v12"); a.e("v_lshl_add_u32 v231, v13, 4, v231")
    a.e("s_lshl_b32 s26, s50, 7"); a.e("s_lshl_b32 s38, s38, 5"); a.e("s_add_u32 s26, s26, s38")
    a.e("s_lshl_b32 s30, s30, 2"); a.e("s_add_u32 s26, s26, s30"); a.e("s_lshl_b32 s26, s26, 11")
    a.e("s_lshl_b32 s40, s51, 7"); a.e("s_add_u32 s26, s26, s40")
    a.e(f"s_mul_i32 s24, s50, {88*8192}"); a.e(f"s_add_u32 s24, s24, {AU}")
    a.e("s_mov_b32 s25, s40")
    a.e("s_lshl_b32 s41, s50, 11"); a.e(f"s_add_u32 s41, s41, {FLG + 32768}")
    if T3:
        a.e("s_lshr_b32 s30, s2, 3"); a.e("s_lshl_b32 s30, s30, 3"); a.e("s_add_u32 s30, s30, s20"); a.e("s_lshl_b32 s30, s30, 13")
        a.e("s_and_b32 s31, s51, 8"); a.e("s_add_u32 s31, s31, 3"); a.e("s_lshl_b32 s31, s31, 7"); a.e("s_add_u32 s30, s30, s31")
        a.e("v_lshlrev_b32 v232, 11, v12"); a.e("v_add_u32 v232, s30, v232")
        a.e("v_cmp_gt_u32 vcc, 4, v12"); a.e("v_bfrev_b32 v233, 1"); a.e("v_cndmask_b32 v232, v233, v232, vcc")

def stage2(a, cfg, R, vm):
    NT = ntiles(R); D = len(dmas2(R, 0)); nw = 0 if R == 0 else 1
    LA = cfg.get("k3_la", 7); PRE = cfg.get("pre3", 3)
    a.label(f"L_r{R}")
    a.e("s_and_b32 s23, s20, 3")
    if R < 2:
        a.e("s_cmp_ge_u32 s20, 3"); a.e("s_cselect_b32 s36, 1, 0")
        a.e("s_mul_i32 s37, s36, 3"); a.e("s_sub_u32 s37, s20, s37")
        a.e("s_lshl_b32 s38, s100, 1"); a.e("s_add_u32 s38, s38, s36")
        a.e("s_mul_i32 s39, s21, 24"); a.e("s_lshl_b32 s37, s37, 3"); a.e("s_add_u32 s39, s39, s37")
        a.e("v_lshrrev_b32 v17, 3, v1"); a.e("v_add_u32 v17, s39, v17")
        a.e("v_and_b32 v18, 7, v1"); a.e("v_mul_u32_u24 v18, 24576, v18"); a.e("v_lshl_add_u32 v18, v17, 4, v18")
        a.e(f"s_mul_i32 s39, s38, {32*6144}"); a.e(f"s_add_u32 s39, s39, {KVP}")
    if R:
        a.e(f"s_mul_i32 s24, s22, {64*7168}"); a.e(f"s_add_u32 s24, s24, {Z2N}")
        a.e("s_and_b32 s27, s20, 1"); a.e(f"s_mul_i32 s27, s27, {4096 if R == 1 else 3072}")
        if R == 2: a.e("s_add_u32 s27, s27, 8192")
        a.e("s_add_u32 s24, s24, s27"); a.e("s_add_u32 s27, s27, 16384")
        if ROT:
            a.e("s_mov_b32 s26, s24"); a.e(f"s_add_u32 s25, s24, {64*7168}")
            a.e(f"s_mul_i32 s36, s21, {ROT}"); a.e("s_and_b32 s36, s36, 31"); a.e("s_mul_i32 s36, s36, 14336"); a.e("s_add_u32 s24, s24, s36")
    a.e("s_waitcnt lgkmcnt(0)")
    a.e("s_barrier")
    st(a, cfg, 4)
    if R:
        for s in range(4):
            for grp in dmas2(R, s): emit(a, grp)
    if R < 2:
        for u in range(4):
            a.e(f"buffer_load_dwordx4 {vr(72+4*u,4)}, v18, {WS}, s39 offen sc1")
            if u < 3: a.e("s_add_u32 s39, s39, 6144")
    if R: a.e(f"s_waitcnt vmcnt({3*D + (4 if R == 1 else 0)})")
    a.e("s_barrier")
    st(a, cfg, "d2")
    a("; hot")
    for r in reads2(R, 0, 0, 0): a.e(r)
    a.e("s_waitcnt lgkmcnt(0)")
    interleave(a, mfmas2(R, 0, True), [(k - 1, [r]) for k, r in enumerate(reads2(R, 1, 0, 1))])
    a.e("s_mov_b32 s29, 7")
    a.label(f"L_loop2_{R}")
    for t in range(4): body2(a, cfg, R, t, dmas2(R, t), 2*D)
    a.e("s_sub_u32 s29, s29, 1")
    sides = {0: [6], 1: [6, 4, 3, 2], 2: [5, 4, 3]}[R]
    for s in sides:
        a.e(f"s_cmp_eq_u32 s29, {s}"); a.e(f"s_cbranch_scc1 L_side{R}_{s}")
    a.e("s_cmp_lg_u32 s29, 0")
    a.e(f"s_cbranch_scc1 L_loop2_{R}")
    a("; cold")
    st(a, cfg, "l2")
    addr3(a)
    E = 2
    if R == 0: flag_issue(a, "s41", 20); E = 3
    a.e("s_lshl_b32 s30, s21, 8"); a.e("s_lshl_b32 s31, s23, 6"); a.e("s_add_u32 s30, s30, s31")
    a.e(f"buffer_load_ushort v88, v120, {sr(SB,4)}, s30 offen")
    a.e(f"buffer_load_ushort v90, v120, {sr(SB,4)}, s30 offen offset:8")
    a.e(f"s_lshl_b32 s30, s23, 10"); a.e(f"s_add_u32 s30, s30, {ZS + nw*16384}"); a.e("v_add_u32 v16, s30, v11")
    a("; hot")
    tt = 1 if T3 and T3[0] >= 0 else 0
    if tt: a.e(f"buffer_load_dword v233, v232, {sr(SWO,4)}, 0 offen")
    body2(a, cfg, R, 0, [], 2*D + E + tt)
    body2(a, cfg, R, 1, [], D + E + tt)
    vm.ops = ["T3"] * tt
    L3 = []
    for T in range(PRE): L3 += loads3(vm, T, LA)
    n2 = (len(L3) * 2 + 2) // 3
    body2(a, cfg, R, 2, L3[:n2], 2 + tt, prebar=(lambda: flag_spin(a, "s41", 20, pre=True)) if R == 0 else None, dpos=(0, 2))
    body2(a, cfg, R, 3, L3[n2:], None, last=True, dpos=(0, 2))
    a("; cold")
    st(a, cfg, 5)
    for n in range(NT): a.e(f"ds_read_b128 {vr(72+4*n,4)}, v16 offset:{n*4096}")
    a.e("s_mov_b32 s33, 0xffff0000")
    a.e(f"s_mul_i32 s30, s21, {88*8192}"); a.e("s_lshl_b32 s31, s23, 11"); a.e("s_add_u32 s30, s30, s31")
    a.e(f"s_add_u32 s30, s30, {AU + 32*8192}")
    a.e("s_lshr_b32 s32, s22, 1"); a.e(f"s_mul_i32 s32, s32, {7*8192}"); a.e("s_add_u32 s30, s30, s32")
    a.e("s_and_b32 s34, s22, 1")
    a.e("s_lshl_b32 s35, s34, 15"); a.e("s_add_u32 s35, s35, s30")
    if nw == 0: a.e("s_add_u32 s39, s35, 8192")
    else:
        a.e("s_add_u32 s35, s35, 16384")
        a.e("s_lshl_b32 s39, s34, 10"); a.e("s_add_u32 s39, s39, s30"); a.e(f"s_add_u32 s39, s39, {3*8192}")
    a.e(f"s_waitcnt vmcnt({len(vm.ops)})")
    a.e("v_lshlrev_b32 v88, 16, v88"); a.e("v_lshlrev_b32 v90, 16, v90")
    a.e("v_mov_b32 v89, v88"); a.e("v_mov_b32 v91, v90")
    a.e("s_waitcnt lgkmcnt(0)")
    for n in range(NT):
        for m in range(2):
            z = 72 + 4*n + 2*m
            t = 92 + 4 * m
            a.e(f"v_lshlrev_b32 v{t}, 16, v{z}"); a.e(f"v_and_b32 v{t+1}, s33, v{z}")
            a.e(f"v_lshlrev_b32 v{t+2}, 16, v{z+1}"); a.e(f"v_and_b32 v{t+3}, s33, v{z+1}")
            r = acc2(n, m)
            for h in range(2): a.e(f"v_pk_add_f32 {vr(r+2*h,2)}, {vr(r+2*h,2)}, {vr(88+2*m,2)}")
            for h in range(2): a.e(f"v_pk_mul_f32 {vr(r+2*h,2)}, {vr(r+2*h,2)}, {vr(t+2*h,2)}")
        if n & 1:
            for m in range(2):
                d = 48 + 8 * (n >> 1) + 4 * m
                pack(a, d, acc2(n-1, m), acc2(n, m))
                a.e(f"buffer_store_dwordx4 {vr(d,4)}, v11, {WS}, s{35 if n == 1 else 39} offen offset:{m*1024} sc1")
        elif n == 2 and NT == 3:
            pack(a, 56, acc2(n, 0), acc2(n, 1))
            a.e(f"buffer_store_dwordx4 v[56:59], v11, {WS}, s39 offen sc1")
    st(a, cfg, "us")
    for k in range(3): vm.add("U")
    a.e("s_branch L_stage3")
    for s in sides:
        a.label(f"L_side{R}_{s}")
        if s == 6:
            a.e("v_lshrrev_b32 v18, 7, v17"); a.e("v_lshlrev_b32 v18, 10, v18"); a.e("v_and_b32 v19, 63, v17")
            a.e("v_lshl_add_u32 v18, v19, 4, v18"); a.e("v_bfe_u32 v19, v17, 6, 1"); a.e("v_lshl_add_u32 v18, v19, 3, v18")
            a.e("s_mul_i32 s37, s38, 3072"); a.e(f"s_add_u32 s37, s37, {KVR}")
            for h in range(2):
                a.e(f"v_pk_add_f32 {vr(72+2*h,2)}, {vr(72+2*h,2)}, {vr(76+2*h,2)}")
                a.e(f"v_pk_add_f32 {vr(80+2*h,2)}, {vr(80+2*h,2)}, {vr(84+2*h,2)}")
            for h in range(2): a.e(f"v_pk_add_f32 {vr(72+2*h,2)}, {vr(72+2*h,2)}, {vr(80+2*h,2)}")
            for ctl in ("row_half_mirror", "quad_perm:[1,0,3,2]", "quad_perm:[2,3,0,1]"):
                a.e("s_nop 1")
                for k in range(4): a.e(f"v_add_f32_dpp v{72+k}, v{72+k}, v{72+k} {ctl} row_mask:0xf bank_mask:0xf")
            a.e("v_cvt_pk_bf16_f32 v72, v72, v73"); a.e("v_cvt_pk_bf16_f32 v73, v74, v75")
            a.e("s_mov_b32 s36, 0x01010101"); a.e("s_mov_b32 exec_lo, s36"); a.e("s_mov_b32 exec_hi, s36")
            a.e(f"buffer_store_dwordx2 v[72:73], v18, {WS}, s37 offen sc1")
            a.e("s_mov_b64 exec, -1")
        kvr = [f"buffer_load_dwordx4 {vr(100+4*et,4)}, v11, {WS}, s37 offen offset:{et*1024} sc1" for et in range(3)]
        if s == 5:
            a.e("s_cmp_lg_u32 s20, 6"); a.e(f"s_cbranch_scc1 L_loop2_{R}")
            a.e("s_lshl_b32 s30, s2, 13"); a.e("v_lshlrev_b32 v124, 3, v11")
            a.e(f"buffer_load_dword v125, v124, {sr(SWO,4)}, s30 offen")
        if s == 4:
            a.e("s_lshl_b32 s38, s101, 1")
            if R == 2: a.e("s_add_u32 s38, s38, 1")
            a.e("s_mul_i32 s37, s38, 3072"); a.e(f"s_add_u32 s37, s37, {KVR}")
            for l in kvr: a.e(l)
        if s == 3:
            L, X, C = lbl("kv"), lbl("kvx"), lbl("kvc")
            a.e("s_mov_b32 s36, 0"); a.e(f"s_branch {C}")
            a.label(L)
            for l in kvr: a.e(l)
            a.e("s_waitcnt vmcnt(0)")
            a.label(C)
            a.e("v_max3_u32 v19, v100, v101, v102")
            for k in range(103, 111, 2): a.e(f"v_max3_u32 v19, v19, v{k}, v{k+1}")
            a.e("v_max_u32 v19, v19, v111")
            a.e("v_cmp_eq_u32 vcc, -1, v19")
            a.e("s_add_u32 s36, s36, 1")
            a.e(f"s_cmp_ge_u32 s36, {BOUND}"); a.e(f"s_cbranch_scc1 {X}")
            a.e("s_cmp_lg_u64 vcc, 0"); a.e(f"s_cbranch_scc1 {L}")
            a.label(X)
            for m in range(4):
                for et in range(3):
                    a.e(f"v_mfma_f32_16x16x32_bf16 {vr(160+12*m+4*et,4)}, {vr(100+4*et,4)}, {vr(240+4*m,4)}, 0")
            a.e(f"s_mul_i32 s30, s21, {88*8192}"); a.e("s_lshl_b32 s31, s38, 13"); a.e("s_add_u32 s30, s30, s31")
            a.e("s_and_b32 s31, s20, 1"); a.e("s_lshl_b32 s31, s31, 12"); a.e("s_add_u32 s30, s30, s31")
            a.e(f"s_add_u32 s30, s30, {AU}")
            a.e("s_nop 7")
            for m in range(4): a.e(f"v_add_f32 v{168+12*m}, {f2u(1e-6):#x}, v{168+12*m}")
            for m in range(4): a.e(f"v_rcp_f32 v{168+12*m}, v{168+12*m}")
            for m in range(4): a.e(f"v_mov_b32 v{169+12*m}, v{168+12*m}")
            for m in range(4):
                b = 160 + 12 * m
                for h in range(4): a.e(f"v_pk_mul_f32 {vr(b+2*h,2)}, {vr(b+2*h,2)}, {vr(b+8,2)}")
                pack(a, 208 + 4*m, b, b + 4)
                a.e(f"buffer_store_dwordx4 {vr(208+4*m,4)}, v11, {WS}, s30 offen offset:{m*1024} sc1")
        if s == 2:
            a.e("s_cmp_lg_u32 s20, 4"); a.e(f"s_cbranch_scc1 L_loop2_{R}")
            flag_set(a, 1, 20)
        a.e(f"s_branch L_loop2_{R}")

def stage3(a, cfg, vm):
    LA = cfg.get("k3_la", 7); PRE = cfg.get("pre3", 3); MID = cfg.get("mid3", 2)
    cT = 16 - LA; pT = cT - cfg.get("pollgap", 2)
    def reads(P, T, sub):
        return [f"ds_read_b64_tr_b16 {vr(fw3(P,nt)+2*h,2)}, v{227+nt} offset:{(T % NS)*8192 + sub*4096 + h*2048}" for nt in range(4) for h in range(2)][::(2 if XR[2] else 1)]
    def mfmas(P, T, sub):
        first = sub == 0 and T in (0, 16)
        return [f"v_mfma_f32_16x16x32_bf16 {vr(acc3(T,nt),4)}, {vr(fw3(P,nt),4)}, {vr(fa3(T,sub),4)}, {'0' if first else vr(acc3(T,nt),4)}" for nt in range(4)]
    a.label("L_stage3")
    for T in range(PRE, PRE + MID):
        for g in loads3(vm, T, LA): emit(a, g)
    def upub():
        L = lbl("nou")
        a.e(f"s_cmp_lg_u32 s20, {cfg.get('uw', 1)}"); a.e(f"s_cbranch_scc1 {L}")
        flag_set(a, 2, 20)
        a.label(L)
    uT = cfg.get("uT", PRE - 1)
    a.e(f"s_waitcnt vmcnt({vm.need(['U'] if uT < 0 else [('W',0),('A',0,0),('A',0,1)])})")
    a.e("s_barrier")
    st(a, cfg, 6)
    if uT < 0: upub()
    a.e("s_add_u32 s41, s41, 32768")
    a("; hot")
    for r in reads(0, 0, 0): a.e(r)
    for T in range(PRE + MID, NS):
        for g in loads3(vm, T, LA): emit(a, g)
    a.e("s_waitcnt lgkmcnt(0)")
    interleave(a, mfmas(0, 0, 0), [(k // 2 - 1, [r]) for k, r in enumerate(reads(1, 0, 1))])
    for T in range(NT3):
        if T == NT3 - 1:
            a.e("s_waitcnt lgkmcnt(0)")
            for m in mfmas(1, T, 1): a.e(m)
            break
        if T in (cT, cT + 1, 16, 30): st(a, cfg, f"T{T}")
        if T == cT:
            L = lbl("noc")
            a.e("s_cmp_lg_u32 s20, 0"); a.e(f"s_cbranch_scc1 {L}")
            a.e(f"s_waitcnt vmcnt({len(vm.ops) - pidx})")
            flag_spin(a, "s41", 20, pre=True)
            a.label(L)
        a.e(f"s_waitcnt vmcnt({vm.need([('W',T+1),('A',T+1,0),('A',T+1,1)] + (['U'] if T == uT else []))}) lgkmcnt(0)")
        a.e("s_barrier")
        if T == uT: upub()
        if T == pT:
            L = lbl("nop")
            a.e("s_cmp_lg_u32 s20, 0"); a.e(f"s_cbranch_scc1 {L}")
            flag_issue(a, "s41", 20)
            a.label(L)
            pidx = len(vm.ops)
        fill = [(k // 2 - 1, [r]) for k, r in enumerate(reads(0, T + 1, 0))]
        if T + NS < NT3:
            g = wdma(vm, T + NS); i = g.index("@")
            fill.append((0, g[:i])); fill.append((1, g[i+1:]))
        if T + LA < NT3: fill.append((3, aload(vm, T + LA, 0)))
        interleave(a, mfmas(1, T, 1), fill)
        a.e("s_waitcnt lgkmcnt(0)")
        fill = [(k // 2 - 1, [r]) for k, r in enumerate(reads(1, T + 1, 1))]
        if T + LA < NT3: fill.append((2, aload(vm, T + LA, 1)))
        if T3 and T in T3[1:]:
            vm.add("T3")
            fill.append((3, [f"buffer_load_dword v233, v232, {sr(SWOUT,4)}, 0 offen", f"v_add_u32 v232, {1024*2048}, v232"]))
        if T == NT3 - LA:
            for cp in range(2):
                vm.add(("X", cp))
                fill.append((2, [f"buffer_load_dwordx4 {vr(16+4*cp,4)}, v231, {sr(SX,4)}, s26 offen offset:{cp*64}"]))
        interleave(a, mfmas(0, T + 1, 0), fill)
    a("; cold")
    st(a, cfg, 7)
    a.e(f"s_mov_b32 s30, {f2u(-LOG2E):#x}"); a.e(f"s_mov_b32 s31, {f2u(-LOG2E):#x}")
    a.e(f"s_mov_b32 s32, 1.0"); a.e(f"s_mov_b32 s33, 1.0")
    a.e("s_mov_b32 s34, 0xffff0000")
    a.e("s_waitcnt vmcnt(0)")
    for cp in range(2):
        a.e(f"v_permlane16_swap_b32 v{16+4*cp}, v{18+4*cp}"); a.e(f"v_permlane16_swap_b32 v{17+4*cp}, v{19+4*cp}")
    a.e("s_nop 4")
    H, S, T_, X = 144, 128, 24, 40
    for k in range(8): a.e(f"v_pk_mul_f32 {vr(T_+2*k,2)}, {vr(H+2*k,2)}, s[30:31]")
    for k in range(16): a.e(f"v_exp_f32 v{T_+k}, v{T_+k}")
    for k in range(8):
        a.e(f"v_lshlrev_b32 v{X+2*k}, 16, v{16+k}"); a.e(f"v_and_b32 v{X+2*k+1}, s34, v{16+k}")
    for k in range(8): a.e(f"v_pk_add_f32 {vr(T_+2*k,2)}, {vr(T_+2*k,2)}, s[32:33]")
    for k in range(16): a.e(f"v_rcp_f32 v{T_+k}, v{T_+k}")
    for k in range(8): a.e(f"v_pk_mul_f32 {vr(H+2*k,2)}, {vr(H+2*k,2)}, {vr(S+2*k,2)}")
    for k in range(8): a.e(f"v_pk_fma_f32 {vr(X+2*k,2)}, {vr(H+2*k,2)}, {vr(T_+2*k,2)}, {vr(X+2*k,2)}")
    for cp in range(2): pack(a, 16 + 4*cp, X + 8*cp, X + 8*cp + 4)
    a.e("s_nop 1")
    for cp in range(2):
        a.e(f"v_permlane16_swap_b32 v{16+4*cp}, v{18+4*cp}"); a.e(f"v_permlane16_swap_b32 v{17+4*cp}, v{19+4*cp}")
    a.e("s_nop 1")
    for cp in range(2):
        a.e(f"buffer_store_dwordx4 {vr(16+4*cp,4)}, v231, {sr(SOUT,4)}, s26 offen offset:{cp*64}")
    if cfg.get("tim"):
        a.e("s_memrealtime s[98:99]")
        a.e(f"{'s_memrealtime' if cfg.get('rt') else 's_memtime'} s[30:31]")
        a.e("s_waitcnt lgkmcnt(0)")
        a.e("s_lshl_b32 s100, s2, 3"); a.e("s_add_u32 s100, s100, s20"); a.e("s_lshl_b32 s100, s100, 6"); a.e(f"s_add_u32 s100, s100, {TIM}")
        a.e("v_mov_b32 v0, 0")
        for k, s in enumerate([80 + 2*k for k in range(8)] + [30, 96, 98]):
            a.e(f"v_mov_b32 v1, s{s}")
            a.e(f"buffer_store_dword v1, v0, {WS}, s100 offen offset:{4*k}")
            a.e("s_nop 1")

def srd_at(a, d, b, soff, nbytes):
    a.e(f"s_add_u32 s{d}, s{b}, {soff}"); a.e(f"s_addc_u32 s{d+1}, s{b+1}, 0"); a.e(f"s_and_b32 s{d+1}, s{d+1}, 0xffff")
    a.e(f"s_mov_b32 s{d+2}, {nbytes}"); a.e(f"s_mov_b32 s{d+3}, 0x00020000")

def fused(a, cfg):
    name = KN + "_kernel"
    kernel_begin(a, name)
    a.label("L_start")
    a.e("s_cmp_ge_u32 s2, 256")
    a.e("s_cbranch_scc1 L_end")
    if cfg.get("tim"): a.e("s_memrealtime s[96:97]")
    st(a, cfg, 0)
    a.e("s_load_dwordx16 s[24:39], s[0:1], 0")
    a.e("s_load_dwordx4 s[40:43], s[0:1], 64")
    a.e("s_load_dwordx2 s[44:45], s[0:1], 80")
    if cfg.get("cpf", 0) == 1:
        a.e(f"s_getpc_b64 s[{STCH}:{STCH+1}]")
        a.label("L_pc")
        a.e(f"s_and_b32 s{STCH+1}, s{STCH+1}, 0xffff")
        a.e(f"s_mov_b32 s{STCH+2}, L_end-L_pc"); a.e(f"s_mov_b32 s{STCH+3}, 0x00020000")
        a.e("v_lshlrev_b32 v127, 7, v0")
        a.e(f"buffer_load_dword v127, v127, {sr(STCH,4)}, 0 offen")
    a.e("v_lshrrev_b32 v1, 6, v0")
    a.e("v_and_b32 v12, 63, v0")
    a.e("v_readfirstlane_b32 s20, v1")
    a.e("v_and_b32 v13, 7, v12"); a.e("v_lshrrev_b32 v14, 3, v12")
    a.e("v_bfe_u32 v15, v12, 2, 1"); a.e("v_and_b32 v16, 3, v12"); a.e("v_lshl_add_u32 v15, v15, 3, v16")
    a.e("v_lshlrev_b32 v64, 11, v15"); a.e("v_lshl_add_u32 v64, v14, 4, v64")
    a.e("v_and_b32 v15, 3, v14"); a.e("v_lshlrev_b32 v65, 4, v13"); a.e("v_lshl_add_u32 v65, v15, 8, v65")
    a.e("v_lshrrev_b32 v15, 2, v14"); a.e("v_lshl_add_u32 v65, v15, 13, v65")
    a.e("v_lshlrev_b32 v63, 6, v13"); a.e(f"v_add_u32 v63, {SS}, v63"); a.e("v_lshl_add_u32 v62, v1, 3, v63")
    a.e("s_and_b32 s21, s2, 1"); a.e("s_lshl_b32 s21, s21, 3"); a.e("s_bfe_u32 s46, s2, 0x30003"); a.e("s_add_u32 s21, s21, s46")
    a.e("s_bfe_u32 s22, s2, 0x20001"); a.e("s_lshl_b32 s22, s22, 2"); a.e("s_lshr_b32 s46, s2, 6"); a.e("s_add_u32 s22, s22, s46")
    m3 = cfg.get("map3", 4)
    if m3 == 4:
        a.e("s_and_b32 s50, s2, 3"); a.e("s_lshl_b32 s50, s50, 2"); a.e("s_bfe_u32 s46, s2, 0x20003"); a.e("s_add_u32 s50, s50, s46")
        a.e("s_bfe_u32 s51, s2, 0x10002"); a.e("s_lshl_b32 s51, s51, 3"); a.e("s_lshr_b32 s46, s2, 5"); a.e("s_add_u32 s51, s51, s46")
    elif m3 == 42:
        a.e("s_and_b32 s50, s2, 1"); a.e("s_lshl_b32 s50, s50, 3"); a.e("s_bfe_u32 s46, s2, 0x10001"); a.e("s_lshl_b32 s46, s46, 2"); a.e("s_add_u32 s50, s50, s46")
        a.e("s_bfe_u32 s46, s2, 0x20003"); a.e("s_add_u32 s50, s50, s46")
        a.e("s_bfe_u32 s51, s2, 0x10002"); a.e("s_lshl_b32 s51, s51, 3"); a.e("s_lshr_b32 s46, s2, 5"); a.e("s_add_u32 s51, s51, s46")
    elif m3 == 2:
        a.e("s_and_b32 s50, s2, 7"); a.e("s_lshl_b32 s50, s50, 1"); a.e("s_bfe_u32 s46, s2, 0x10003"); a.e("s_add_u32 s50, s50, s46")
        a.e("s_lshr_b32 s51, s2, 4")
    elif m3 == 8:
        a.e("s_mov_b32 s50, s21"); a.e("s_mov_b32 s51, s22")
    elif m3 == 41:
        a.e("s_and_b32 s50, s2, 3"); a.e("s_lshl_b32 s50, s50, 2"); a.e("s_bfe_u32 s46, s2, 0x20003"); a.e("s_add_u32 s50, s50, s46")
        a.e("s_bfe_u32 s51, s2, 0x10002"); a.e("s_lshr_b32 s46, s2, 5"); a.e("s_lshl_b32 s46, s46, 1"); a.e("s_add_u32 s51, s51, s46")
    m1 = cfg.get("map1", 8)
    if m1 == 4:
        a.e("s_and_b32 s21, s2, 3"); a.e("s_lshl_b32 s21, s21, 2"); a.e("s_bfe_u32 s46, s2, 0x20003"); a.e("s_add_u32 s21, s21, s46")
        a.e("s_bfe_u32 s22, s2, 0x10002"); a.e("s_lshl_b32 s22, s22, 3"); a.e("s_lshr_b32 s46, s2, 5"); a.e("s_add_u32 s22, s22, s46")
    if m1 == 81:
        a.e("s_bfe_u32 s22, s2, 0x20001"); a.e("s_lshr_b32 s46, s2, 6"); a.e("s_lshl_b32 s46, s46, 2"); a.e("s_add_u32 s22, s22, s46")
    jm = cfg.get("jm", 2)
    if jm == 0: a.e("s_mov_b32 s100, s22"); a.e("s_mov_b32 s101, s22")
    elif jm == 2:
        tk = cfg.get("tk", [3, 7, 15, 11, 2, 6, 10, 14, 1, 5, 9, 13, 0, 4, 8, 12])
        tq = cfg.get("tq", [0, 4, 8, 12, 7, 3, 15, 11, 2, 6, 10, 14, 1, 5, 9, 13])
        assert sorted(tk) == list(range(16)) and sorted(tq) == list(range(16))
        a.e("s_lshl_b32 s49, s22, 2")
        for d, t in ((100, tk), (101, tq)):
            c = sum(v << (4 * k) for k, v in enumerate(t))
            a.e(f"s_mov_b32 s46, {c & 0xffffffff:#x}"); a.e(f"s_mov_b32 s47, {c >> 32:#x}")
            a.e("s_lshr_b64 s[46:47], s[46:47], s49"); a.e(f"s_and_b32 s{d}, s46, 15")
    else:
        a.e("s_and_b32 s46, s22, 3"); a.e("s_lshl_b32 s46, s46, 2"); a.e("s_lshr_b32 s47, s22, 2")
        a.e("s_sub_u32 s100, 3, s47"); a.e("s_add_u32 s47, s100, 1"); a.e("s_and_b32 s47, s47, 3")
        a.e("s_add_u32 s100, s100, s46"); a.e("s_add_u32 s101, s47, s46")
    a.e("s_and_b32 s23, s20, 1")
    a.e("v_lshlrev_b32 v11, 4, v12")
    a.e("s_lshl_b32 s46, s20, 11"); a.e("v_add_u32 v2, s46, v11")
    a.e("v_lshrrev_b32 v13, 2, v12"); a.e("s_lshl_b32 s46, s23, 4"); a.e("v_add_u32 v13, s46, v13")
    a.e("v_bfe_u32 v14, v12, 5, 1"); a.e("v_lshlrev_b32 v14, 1, v14"); a.e("v_and_b32 v15, 3, v12"); a.e("v_xor_b32 v14, v14, v15")
    a.e("v_lshrrev_b32 v16, 1, v14")
    a.e("v_lshlrev_b32 v14, 4, v14")
    a.e("v_mul_u32_u24 v3, 6144, v13"); a.e("v_add_u32 v3, v3, v14")
    a.e("v_mul_u32_u24 v4, 7168, v13"); a.e("v_add_u32 v4, v4, v14")
    a.e("s_lshl_b32 s46, s23, 12"); a.e("v_add_u32 v5, s46, v11"); a.e(f"v_add_u32 v6, {2*S1}, v5")
    a.e("v_lshrrev_b32 v13, 5, v12"); a.e("v_mul_u32_u24 v7, 13312, v13")
    a.e("v_bfe_u32 v13, v12, 4, 1"); a.e("v_mul_u32_u24 v14, 544, v13"); a.e("v_add_u32 v7, v7, v14")
    a.e("v_bfe_u32 v14, v12, 2, 2"); a.e("v_lshl_add_u32 v7, v14, 6, v7"); a.e("v_lshl_add_u32 v7, v15, 3, v7")
    a.e("v_add_u32 v7, 8192, v7"); a.e("v_xor_b32 v8, 32, v7")
    a.e(f"v_add_u32 v9, {2*S1}, v7"); a.e(f"v_add_u32 v10, {2*S1}, v8")
    a.e("s_and_b32 s46, s22, 1"); a.e("s_cmp_eq_u32 s46, 0"); a.e("s_cselect_b32 s47, 192, 0"); a.e("s_lshl_b32 s46, s46, 5")
    a.e("v_mul_u32_u24 v15, 3552, v16"); a.e("v_add_u32 v15, v15, v4"); a.e("v_add_u32 v15, s47, v15")
    a.e("v_add_u32 v4, s46, v4")
    a.e("s_waitcnt lgkmcnt(0)")
    st(a, cfg, "ka")
    srd(a, SX, 24, 4 * MB); srd(a, SWS, 44, WS_SIZE); srd(a, SQKV, 26, 1024 * 6144); srd(a, SWIN, 32, 1024 * 7168)
    srd(a, SDBG, 42, 256); srd(a, SWSP, 34, 2048 * 4096); srd(a, SB, 36, 4096); srd(a, SWO, 28, 1024 * 2048)
    srd(a, SWOUT, 38, 1792 * 2048); srd(a, SOUT, 40, 4 * MB)
    a.e("s_lshr_b32 s46, s20, 1")
    for G in (1, 2, 3):
        a.e(f"s_cmp_eq_u32 s46, {G}"); a.e(f"s_cbranch_scc1 L_g{G}")
    vm = VM()
    for G in range(4):
        a.label(f"L_g{G}")
        D = len(dmas1(G, 0))
        a.e("s_lshl_b32 s24, s21, 18")
        a.e(f"s_lshl_b32 s25, s{101 if G == 0 else 100}, 7")
        if G & 1: a.e(f"s_add_u32 s25, s25, {2048 if G == 1 else 4096}")
        a.e("s_mul_i32 s26, s22, 224")
        a.e("s_lshl_b32 s27, s20, 11")
        a.e("s_mul_i32 s28, s23, 13312")
        TP = cfg.get("pf", 1)
        ln(a, cfg, G)
        if G < 2:
            addr2(a)
            if G == 0:
                L = lbl("nox")
                a.e("s_cmp_lg_u32 s20, 0"); a.e(f"s_cbranch_scc1 {L}")
                poll_spin(a, "s30", 66)
                a.label(L)
            a.e("s_barrier")
            st(a, cfg, 1)
            n2 = cfg.get("ln_n2", 4)
            for s in range(4):
                for grp in dmas1(G, s, "A" if s < n2 else "AB"): emit(a, grp)
            c = [2 if s < n2 else 4 for s in range(4)]
            w0 = [sum(c[1:]), sum(c[2:]), c[3] + 4, 8, 8]
        else:
            nt = touch(a, cfg, G) if cfg.get('tpos', 1) == 1 else 0
            addr2(a)
            a.e("s_barrier")
            st(a, cfg, 1)
            for s in range(cfg.get("ln_n2", 4), 4):
                for grp in dmas1(G, s): emit(a, grp)
            if cfg.get('tpos', 1) == 2: nt = touch(a, cfg, G)
            w0 = [3*D + nt, 2*D + nt, 2*D + nt, 2*D + nt, 2*D]
        a.e(f"s_waitcnt vmcnt({w0[0]})")
        a.e("s_barrier")
        st(a, cfg, "d0")
        a("; hot")
        for r in reads1(G, 0, 0): a.e(r)
        tch = G >= 2 and TP
        for t in range(4):
            step1(a, cfg, G, t, dmas1(G, t), w0[t + 1] + (NTCH(G) if tch and t else 0), first=(t == 0), extra=TOUCH(G) if tch and t == 0 else None)
        a.e("s_mov_b32 s29, 6")
        a.label(f"L_loop1_{G}")
        for t in range(4):
            step1(a, cfg, G, t, dmas1(G, t), 2*D + (NTCH(G) if tch and t else 0),
                  extra=TOUCH(G) if tch and t == 0 else None)
        a.e("s_sub_u32 s29, s29, 1"); a.e("s_cmp_lg_u32 s29, 0"); a.e(f"s_cbranch_scc1 L_loop1_{G}")
        for t in range(3): step1(a, cfg, G, t, [], [2*D, D, 0][t])
        DM = []
        if G < 2:
            a.e("s_lshl_b32 s24, s21, 19"); a.e("s_lshl_b32 s36, s20, 17"); a.e("s_add_u32 s24, s24, s36"); a.e("s_lshl_b32 s27, s20, 12")
            if ROT:
                a.e("s_mov_b32 s26, s24"); a.e("s_add_u32 s25, s24, 4096")
                a.e(f"s_mul_i32 s36, s21, {128*ROT}"); a.e("s_and_b32 s36, s36, 4095"); a.e("s_add_u32 s24, s24, s36")
            for s in range(4): DM += dmas2(0, s)
        step1(a, cfg, G, 3, DM, None, last=True, dpos=(0, 1.6) if False else (0, 2))
        a("; cold")
        st(a, cfg, 2)
        for k, c in ((42, GC1), (44, 1.0), (46, LOG2E), (48, 1e-6)):
            a.e(f"s_mov_b32 s{k}, {f2u(c):#x}"); a.e(f"s_mov_b32 s{k+1}, {f2u(c):#x}")
        a.e(f"v_mov_b32 v12, {f2u(GC0):#x}"); a.e(f"v_mov_b32 v13, {f2u(GC0):#x}")
        epi_addr(a, G)
        if G == 3 and cfg.get("t2", [3]):
            a.e("s_lshl_b32 s30, s21, 2"); a.e("s_and_b32 s31, s22, 3"); a.e("s_add_u32 s30, s30, s31"); a.e("s_lshl_b32 s30, s30, 1")
            a.e("s_add_u32 s30, s30, s23"); a.e("s_lshl_b32 s30, s30, 16")
            a.e("v_and_b32 v124, 15, v1"); a.e("v_lshlrev_b32 v124, 12, v124"); a.e("v_lshrrev_b32 v125, 4, v1"); a.e("v_lshl_add_u32 v124, v125, 10, v124")
            if cfg.get("t2h", 4) < 4:
                a.e(f"v_cmp_gt_u32 vcc, {16 * cfg['t2h']}, v1"); a.e("v_bfrev_b32 v125, 1"); a.e("v_cndmask_b32 v124, v125, v124, vcc")
            for c in cfg.get("t2", [3]): a.e(f"buffer_load_dword v125, v124, {sr(SWSP,4)}, s30 offen offset:{128*c}")
        if G == 3:
            a.e("v_and_b32 v127, 15, v1"); a.e("v_lshlrev_b32 v127, 4, v127")
            a.e(f"buffer_load_dword v126, v127, {DBG}, 0 offen sc1")
        epi_z2a(a, cfg, G)
        late = G in cfg.get("late", [2])
        if not late: epi_attn(a, cfg, G)
        st(a, cfg, "at")
        epi_z2b(a, cfg, G)
        st(a, cfg, "zs")
        epi_z1(a, cfg, G, 0)
        st(a, cfg, "z1")
        a.e("s_waitcnt vmcnt(0)")
        if G == 3:
            L, X, C = lbl("ini"), lbl("inix"), lbl("inic")
            a.e("s_mov_b32 s36, 0"); a.e(f"s_branch {C}")
            a.label(L)
            a.e(f"buffer_load_dword v126, v127, {DBG}, 0 offen sc1")
            a.e("s_waitcnt vmcnt(0)")
            a.label(C)
            a.e("v_cmp_gt_u32 vcc, 16, v126")
            a.e("s_add_u32 s36, s36, 1")
            a.e(f"s_cmp_ge_u32 s36, {BOUND}"); a.e(f"s_cbranch_scc1 {X}")
            a.e("s_cmp_lg_u64 vcc, 0"); a.e(f"s_cbranch_scc1 {L}")
            a.label(X)
        a.e("s_barrier")
        st(a, cfg, "s3")
        if G == 0:
            L = lbl("noz")
            a.e("s_cmp_lg_u32 s20, 0"); a.e(f"s_cbranch_scc1 {L}")
            flag_set(a, 0, 20)
            a.e("s_lshl_b32 s30, s22, 11"); a.e(f"s_add_u32 s30, s30, {FLG}")
            flag_spin(a, "s30", 24)
            a.label(L)
        epi_z1(a, cfg, G, 1)
        if late: epi_attn(a, cfg, G)
        if G == 0: a.e("s_branch L_r0")
        else: stage2(a, cfg, G - 1, vm)
    stage3(a, cfg, vm)
    a.label("L_end")
    a.e("s_endpgm")
    return (name, "(256,1,1)", "(512,1,1)", LDS, dict(vgpr=256, sgpr=102, accum=256))

def gen(cfg):
    global BOUND, SLEEP, ASC, XR, ROT, T3, LT
    LT = cfg.get('lt', 1)
    T3 = cfg.get('t3', [0, 2, 16])
    ROT = cfg.get('rot', 0)
    XR = cfg.get('xr', [0, 0, 0])
    ASC = '' if cfg.get('nosc1') else ' sc1'
    BOUND = cfg.get('bound', 6000); SLEEP = cfg.get('sleep', 0)
    Lbl.n = 0
    body = Asm()
    name, g, b, lds, d = fused(body, cfg)
    a = Asm()
    a(f"; @launch grid={g} block={b} lds={lds}")
    a('.amdgcn_target "amdgcn-amd-amdhsa--gfx950"')
    a.lines += [l.strip() if l.startswith("    ") else l for l in body.lines]
    kernel_desc(a, name, **d)
    t = a.text()
    if cfg.get("align", 1):
        from align import align
        t, nfix = align(t)
        if cfg.get("verbose"): print("align fixes (e64, nop, left):", nfix)
    return t
if __name__ == "__main__":
    import sys, json
    cfg = json.loads(sys.argv[2]) if len(sys.argv) > 2 else {}
    if "k1_d" in cfg: cfg["k1_d"] = {int(k): v for k, v in cfg["k1_d"].items()}
    open(sys.argv[1], "w").write(gen(cfg))
```

```python
from gen_common import *
from gen_k1 import gelu8, phi8, pack
import gen_k1
S1 = 34 * 1024
S2 = 30 * 1024
ZS = 4 * S2
SS = ZS + 28 * 1024
CNT = SS + 5 * 1024
LDS = 160 * 1024
BOUND = 6000
SWS, SDBG, SQKV, SWIN, SX, SWSP, SB, SWO, SWOUT, SOUT, STCH = 16, 4, 8, 12, 52, 56, 60, 64, 68, 72, 76
WS, DBG = sr(SWS, 4), sr(SDBG, 4)
ACC = 128
def st(a, cfg, name):
    names = cfg.get("stamps", [0, 1, 2, 3, 4, 5, 6, 7])
    if cfg.get("tim") and name in names:
        idx = names.index(name)
        a.e(f"{'s_memrealtime' if cfg.get('rt') else 's_memtime'} s[{80+2*idx}:{81+2*idx}]")
def emit(a, grp):
    for ins in grp: a.e("s_nop 0" if ins == "@" else ins)
class Lbl:
    n = 0
def lbl(p):
    Lbl.n += 1; return f"L_{p}_{Lbl.n}"
def atomic_inc(a, soff, t=12):
    a.e(f"v_mov_b32 v{t}, 1"); a.e(f"v_mov_b32 v{t+1}, 0")
    a.e("s_mov_b64 exec, 1")
    a.e(f"buffer_atomic_add v{t}, v{t+1}, {DBG}, {soff} offen sc1")
    a.e("s_mov_b64 exec, -1")
def poll_issue(a, soff, t):
    a.e(f"v_mov_b32 v{t+1}, 0")
    a.e("s_mov_b64 exec, 1")
    a.e(f"buffer_load_dword v{t}, v{t+1}, {DBG}, {soff} offen sc1")
    a.e("s_mov_b64 exec, -1")
def poll_spin(a, soff, t, pre=False):
    L, X, C = lbl("poll"), lbl("pollx"), lbl("pollc")
    a.e("s_mov_b32 s36, 0")
    if pre: a.e(f"s_branch {C}")
    a.label(L)
    if SLEEP: a.e(f"s_sleep {SLEEP}")
    poll_issue(a, soff, t)
    a.e("s_waitcnt vmcnt(0)")
    a.label(C)
    a.e(f"v_readfirstlane_b32 s37, v{t}")
    a.e("s_add_u32 s36, s36, 1")
    a.e("s_cmp_ge_u32 s37, 16")
    a.e(f"s_cbranch_scc1 {X}")
    a.e(f"s_cmp_lt_u32 s36, {BOUND}")
    a.e(f"s_cbranch_scc1 {L}")
    a.label(X)

FLG = 45 * MB
def tag_spin(a, soff, t):
    L, X = lbl("poll"), lbl("pollx")
    a.e("s_mov_b32 s36, 0"); a.e(f"v_lshlrev_b32 v{t+2}, 3, v11")
    a.e("s_mov_b64 exec, 0xffff")
    a.label(L)
    a.e(f"buffer_load_dwordx2 {vr(t,2)}, v{t+2}, {WS}, {soff} offen sc1")
    a.e("s_add_u32 s36, s36, 1")
    a.e("s_waitcnt vmcnt(0)")
    a.e(f"v_cmp_ne_u64 vcc, {vr(t,2)}, v[126:127]")
    a.e(f"s_cmp_ge_u32 s36, {BOUND}"); a.e(f"s_cbranch_scc1 {X}")
    a.e("s_cmp_lg_u64 vcc, 0"); a.e(f"s_cbranch_scc1 {L}")
    a.label(X)
    a.e("s_mov_b64 exec, -1")
def flag_set(a, which, t, tag=False):
    A, B = ("s22", "s21") if which == 0 else ("s21", "s22")
    a.e(f"s_lshl_b32 s30, {A}, 4"); a.e(f"s_add_u32 s30, s30, {B}"); a.e("s_lshl_b32 s30, s30, 7"); a.e(f"s_add_u32 s30, s30, {FLG + which*32768}")
    for k in range(4): a.e(f"v_mov_b32 v{t+k}, {'v%d' % (126 + (k & 1)) if tag else 0}")
    a.e("s_mov_b64 exec, 0xff")
    a.e(f"buffer_store_dwordx4 {vr(t,4)}, v11, {WS}, s30 offen sc1")
    a.e("s_mov_b64 exec, -1")
def flag_issue(a, soff, t):
    a.e(f"v_mov_b32 v{t}, 0"); a.e(f"v_lshlrev_b32 v{t+1}, 3, v11")
    a.e("s_mov_b64 exec, 0xffff")
    a.e(f"buffer_load_dword v{t}, v{t+1}, {WS}, {soff} offen sc1")
    a.e("s_mov_b64 exec, -1")
def flag_spin(a, soff, t, pre=False):
    L, X, C = lbl("poll"), lbl("pollx"), lbl("pollc")
    a.e("s_mov_b32 s36, 0")
    if pre: a.e(f"s_branch {C}")
    a.label(L)
    flag_issue(a, soff, t)
    a.e("s_waitcnt vmcnt(0)")
    a.label(C)
    a.e(f"v_cmp_eq_u32 vcc, -1, v{t}")
    a.e("s_add_u32 s36, s36, 1")
    a.e(f"s_cmp_ge_u32 s36, {BOUND}"); a.e(f"s_cbranch_scc1 {X}")
    a.e("s_cmp_lg_u64 vcc, 0"); a.e(f"s_cbranch_scc1 {L}")
    a.label(X)

def acc(n, m): return ACC + (n * 4 + m) * 4
def fa(P, m): return 16 + 16 * P + 4 * m
def fb(P, n): return 48 + 28 * P + 4 * n
def tiles_of(G):
    z1 = lambda p: ("z1", 6 + p // 2 if p < 6 else 9, p & 1 if p < 6 else 0, p)
    z2 = lambda p: ("z2", 10 + p // 2 if p < 6 else 9, p & 1 if p < 6 else 1, p)
    if G == 0: return [("k", 2, 0, 0), ("k", 2, 1, 1), ("v", 4, 0, 0), ("v", 4, 1, 1), z2(0), z2(1), z1(0)]
    if G == 1: return [("k", 3, 0, 0), ("k", 3, 1, 1), ("v", 5, 0, 0), ("v", 5, 1, 1), z2(2), z1(1), z1(2)]
    if G == 2: return [("q", 0, 0, 0), ("q", 0, 1, 1), z2(3), z2(4), z1(3), z1(4)]
    if G == 3: return [("q", 1, 0, 0), ("q", 1, 1, 1), z2(5), z2(6), z1(5), z1(6)]
def dmas1(G, slot, which="AB"):
    out = []
    base = slot * S1
    def B(c, imm, v, srd_, so):
        return [f"s_add_u32 m0, s28, {base + 8192 + c*1024 - imm}", "@",
                f"buffer_load_dwordx4 v{v}, {sr(srd_,4)}, s{so} offen offset:{imm} lds"]
    if G in (0, 1):
        if "A" in which:
            out.append([f"s_add_u32 m0, s27, {base}", "@", f"buffer_load_dwordx4 v2, {WS}, s24 offen{ASC} lds"])
            out.append([f"buffer_load_dwordx4 v2, {WS}, s24 offen offset:1024{ASC} lds", "s_add_u32 s24, s24, 8192"])
        if "B" in which:
            c0 = 0 if G == 0 else 2
            out.append(B(c0, 0, 3, SQKV, 25))
            out.append(B(c0 + 1, 64, 3, SQKV, 25) + [f"s_add_u32 s25, s25, {32*6144}"])
    if G == 2:
        for c in range(3): out.append(B(6 + c, 64 * c, 4, SWIN, 26))
        out.append(B(9, 0, 15, SWIN, 26) + [f"s_add_u32 s26, s26, {32*7168}"])
    if G == 3:
        out.append(B(4, 0, 3, SQKV, 25))
        out.append(B(5, 64, 3, SQKV, 25) + [f"s_add_u32 s25, s25, {32*6144}"])
        for c in range(3): out.append(B(10 + c, 3584 + 64 * c, 4, SWIN, 26))
        out[-1].append(f"s_add_u32 s26, s26, {32*7168}")
    return out
def reads1(G, P, slot):
    hi = slot >> 1
    base = (slot & 1) * S1
    out = [f"ds_read_b128 {vr(fa(P,m),4)}, v{5+hi} offset:{base + m*1024}" for m in range(4)]
    for n, (kind, blk, hf, zn) in enumerate(tiles_of(G)):
        for h in range(2):
            out.append(f"ds_read_b64_tr_b16 {vr(fb(P,n)+2*h,2)}, v{7+2*hi+hf} offset:{base + blk*1024 + h*256}")
    if XR[0] == 1: out = out[::2]
    if XR[0] == 2: out = out[4:]
    return out
def mfmas1(G, P, first=False):
    out = []
    for n, (kind, blk, hf, zn) in enumerate(tiles_of(G)):
        for m in range(4):
            A, Bq = vr(fa(P, m), 4), vr(fb(P, n), 4)
            if kind in ("q", "z1"): A, Bq = Bq, A
            out.append(f"v_mfma_f32_16x16x32_bf16 {vr(acc(n,m),4)}, {A}, {Bq}, {'0' if first else vr(acc(n,m),4)}")
    return out
def place(fill, DM, d0, ds, nM):
    used = set()
    for k, grp in enumerate(DM):
        p = min(d0 + k * ds, nM - 2)
        if "@" in grp:
            assert p not in used; used.add(p)
            i = grp.index("@")
            fill.append((p, grp[:i])); fill.append((p + 1, grp[i+1:]))
        else:
            fill.append((p + 1, grp))
def step1(a, cfg, G, t, DM, nwait, first=False, last=False, extra=None, dpos=None):
    P = t & 1
    a.e(f"s_waitcnt vmcnt({nwait}) lgkmcnt(0)" if nwait is not None else "s_waitcnt lgkmcnt(0)")
    a.e("s_barrier")
    M = mfmas1(G, P, first)
    fill = []
    if not last:
        r0 = cfg.get("k1_r0", 0); rs = cfg.get("k1_rs", 1.0)
        for k, r in enumerate(reads1(G, P ^ 1, (t + 1) & 3)): fill.append((int(r0 + k * rs), [r]))
    d0, ds = dpos or cfg.get("k1_d", {}).get(G, (2, 5))
    place(fill, DM, d0, ds, len(M))
    if cfg.get("dot"):
        nt = len(tiles_of(G))
        ops = [f"v_dot2_f32_bf16 v{240+n}, v{fb(P,n)+h}, s49, v{240+n}" for h in range(2) for n in range(nt)]
        ops += [f"v_dot2_f32_bf16 v{248+u}, v{fa(P,G)+h}, {'s49' if u == 0 else 'v%d' % (fa(P,G)+h)}, v{248+u}" for h in range(4) for u in range(2)]
        for k, o in enumerate(ops): fill.append((int(k * (len(M) - 1) / len(ops)), [o]))
    if extra: fill.append((len(M) - 1, extra))
    interleave(a, M, fill)

def TOUCH(G):
    t = [f"buffer_load_dword v125, v124, s[76:79], 0 offen", "v_add_u32 v124, s3, v124"]
    if G == 2 and LT: t += [f"buffer_load_dword v125, v126, s[76:79], 0 offen", "v_add_u32 v126, s3, v126"]
    return t
def NTCH(G): return 2 if G == 2 and LT else 1
def touch(a, cfg, G):
    if G < 2 or not cfg.get("pf", 1): return 0
    L, L2 = lbl("t"), lbl("t")
    a.e("s_cmp_lg_u32 s23, 0"); a.e(f"s_cbranch_scc1 {L}")
    for mw in range(2):
        if G == 2:
            sb, stride = ((SQKV, 6144), (SWIN, 7168))[mw]
            n = stride // 256
            srd_at(a, STCH, sb, 128 * stride, 896 * stride)
            a.e(f"s_mov_b32 s3, {128 * stride}")
            if LT:
                a.e("s_and_b32 s46, s21, 7"); a.e("s_lshl_b32 s46, s46, 4"); a.e("v_and_b32 v124, 15, v12"); a.e("v_add_u32 v124, s46, v124")
                a.e(f"v_mul_u32_u24 v124, {stride}, v124"); a.e("v_lshrrev_b32 v125, 4, v12")
                if mw == 0:
                    a.e("v_lshl_add_u32 v124, v125, 11, v124"); a.e("s_lshl_b32 s46, s101, 7"); a.e("s_lshl_b32 s47, s100, 7")
                    a.e("v_mov_b32 v125, s47"); a.e("v_mov_b32 v126, s46"); a.e("v_cmp_gt_u32 vcc, 16, v12"); a.e("v_cndmask_b32 v125, v125, v126, vcc")
                else:
                    a.e("v_lshlrev_b32 v125, 7, v125"); a.e("v_min_u32 v125, 220, v125"); a.e("s_mul_i32 s46, s22, 224"); a.e("v_add_u32 v125, s46, v125")
                a.e("v_add_u32 v124, v124, v125")
                a.e("v_cmp_gt_u32 vcc, 48, v12"); a.e("v_bfrev_b32 v126, 1"); a.e("v_cndmask_b32 v124, v126, v124, vcc")
                if mw: a.e("v_add_u32 v126, 3584, v124")
                if mw == 0: a.e(f"s_branch {L2}"); a.label(L)
                continue
            a.e(f"s_mul_i32 s46, s2, {n}"); a.e("v_add_u32 v124, s46, v12"); a.e("v_lshlrev_b32 v124, 7, v124")
            a.e(f"v_cmp_gt_u32 vcc, {n}, v12"); a.e("v_bfrev_b32 v125, 1"); a.e("v_cndmask_b32 v124, v125, v124, vcc")
        else:
            sb, n = ((SWSP, 32768), (SWOUT, 14336))[mw]
            a.e(f"s_mul_i32 s46, s2, {n}"); srd_at(a, STCH, sb, "s46", n)
            nl = cfg.get("tsp", [37, 16])[mw]
            a.e(f"s_mov_b32 s3, {128 * nl}"); a.e(f"v_min_u32 v124, {nl - 1}, v12"); a.e("v_lshlrev_b32 v124, 7, v124")
            dl = cfg.get("tdl", [0, 0])[mw]
            assert (7 - dl) * nl * 128 >= n
            if dl: a.e(f"v_subrev_u32 v124, {128 * nl * dl}, v124")
        if mw == 0: a.e(f"s_branch {L2}"); a.label(L)
    a.label(L2)
    if G == 3:
        if cfg.get("cpf", 0) >= 2:
            Lp = lbl("pc")
            a.e("s_getpc_b64 s[40:41]"); a.label(Lp)
            a.e(f"s_sub_u32 s40, s40, {Lp}-L_start"); a.e("s_subb_u32 s41, s41, 0"); a.e("s_and_b32 s41, s41, 0xffff")
            a.e("s_mov_b32 s42, L_end-L_start"); a.e("s_mov_b32 s43, 0x00020000")
            if cfg["cpf"] == 2:
                a.e("s_lshr_b32 s46, s2, 3"); a.e("s_lshl_b32 s46, s46, 1"); a.e("s_add_u32 s46, s46, s23"); a.e("s_mul_i32 s46, s46, 9")
                a.e("v_min_u32 v126, 8, v12"); a.e("v_add_u32 v126, s46, v126"); a.e("v_lshlrev_b32 v126, 7, v126")
                a.e("buffer_load_dword v125, v126, s[40:43], 0 offen")
                return 1
            a.e("s_lshl_b32 s46, s23, 6"); a.e("v_add_u32 v126, s46, v12"); a.e("v_lshlrev_b32 v126, 7, v126")
            for k in range(5):
                a.e("buffer_load_dword v125, v126, s[40:43], 0 offen")
                if k < 4: a.e("v_add_u32 v126, 16384, v126")
            return 5
        tl = cfg.get("tlb", 0)
        if tl:
            a.e(f"v_lshlrev_b32 v126, {tl}, v12"); a.e(f"s_lshl_b32 s46, s23, {tl + 6}"); a.e(f"s_add_u32 s46, s46, {Z2N}")
            a.e(f"buffer_load_dword v125, v126, {WS}, s46 offen sc1")
            a.e("v_lshlrev_b32 v126, 12, v12"); a.e("s_lshl_b32 s46, s50, 18")
            a.e(f"buffer_load_dword v125, v126, {sr(SOUT,4)}, s46 offen")
            return 2
        return 0
    for t in range(cfg.get("tn", 1)): emit(a, TOUCH(G))
    return cfg.get("tn", 1) * NTCH(G)

def ln(a, cfg, G):
    LO, SO, T = 64, 65, 66
    wh = "B" if G < 2 else "AB"
    n0, n1 = cfg.get("ln_n0", 2), cfg.get("ln_n1", 0)
    a.e("s_lshr_b32 s30, s22, 1"); a.e("s_and_b32 s31, s22, 1")
    nv = touch(a, cfg, G) if cfg.get("tpos", 1) == 0 else 0
    for s in range(n0):
        for grp in dmas1(G, s, wh): emit(a, grp); nv += 1
    if G == 0 and NON:
        a.e("v_mov_b32 v125, 0"); a.e(f"s_mov_b32 s33, {FLG + 4*32768}")
        a.e(f"buffer_load_dwordx2 v[126:127], v125, {WS}, s33 offen sc1")
        nv += 1
    if G == 0:
        a.e("s_lshl_b32 s33, s21, 4"); a.e("s_add_u32 s33, s33, s22"); a.e("s_lshl_b32 s33, s33, 10")
        a.e(f"s_add_u32 s33, s33, {STATS}")
        a.e("s_mul_i32 s34, s100, 6144"); a.e("s_mul_i32 s35, s21, 384"); a.e("s_add_u32 s34, s34, s35")
        a.e(f"s_add_u32 s34, s34, {KVR}")
        a.e("s_cmp_eq_u32 s23, 0")
        a.e("s_cselect_b32 s33, s33, s34")
        a.e("s_cselect_b32 s34, 63, 23")
        a.e(f"v_min_u32 v{T+2}, s34, v12"); a.e(f"v_lshlrev_b32 v{T+2}, 4, v{T+2}")
        for k in range(4): a.e(f"v_mov_b32 v{72+k}, -1")
        a.e(f"buffer_store_dwordx4 v[72:75], v{T+2}, {WS}, s33 offen sc1")
        nv += 1
    if G == 1:
        a.e("s_lshl_b32 s33, s22, 4"); a.e("s_add_u32 s33, s33, s21"); a.e("s_lshl_b32 s34, s21, 4"); a.e("s_add_u32 s34, s34, s22")
        a.e(f"v_mov_b32 v72, s33"); a.e("v_mov_b32 v73, s34"); a.e("v_cmp_gt_u32 vcc, 8, v12"); a.e("v_cndmask_b32 v72, v73, v72, vcc")
        a.e("v_min_u32 v73, 23, v12"); a.e("v_lshrrev_b32 v74, 3, v73"); a.e("v_lshl_add_u32 v72, v74, 8, v72")
        a.e("v_and_b32 v73, 7, v73"); a.e("v_lshlrev_b32 v73, 4, v73"); a.e(f"v_lshl_add_u32 v{T+2}, v72, 7, v73")
        a.e(f"s_mov_b32 s33, {FLG}")
        for k in range(4): a.e(f"v_mov_b32 v{72+k}, -1")
        a.e(f"buffer_store_dwordx4 v[72:75], v{T+2}, {WS}, s33 offen sc1")
        nv += 1
    a.e("s_lshl_b32 s32, s21, 18"); a.e("s_lshl_b32 s33, s30, 10"); a.e("s_add_u32 s32, s32, s33")
    a.e("s_lshl_b32 s33, s31, 7"); a.e("s_add_u32 s32, s32, s33")
    a.e("s_lshl_b32 s33, s20, 15"); a.e("s_add_u32 s32, s32, s33")
    a.e("s_add_u32 s33, s32, 16384")
    a.e("s_mov_b32 s36, 0xffff0000")
    st(a, cfg, "dma")
    a.e(f"s_waitcnt vmcnt({nv})")
    st(a, cfg, "x")
    if cfg.get("tpos", 1) == 3: touch(a, cfg, G)
    for k in range(8):
        a.e(f"v_lshlrev_b32 v{32+2*k}, 16, v{16+k}")
        a.e(f"v_and_b32 v{33+2*k}, s36, v{16+k}")
    x = lambda k: vr(32 + 2*k, 2)
    p0, p1 = vr(T, 2), vr(T+2, 2)
    a.e(f"v_pk_add_f32 {p0}, {x(0)}, {x(1)}"); a.e(f"v_pk_mul_f32 {p1}, {x(0)}, {x(0)}")
    for k in range(1, 8):
        if k > 1: a.e(f"v_pk_add_f32 {p0}, {p0}, {x(k)}")
        a.e(f"v_pk_fma_f32 {p1}, {x(k)}, {x(k)}, {p1}")
    a.e(f"v_add_f32 v{T}, v{T}, v{T+1}"); a.e(f"v_add_f32 v{T+1}, v{T+2}, v{T+3}")
    a.e("s_nop 1")
    for k in range(2): a.e(f"v_add_f32_dpp v{T+k}, v{T+k}, v{T+k} row_ror:8 row_mask:0xf bank_mask:0xf")
    for op in ("v_permlane16_swap_b32", "v_permlane32_swap_b32"):
        for k in range(2): a.e(f"v_mov_b32 v{T+2+k}, v{T+k}")
        a.e("s_nop 1")
        for k in range(2): a.e(f"{op} v{T+2+k}, v{T+k}")
        a.e("s_nop 1")
        a.e(f"v_pk_add_f32 {p0}, {p0}, {p1}")
    a.e("s_mov_b64 exec, 0xff")
    a.e(f"ds_write_b64 v62, {p0}")
    a.e("s_mov_b64 exec, -1")
    a.e("s_waitcnt lgkmcnt(0)")
    a.e("s_barrier")
    for k in range(4): a.e(f"ds_read_b128 {vr(16+4*k,4)}, v63 offset:{16*k}")
    a.e("s_waitcnt lgkmcnt(0)")
    for lv in (4, 2, 1):
        for k in range(lv): a.e(f"v_pk_add_f32 {vr(16+2*k,2)}, {vr(16+2*k,2)}, {vr(16+2*(k+lv),2)}")
    a.e(f"v_mul_f32 v16, {f2u(1.0/1024):#x}, v16"); a.e(f"v_mul_f32 v17, {f2u(1.0/1024):#x}, v17")
    a.e("v_fma_f32 v17, -v16, v16, v17"); a.e("v_max_f32 v17, 0, v17"); a.e(f"v_add_f32 v17, {f2u(1e-5):#x}, v17")
    a.e("v_rsq_f32 v18, v17")
    a.e("v_mul_f32 v16, -1.0, v16")
    a.e("v_mov_b32 v17, v16"); a.e("v_mov_b32 v19, v18")
    for k in range(8): a.e(f"v_pk_add_f32 {x(k)}, {x(k)}, v[16:17]")
    for k in range(8): a.e(f"v_pk_mul_f32 {x(k)}, {x(k)}, v[18:19]")
    for k in range(8): a.e(f"v_cvt_pk_bf16_f32 v{20+k}, v{32+2*k}, v{33+2*k}")
    for n in range(2):
        a.e(f"buffer_store_dwordx4 v[{20+4*n}:{23+4*n}], v{SO}, {WS}, s{32+n} offen sc1")
    nv = 0
    for s in range(n0, n0 + n1):
        for grp in dmas1(G, s, wh): emit(a, grp); nv += 1
    a.e("s_lshl_b32 s30, s21, 4")
    st(a, cfg, "ln")
    a.e(f"s_waitcnt vmcnt({nv})")
    a.e("s_barrier")
    st(a, cfg, "xn")
    if G == 0:
        L = lbl("noarr")
        a.e("s_cmp_lg_u32 s20, 0"); a.e(f"s_cbranch_scc1 {L}")
        if NON:
            a.e("v_add_u32 v126, 1, v126"); a.e("v_add_u32 v127, 1, v127")
            flag_set(a, 3, 72, tag=True)
            a.e("s_lshl_b32 s30, s21, 4")
        atomic_inc(a, "s30", T)
        a.label(L)
    for s in range(n0 + n1, cfg.get("ln_n2", 4)):
        for grp in dmas1(G, s, wh): emit(a, grp)

def addr2(a):
    a.e("v_lshrrev_b32 v13, 3, v12"); a.e("v_lshrrev_b32 v14, 5, v12"); a.e("v_and_b32 v123, 3, v13")
    a.e("v_lshl_add_u32 v14, v14, 3, v123"); a.e("v_lshlrev_b32 v14, 12, v14")
    a.e("v_lshrrev_b32 v13, 4, v12"); a.e("v_and_b32 v123, 7, v12"); a.e("v_xor_b32 v13, v13, v123")
    a.e("v_lshl_add_u32 v112, v13, 4, v14")
    a.e("v_xor_b32 v113, 64, v112")
    a.e(f"v_add_u32 v114, {16384-2048}, v112")
    a.e(f"v_add_u32 v115, {81920-3072}, v113")
    a.e(f"v_add_u32 v113, {65536-1024}, v113")
    a.e("v_and_b32 v13, 15, v12"); a.e("v_lshrrev_b32 v14, 1, v13"); a.e("v_lshrrev_b32 v123, 4, v12")
    a.e("v_xor_b32 v14, v14, v123"); a.e("v_lshlrev_b32 v14, 4, v14")
    a.e("v_lshl_add_u32 v116, v13, 7, v14")
    a.e("s_and_b32 s36, s20, 3"); a.e("s_lshl_b32 s36, s36, 12")
    a.e("v_add_u32 v116, s36, v116")
    a.e("v_xor_b32 v117, 64, v116")
    a.e(f"v_add_u32 v118, {2*S2}, v116"); a.e(f"v_add_u32 v119, {2*S2}, v117")
    a.e("s_lshr_b32 s36, s20, 2"); a.e("s_lshl_b32 s36, s36, 12"); a.e("s_add_u32 s36, s36, 16384")
    a.e("v_add_u32 v121, s36, v11"); a.e(f"v_add_u32 v122, {2*S2}, v121")
    a.e("v_bfe_u32 v13, v12, 2, 2"); a.e("v_and_b32 v14, 3, v12"); a.e("v_lshl_add_u32 v13, v13, 3, v14")
    a.e("v_lshlrev_b32 v120, 1, v13")

def epi_z2a(a, cfg, G):
    T = tiles_of(G)
    S, Q = 16, 32
    zt = [n for n, t in enumerate(T) if t[0] == "z2"]
    for zi, n in enumerate(zt):
        for p in range(2):
            r0, r1 = acc(n, 2*p), acc(n, 2*p+1)
            xs = [r0, r0+2, r1, r1+2]
            gelu8(a, xs, 104)
            for k in range(4):
                s, q = S + 8*p + 2*k, Q + 8*p + 2*k
                if zi == 0: a.e(f"v_pk_mul_f32 {vr(q,2)}, {vr(xs[k],2)}, {vr(xs[k],2)}")
                else:
                    a.e(f"v_pk_add_f32 {vr(s,2)}, {vr(xs[k]-16,2)}, {vr(xs[k],2)}")
                    a.e(f"v_pk_fma_f32 {vr(q,2)}, {vr(xs[k],2)}, {vr(xs[k],2)}, {vr(q,2)}")
    a.e("s_nop 1")
    src = (lambda k: S + k) if len(zt) > 1 else (lambda k: acc(zt[0], 0) + k)
    for k in range(16): a.e(f"v_add_f32_dpp v{S+k}, v{src(k)}, v{src(k)} row_ror:8 row_mask:0xf bank_mask:0x3")
    for k in range(16): a.e(f"v_add_f32_dpp v{S+k}, v{Q+k}, v{Q+k} row_ror:8 row_mask:0xf bank_mask:0xc")
    for k in range(8): a.e(f"v_add_f32_dpp v{S+k}, v{S+k}, v{S+k} row_shl:4 row_mask:0xf bank_mask:0x5")
    for k in range(8): a.e(f"v_add_f32_dpp v{S+k}, v{S+8+k}, v{S+8+k} row_shr:4 row_mask:0xf bank_mask:0xa")
    for k in range(8): a.e(f"v_add_f32_dpp v{S+k}, v{S+k}, v{S+k} quad_perm:[1,0,3,2] row_mask:0xf bank_mask:0xf")
    for k in range(8): a.e(f"v_add_f32_dpp v{S+k}, v{S+k}, v{S+k} quad_perm:[2,3,0,1] row_mask:0xf bank_mask:0xf")
    a.e("s_mov_b32 s30, 0x11111111"); a.e("s_mov_b32 s31, 0x11111111")
    a.e("s_mov_b64 exec, s[30:31]")
    a.e(f"ds_write_b128 v2, {vr(S,4)} offset:{G*1024}")
    a.e(f"ds_write_b128 v2, {vr(S+4,4)} offset:{G*1024+16}")
    a.e("s_mov_b64 exec, -1")
    st(a, cfg, "g2")
    a.e("s_waitcnt lgkmcnt(0)")
    a.e("s_barrier")
    st(a, cfg, "s1")
    if G == 2:
        for g in range(4): a.e(f"ds_read2st64_b32 {vr(16+2*g,2)}, v3 offset0:{4*g} offset1:{4*g+2}")
        a.e("s_lshl_b32 s34, s21, 14"); a.e(f"s_add_u32 s34, s34, {STATS}")
        a.e("s_lshl_b32 s35, s22, 10"); a.e("s_add_u32 s35, s35, s34")
        a.e("s_waitcnt lgkmcnt(0)")
        a.e("v_pk_add_f32 v[16:17], v[16:17], v[18:19]")
        a.e("v_pk_add_f32 v[20:21], v[20:21], v[22:23]")
        a.e("v_pk_add_f32 v[16:17], v[16:17], v[20:21]")
        a.e(f"buffer_store_dwordx2 v[16:17], v4, {WS}, s35 offen sc1")

def epi_addr(a, G):
    a.e("v_and_b32 v1, 63, v0")
    a.e("v_bfe_u32 v2, v1, 3, 1"); a.e("v_lshlrev_b32 v2, 9, v2")
    a.e("v_bfe_u32 v3, v1, 2, 1"); a.e("v_lshl_add_u32 v2, v3, 7, v2")
    a.e("v_lshrrev_b32 v3, 4, v1"); a.e("v_lshlrev_b32 v5, 5, v3")
    a.e("s_lshl_b32 s30, s23, 8"); a.e(f"s_add_u32 s30, s30, {SS}")
    a.e("v_add_u32 v5, s30, v5")
    a.e("v_add_u32 v2, v2, v5")
    if G == 2:
        a.e("s_lshl_b32 s30, s23, 6"); a.e("v_add_u32 v4, s30, v1")
        a.e("v_lshlrev_b32 v3, 2, v4"); a.e(f"v_add_u32 v3, {SS}, v3")
        a.e("v_lshlrev_b32 v4, 3, v4")
    a.e("s_lshl_b32 s30, s23, 11"); a.e(f"s_add_u32 s30, s30, {ZS}")
    a.e("v_add_u32 v6, s30, v11")

def epi_attn(a, cfg, G):
    if G in (0, 1):
        for k in range(4): a.e(f"v_mov_b32 v{48+k}, 0x3f803f80")
        for et in range(2):
            for p in range(2): pack(a, 32 + 8*et + 4*p, acc(2+et, 2*p), acc(2+et, 2*p+1))
        for dt in range(2):
            for p in range(2):
                r0, r1 = acc(dt, 2*p), acc(dt, 2*p+1)
                phi8(a, [r0, r0+2, r1, r1+2], 104)
                pack(a, 16 + 8*dt + 4*p, r0, r1)
        a.e("s_nop 1")
        for p in range(2):
            for et in range(3):
                for dt in range(2):
                    d = vr(56 + 8*et + 4*dt, 4)
                    Bq = vr(32 + 8*et + 4*p, 4) if et < 2 else vr(48, 4)
                    a.e(f"v_mfma_f32_16x16x32_bf16 {d}, {vr(16+8*dt+4*p,4)}, {Bq}, {'0' if p == 0 else d}")
        a.e(f"s_lshl_b32 s30, s100, 1")
        if G: a.e("s_add_u32 s30, s30, 1")
        a.e("s_lshl_b32 s30, s30, 5"); a.e("s_lshl_b32 s31, s21, 1"); a.e("s_add_u32 s30, s30, s31"); a.e("s_add_u32 s30, s30, s23")
        a.e("s_mul_i32 s30, s30, 6144"); a.e(f"s_add_u32 s30, s30, {KVP}"); a.e("s_add_u32 s31, s30, 4096")
        a.e("s_nop 7")
        for k in range(6):
            a.e(f"buffer_store_dwordx4 {vr(56+4*k,4)}, v11, {WS}, s{30 + (k>>2)} offen offset:{(k&3)*1024} sc1")
    else:
        for m in range(4):
            r0, r1 = acc(0, m), acc(1, m)
            phi8(a, [r0, r0+2, r1, r1+2], 104)
            pack(a, 240 + 4*m, r0, r1)

def epi_z2b(a, cfg, G):
    T = tiles_of(G)
    if G == 2:
        for k in range(1, 4): a.e(f"s_add_u32 s{37+k}, s34, {4096*k}")
        a.e("s_mov_b32 s36, 0")
        L, X = lbl("sp"), lbl("spx")
        a.label(L)
        for k in range(16):
            a.e(f"buffer_load_dwordx2 {vr(32+2*k,2)}, v4, {WS}, s{34 if k < 4 else 37 + (k>>2)} offen offset:{(k&3)*1024} sc1")
        a.e("s_add_u32 s36, s36, 1")
        for lv in (8, 4, 2, 1):
            if lv == 8: a.e("s_waitcnt vmcnt(0)")
            for k in range(lv): a.e(f"v_pk_add_f32 {vr(32+2*k,2)}, {vr(32+2*k,2)}, {vr(32+2*(k+lv),2)}")
        a.e("v_cmp_u_f32 vcc, v32, v33")
        a.e(f"s_cmp_ge_u32 s36, {BOUND}"); a.e(f"s_cbranch_scc1 {X}")
        a.e("s_cmp_lg_u64 vcc, 0"); a.e(f"s_cbranch_scc1 {L}")
        a.label(X)
        a.e(f"v_mul_f32 v32, {f2u(1.0/1792):#x}, v32")
        a.e(f"v_mul_f32 v33, {f2u(1.0/1792):#x}, v33")
        a.e("v_fma_f32 v33, -v32, v32, v33")
        a.e("v_max_f32 v33, 0, v33")
        a.e(f"v_add_f32 v33, {f2u(1e-5):#x}, v33")
        a.e("v_rsq_f32 v33, v33")
        a.e("s_nop 0")
        a.e("v_mul_f32_e64 v32, -v32, v33")
        a.e("ds_write2st64_b32 v3, v33, v32 offset0:16 offset1:18")
        a.e("s_waitcnt lgkmcnt(0)")
    a.e("s_barrier")
    st(a, cfg, 3)
    RS, NM = 16, 32
    for p in range(2):
        for q in range(2):
            a.e(f"ds_read_b128 {vr(RS+8*p+4*q,4)}, v5 offset:{4096 + p*128 + q*16}")
            a.e(f"ds_read_b128 {vr(NM+8*p+4*q,4)}, v5 offset:{4608 + p*128 + q*16}")
    a.e("s_lshl_b32 s32, s22, 6"); a.e("s_lshl_b32 s33, s21, 2"); a.e("s_add_u32 s32, s32, s33")
    a.e("s_lshl_b32 s33, s23, 1"); a.e("s_add_u32 s32, s32, s33")
    a.e("s_mul_i32 s32, s32, 7168"); a.e(f"s_add_u32 s32, s32, {Z2N}")
    a.e("s_waitcnt lgkmcnt(0)")
    k = 0
    for n, (kind, blk, hf, pos) in enumerate(T):
        if kind != "z2": continue
        for p in range(2):
            r0, r1 = acc(n, 2*p), acc(n, 2*p+1)
            xs = [r0, r0+2, r1, r1+2]
            for u in range(4): a.e(f"v_pk_fma_f32 {vr(xs[u],2)}, {vr(xs[u],2)}, {vr(RS+8*p+2*u,2)}, {vr(NM+8*p+2*u,2)}")
            d = 80 + 4 * (k & 3); k += 1
            a.e(f"s_add_u32 s33, s32, {p*7168 + pos*1024}")
            pack(a, d, r0, r1)
            a.e(f"buffer_store_dwordx4 {vr(d,4)}, v11, {WS}, s33 offen sc1")

def epi_z1(a, cfg, G, which):
    zt = [(n, t[3]) for n, t in enumerate(tiles_of(G)) if t[0] == "z1"]
    for n, pos in zt[which:which+1]:
        for p in range(2):
            r0, r1 = acc(n, 2*p), acc(n, 2*p+1)
            gelu8(a, [r0, r0+2, r1, r1+2], 104)
            pack(a, 96 + 4*p, r0, r1)
            a.e(f"ds_write_b128 v6, {vr(96+4*p,4)} offset:{pos*4096 + p*1024}")

def acc2(n, m): return ACC + (n * 2 + m) * 4
def fw(P, m): return 24 + 8 * P + 4 * m
def fz(P, n): return 40 + 16 * P + 4 * n
def ntiles(R): return 4 if R == 0 else 3
def dmas2(R, slot):
    base = slot * S2
    out = []
    D = 3 if R == 2 else 4
    for n in range(D):
        if R == 0: g = [f"buffer_load_dwordx4 v{112+n}, {sr(SWSP,4)}, s24 offen offset:{n*1024} lds"]
        else: g = [f"buffer_load_dwordx4 v11, {WS}, s24 offen offset:{n*1024}{ASC} lds"]
        if n == 0: g = [f"s_add_u32 m0, s27, {base}", "@"] + g
        if n == D - 1:
            g.append(f"s_add_u32 s24, s24, {128 if R == 0 else 14336}")
            if ROT: g += ["s_cmp_eq_u32 s24, s25", "s_cselect_b32 s24, s26, s24"]
        out.append(g)
    return out
def reads2(R, P, slot, sub):
    hi = slot >> 1
    base = (slot & 1) * S2
    out = [f"ds_read_b128 {vr(fw(P,m),4)}, v{116+2*hi+sub} offset:{base + m*2048}" for m in range(2)]
    out += [f"ds_read_b128 {vr(fz(P,n),4)}, v{121+hi} offset:{base + sub*7168 + n*1024}" for n in range(ntiles(R))]
    if XR[1] == 1: out = out[::2]
    if XR[1] == 2: out = out[2:]
    return out
def mfmas2(R, P, first=False):
    return [f"v_mfma_f32_16x16x32_bf16 {vr(acc2(n,m),4)}, {vr(fz(P,n),4)}, {vr(fw(P,m),4)}, {'0' if first else vr(acc2(n,m),4)}"
            for n in range(ntiles(R)) for m in range(2)]
def body2(a, cfg, R, slot, DM, nwait, last=False, prebar=None, dpos=None):
    a.e(f"s_waitcnt vmcnt({nwait}) lgkmcnt(0)" if nwait is not None else "s_waitcnt lgkmcnt(0)")
    if prebar: prebar()
    if not last: a.e("s_barrier")
    d0, ds = dpos or (cfg.get("k2_d0", 1), cfg.get("k2_ds", 3))
    M = mfmas2(R, 1)
    fill = []
    if not last:
        for k, r in enumerate(reads2(R, 0, (slot + 1) & 3, 0)): fill.append((k - 1, [r]))
    h = len(DM) if last else (len(DM) + 1) // 2
    place(fill, DM[:h], d0, ds, len(M))
    interleave(a, M, fill)
    if last: return
    a.e("s_waitcnt lgkmcnt(0)")
    M = mfmas2(R, 0)
    fill = [(k - 1, [r]) for k, r in enumerate(reads2(R, 1, (slot + 1) & 3, 1))]
    place(fill, DM[h:], d0, ds, len(M))
    interleave(a, M, fill)

NS, NT3 = 8, 44
def fa3(T, sub): return 160 + 8 * (T % NS) + 4 * sub
def fw3(P, nt): return 88 + 16 * P + 4 * nt
def acc3(T, nt): return (128 if T < 16 else 144) + 4 * nt
class VM:
    def __init__(self): self.ops = []
    def add(self, tag): self.ops.append(tag)
    def need(self, tags):
        assert all(t in self.ops for t in tags), tags
        return min(63, len(self.ops) - 1 - max(i for i, t in enumerate(self.ops) if t in tags))
def aload(vm, T, sub):
    kp = 2 * T + sub - 32
    r = fa3(T, sub)
    vm.add(("A", T, sub))
    if kp >= 0 and kp % 7 == 3:
        vm.add(("A", T, sub))
        return [f"buffer_load_dwordx2 {vr(r,2)}, v225, {WS}, s24 offen{ASC}",
                f"buffer_load_dwordx2 {vr(r+2,2)}, v225, {WS}, s24 offen offset:1024{ASC}", "s_add_u32 s24, s24, 8192"]
    return [f"buffer_load_dwordx4 {vr(r,4)}, v224, {WS}, s24 offen{ASC}", "s_add_u32 s24, s24, 8192"]
def wdma(vm, T):
    vm.add(("W", T))
    return [f"s_add_u32 m0, s27, {(T % NS) * 8192}", "@",
            f"buffer_load_dwordx4 v226, {sr(SWO if T < 16 else SWOUT, 4)}, s25 offen lds",
            "s_mov_b32 s25, s40" if T == 15 else f"s_add_u32 s25, s25, {64*2048}"]
def loads3(vm, T, LA):
    out = [wdma(vm, T)]
    if T < LA: out += [aload(vm, T, 0), aload(vm, T, 1)]
    return out
def addr3(a):
    a.e("v_and_b32 v12, 63, v0")
    a.e("s_lshl_b32 s27, s20, 10")
    a.e("v_add_u32 v224, s27, v11")
    a.e("s_lshr_b32 s38, s20, 1"); a.e("s_lshl_b32 s39, s38, 11"); a.e("s_and_b32 s30, s20, 1"); a.e("s_lshl_b32 s31, s30, 3")
    a.e("s_add_u32 s39, s39, s31"); a.e("v_add_u32 v225, s39, v11")
    a.e("v_lshrrev_b32 v13, 3, v12"); a.e("v_bfe_u32 v14, v12, 4, 2"); a.e("v_lshlrev_b32 v14, 1, v14")
    a.e("v_and_b32 v15, 7, v12"); a.e("v_xor_b32 v14, v14, v15"); a.e("v_lshlrev_b32 v14, 4, v14")
    a.e("v_lshl_add_u32 v226, v13, 11, v14")
    a.e("s_lshl_b32 s39, s20, 14"); a.e("v_add_u32 v226, s39, v226")
    a.e("v_bfe_u32 v13, v12, 2, 3"); a.e("v_lshrrev_b32 v14, 5, v12"); a.e("v_lshlrev_b32 v14, 10, v14")
    a.e("v_lshl_add_u32 v14, v13, 7, v14"); a.e("v_lshrrev_b32 v13, 1, v13"); a.e("v_lshl_add_u32 v14, v13, 5, v14")
    a.e("v_and_b32 v15, 3, v12")
    a.e("v_lshl_add_u32 v227, v15, 3, v14")
    a.e("v_xor_b32 v228, 32, v227"); a.e("v_xor_b32 v229, 64, v227"); a.e("v_xor_b32 v230, 96, v227")
    a.e("v_bfe_u32 v13, v12, 2, 2"); a.e("v_lshl_add_u32 v13, v13, 3, v15"); a.e("v_lshlrev_b32 v231, 11, v13")
    a.e("v_bfe_u32 v13, v12, 4, 1"); a.e("v_lshl_add_u32 v231, v13, 5, v231")
    a.e("v_lshrrev_b32 v13, 5, v12"); a.e("v_lshl_add_u32 v231, v13, 4, v231")
    a.e("s_lshl_b32 s26, s50, 7"); a.e("s_lshl_b32 s38, s38, 5"); a.e("s_add_u32 s26, s26, s38")
    a.e("s_lshl_b32 s30, s30, 2"); a.e("s_add_u32 s26, s26, s30"); a.e("s_lshl_b32 s26, s26, 11")
    a.e("s_lshl_b32 s40, s51, 7"); a.e("s_add_u32 s26, s26, s40")
    a.e(f"s_mul_i32 s24, s50, {88*8192}"); a.e(f"s_add_u32 s24, s24, {AU}")
    a.e("s_mov_b32 s25, s40")
    a.e("s_lshl_b32 s41, s50, 11"); a.e(f"s_add_u32 s41, s41, {FLG + 32768}")
    if T3:
        a.e("s_lshr_b32 s30, s2, 3"); a.e("s_lshl_b32 s30, s30, 3"); a.e("s_add_u32 s30, s30, s20"); a.e("s_lshl_b32 s30, s30, 13")
        a.e("s_and_b32 s31, s51, 8"); a.e("s_add_u32 s31, s31, 3"); a.e("s_lshl_b32 s31, s31, 7"); a.e("s_add_u32 s30, s30, s31")
        a.e("v_lshlrev_b32 v232, 11, v12"); a.e("v_add_u32 v232, s30, v232")
        a.e("v_cmp_gt_u32 vcc, 4, v12"); a.e("v_bfrev_b32 v233, 1"); a.e("v_cndmask_b32 v232, v233, v232, vcc")

def stage2(a, cfg, R, vm):
    NT = ntiles(R); D = len(dmas2(R, 0)); nw = 0 if R == 0 else 1
    LA = cfg.get("k3_la", 7); PRE = cfg.get("pre3", 3)
    a.label(f"L_r{R}")
    a.e("s_and_b32 s23, s20, 3")
    if R < 2:
        a.e("s_cmp_ge_u32 s20, 3"); a.e("s_cselect_b32 s36, 1, 0")
        a.e("s_mul_i32 s37, s36, 3"); a.e("s_sub_u32 s37, s20, s37")
        a.e("s_lshl_b32 s38, s100, 1"); a.e("s_add_u32 s38, s38, s36")
        a.e("s_mul_i32 s39, s21, 24"); a.e("s_lshl_b32 s37, s37, 3"); a.e("s_add_u32 s39, s39, s37")
        a.e("v_lshrrev_b32 v17, 3, v1"); a.e("v_add_u32 v17, s39, v17")
        a.e("v_and_b32 v18, 7, v1"); a.e("v_mul_u32_u24 v18, 24576, v18"); a.e("v_lshl_add_u32 v18, v17, 4, v18")
        a.e(f"s_mul_i32 s39, s38, {32*6144}"); a.e(f"s_add_u32 s39, s39, {KVP}")
    if R:
        a.e(f"s_mul_i32 s24, s22, {64*7168}"); a.e(f"s_add_u32 s24, s24, {Z2N}")
        a.e("s_and_b32 s27, s20, 1"); a.e(f"s_mul_i32 s27, s27, {4096 if R == 1 else 3072}")
        if R == 2: a.e("s_add_u32 s27, s27, 8192")
        a.e("s_add_u32 s24, s24, s27"); a.e("s_add_u32 s27, s27, 16384")
        if ROT:
            a.e("s_mov_b32 s26, s24"); a.e(f"s_add_u32 s25, s24, {64*7168}")
            a.e(f"s_mul_i32 s36, s21, {ROT}"); a.e("s_and_b32 s36, s36, 31"); a.e("s_mul_i32 s36, s36, 14336"); a.e("s_add_u32 s24, s24, s36")
    a.e("s_waitcnt lgkmcnt(0)")
    a.e("s_barrier")
    st(a, cfg, 4)
    if R:
        for s in range(4):
            for grp in dmas2(R, s): emit(a, grp)
    if R < 2:
        for u in range(4):
            a.e(f"buffer_load_dwordx4 {vr(72+4*u,4)}, v18, {WS}, s39 offen sc1")
            if u < 3: a.e("s_add_u32 s39, s39, 6144")
    if R: a.e(f"s_waitcnt vmcnt({3*D + (4 if R == 1 else 0)})")
    a.e("s_barrier")
    st(a, cfg, "d2")
    a("; hot")
    for r in reads2(R, 0, 0, 0): a.e(r)
    a.e("s_waitcnt lgkmcnt(0)")
    interleave(a, mfmas2(R, 0, True), [(k - 1, [r]) for k, r in enumerate(reads2(R, 1, 0, 1))])
    a.e("s_mov_b32 s29, 7")
    a.label(f"L_loop2_{R}")
    for t in range(4): body2(a, cfg, R, t, dmas2(R, t), 2*D)
    a.e("s_sub_u32 s29, s29, 1")
    sides = {0: [6], 1: [6, 4, 3, 2], 2: [5, 4, 3]}[R]
    for s in sides:
        a.e(f"s_cmp_eq_u32 s29, {s}"); a.e(f"s_cbranch_scc1 L_side{R}_{s}")
    a.e("s_cmp_lg_u32 s29, 0")
    a.e(f"s_cbranch_scc1 L_loop2_{R}")
    a("; cold")
    st(a, cfg, "l2")
    addr3(a)
    E = 2
    if R == 0: flag_issue(a, "s41", 20); E = 3
    a.e("s_lshl_b32 s30, s21, 8"); a.e("s_lshl_b32 s31, s23, 6"); a.e("s_add_u32 s30, s30, s31")
    a.e(f"buffer_load_ushort v88, v120, {sr(SB,4)}, s30 offen")
    a.e(f"buffer_load_ushort v90, v120, {sr(SB,4)}, s30 offen offset:8")
    a.e(f"s_lshl_b32 s30, s23, 10"); a.e(f"s_add_u32 s30, s30, {ZS + nw*16384}"); a.e("v_add_u32 v16, s30, v11")
    a("; hot")
    tt = 1 if T3 and T3[0] >= 0 else 0
    if tt: a.e(f"buffer_load_dword v233, v232, {sr(SWO,4)}, 0 offen")
    body2(a, cfg, R, 0, [], 2*D + E + tt)
    body2(a, cfg, R, 1, [], D + E + tt)
    vm.ops = ["T3"] * tt
    L3 = []
    for T in range(PRE): L3 += loads3(vm, T, LA)
    n2 = (len(L3) * 2 + 2) // 3
    body2(a, cfg, R, 2, L3[:n2], 2 + tt, prebar=(lambda: flag_spin(a, "s41", 20, pre=True)) if R == 0 else None, dpos=(0, 2))
    body2(a, cfg, R, 3, L3[n2:], None, last=True, dpos=(0, 2))
    a("; cold")
    st(a, cfg, 5)
    for n in range(NT): a.e(f"ds_read_b128 {vr(72+4*n,4)}, v16 offset:{n*4096}")
    a.e("s_mov_b32 s33, 0xffff0000")
    a.e(f"s_mul_i32 s30, s21, {88*8192}"); a.e("s_lshl_b32 s31, s23, 11"); a.e("s_add_u32 s30, s30, s31")
    a.e(f"s_add_u32 s30, s30, {AU + 32*8192}")
    a.e("s_lshr_b32 s32, s22, 1"); a.e(f"s_mul_i32 s32, s32, {7*8192}"); a.e("s_add_u32 s30, s30, s32")
    a.e("s_and_b32 s34, s22, 1")
    a.e("s_lshl_b32 s35, s34, 15"); a.e("s_add_u32 s35, s35, s30")
    if nw == 0: a.e("s_add_u32 s39, s35, 8192")
    else:
        a.e("s_add_u32 s35, s35, 16384")
        a.e("s_lshl_b32 s39, s34, 10"); a.e("s_add_u32 s39, s39, s30"); a.e(f"s_add_u32 s39, s39, {3*8192}")
    a.e(f"s_waitcnt vmcnt({len(vm.ops)})")
    a.e("v_lshlrev_b32 v88, 16, v88"); a.e("v_lshlrev_b32 v90, 16, v90")
    a.e("v_mov_b32 v89, v88"); a.e("v_mov_b32 v91, v90")
    a.e("s_waitcnt lgkmcnt(0)")
    for n in range(NT):
        for m in range(2):
            z = 72 + 4*n + 2*m
            t = 92 + 4 * m
            a.e(f"v_lshlrev_b32 v{t}, 16, v{z}"); a.e(f"v_and_b32 v{t+1}, s33, v{z}")
            a.e(f"v_lshlrev_b32 v{t+2}, 16, v{z+1}"); a.e(f"v_and_b32 v{t+3}, s33, v{z+1}")
            r = acc2(n, m)
            for h in range(2): a.e(f"v_pk_add_f32 {vr(r+2*h,2)}, {vr(r+2*h,2)}, {vr(88+2*m,2)}")
            for h in range(2): a.e(f"v_pk_mul_f32 {vr(r+2*h,2)}, {vr(r+2*h,2)}, {vr(t+2*h,2)}")
        if n & 1:
            for m in range(2):
                d = 48 + 8 * (n >> 1) + 4 * m
                pack(a, d, acc2(n-1, m), acc2(n, m))
                a.e(f"buffer_store_dwordx4 {vr(d,4)}, v11, {WS}, s{35 if n == 1 else 39} offen offset:{m*1024} sc1")
        elif n == 2 and NT == 3:
            pack(a, 56, acc2(n, 0), acc2(n, 1))
            a.e(f"buffer_store_dwordx4 v[56:59], v11, {WS}, s39 offen sc1")
    st(a, cfg, "us")
    for k in range(3): vm.add("U")
    a.e("s_branch L_stage3")
    for s in sides:
        a.label(f"L_side{R}_{s}")
        if s == 6:
            a.e("v_lshrrev_b32 v18, 7, v17"); a.e("v_lshlrev_b32 v18, 10, v18"); a.e("v_and_b32 v19, 63, v17")
            a.e("v_lshl_add_u32 v18, v19, 4, v18"); a.e("v_bfe_u32 v19, v17, 6, 1"); a.e("v_lshl_add_u32 v18, v19, 3, v18")
            a.e("s_mul_i32 s37, s38, 3072"); a.e(f"s_add_u32 s37, s37, {KVR}")
            for h in range(2):
                a.e(f"v_pk_add_f32 {vr(72+2*h,2)}, {vr(72+2*h,2)}, {vr(76+2*h,2)}")
                a.e(f"v_pk_add_f32 {vr(80+2*h,2)}, {vr(80+2*h,2)}, {vr(84+2*h,2)}")
            for h in range(2): a.e(f"v_pk_add_f32 {vr(72+2*h,2)}, {vr(72+2*h,2)}, {vr(80+2*h,2)}")
            for ctl in ("row_half_mirror", "quad_perm:[1,0,3,2]", "quad_perm:[2,3,0,1]"):
                a.e("s_nop 1")
                for k in range(4): a.e(f"v_add_f32_dpp v{72+k}, v{72+k}, v{72+k} {ctl} row_mask:0xf bank_mask:0xf")
            a.e("v_cvt_pk_bf16_f32 v72, v72, v73"); a.e("v_cvt_pk_bf16_f32 v73, v74, v75")
            a.e("s_mov_b32 s36, 0x01010101"); a.e("s_mov_b32 exec_lo, s36"); a.e("s_mov_b32 exec_hi, s36")
            a.e(f"buffer_store_dwordx2 v[72:73], v18, {WS}, s37 offen sc1")
            a.e("s_mov_b64 exec, -1")
        kvr = [f"buffer_load_dwordx4 {vr(100+4*et,4)}, v11, {WS}, s37 offen offset:{et*1024} sc1" for et in range(3)]
        if s == 5:
            a.e("s_cmp_lg_u32 s20, 6"); a.e(f"s_cbranch_scc1 L_loop2_{R}")
            a.e("s_lshl_b32 s30, s2, 13"); a.e("v_lshlrev_b32 v124, 3, v11")
            a.e(f"buffer_load_dword v125, v124, {sr(SWO,4)}, s30 offen")
        if s == 4:
            a.e("s_lshl_b32 s38, s101, 1")
            if R == 2: a.e("s_add_u32 s38, s38, 1")
            a.e("s_mul_i32 s37, s38, 3072"); a.e(f"s_add_u32 s37, s37, {KVR}")
            for l in kvr: a.e(l)
        if s == 3:
            L, X, C = lbl("kv"), lbl("kvx"), lbl("kvc")
            a.e("s_mov_b32 s36, 0"); a.e(f"s_branch {C}")
            a.label(L)
            for l in kvr: a.e(l)
            a.e("s_waitcnt vmcnt(0)")
            a.label(C)
            a.e("v_max3_u32 v19, v100, v101, v102")
            for k in range(103, 111, 2): a.e(f"v_max3_u32 v19, v19, v{k}, v{k+1}")
            a.e("v_max_u32 v19, v19, v111")
            a.e("v_cmp_eq_u32 vcc, -1, v19")
            a.e("s_add_u32 s36, s36, 1")
            a.e(f"s_cmp_ge_u32 s36, {BOUND}"); a.e(f"s_cbranch_scc1 {X}")
            a.e("s_cmp_lg_u64 vcc, 0"); a.e(f"s_cbranch_scc1 {L}")
            a.label(X)
            for m in range(4):
                for et in range(3):
                    a.e(f"v_mfma_f32_16x16x32_bf16 {vr(160+12*m+4*et,4)}, {vr(100+4*et,4)}, {vr(240+4*m,4)}, 0")
            a.e(f"s_mul_i32 s30, s21, {88*8192}"); a.e("s_lshl_b32 s31, s38, 13"); a.e("s_add_u32 s30, s30, s31")
            a.e("s_and_b32 s31, s20, 1"); a.e("s_lshl_b32 s31, s31, 12"); a.e("s_add_u32 s30, s30, s31")
            a.e(f"s_add_u32 s30, s30, {AU}")
            a.e("s_nop 7")
            for m in range(4): a.e(f"v_add_f32 v{168+12*m}, {f2u(1e-6):#x}, v{168+12*m}")
            for m in range(4): a.e(f"v_rcp_f32 v{168+12*m}, v{168+12*m}")
            for m in range(4): a.e(f"v_mov_b32 v{169+12*m}, v{168+12*m}")
            for m in range(4):
                b = 160 + 12 * m
                for h in range(4): a.e(f"v_pk_mul_f32 {vr(b+2*h,2)}, {vr(b+2*h,2)}, {vr(b+8,2)}")
                pack(a, 208 + 4*m, b, b + 4)
                a.e(f"buffer_store_dwordx4 {vr(208+4*m,4)}, v11, {WS}, s30 offen offset:{m*1024} sc1")
        if s == 2:
            a.e("s_cmp_lg_u32 s20, 4"); a.e(f"s_cbranch_scc1 L_loop2_{R}")
            flag_set(a, 1, 20)
        a.e(f"s_branch L_loop2_{R}")

def stage3(a, cfg, vm):
    LA = cfg.get("k3_la", 7); PRE = cfg.get("pre3", 3); MID = cfg.get("mid3", 2)
    cT = 16 - LA; pT = cT - cfg.get("pollgap", 2)
    def reads(P, T, sub):
        return [f"ds_read_b64_tr_b16 {vr(fw3(P,nt)+2*h,2)}, v{227+nt} offset:{(T % NS)*8192 + sub*4096 + h*2048}" for nt in range(4) for h in range(2)][::(2 if XR[2] else 1)]
    def mfmas(P, T, sub):
        first = sub == 0 and T in (0, 16)
        return [f"v_mfma_f32_16x16x32_bf16 {vr(acc3(T,nt),4)}, {vr(fw3(P,nt),4)}, {vr(fa3(T,sub),4)}, {'0' if first else vr(acc3(T,nt),4)}" for nt in range(4)]
    a.label("L_stage3")
    for T in range(PRE, PRE + MID):
        for g in loads3(vm, T, LA): emit(a, g)
    def upub():
        L = lbl("nou")
        a.e(f"s_cmp_lg_u32 s20, {cfg.get('uw', 0)}"); a.e(f"s_cbranch_scc1 {L}")
        flag_set(a, 2, 20)
        a.label(L)
    uT = cfg.get("uT", -1)
    a.e(f"s_waitcnt vmcnt({vm.need(['U'] if uT < 0 else [('W',0),('A',0,0),('A',0,1)])})")
    a.e("s_barrier")
    st(a, cfg, 6)
    if uT < 0: upub()
    a.e("s_add_u32 s41, s41, 32768")
    a("; hot")
    for r in reads(0, 0, 0): a.e(r)
    for T in range(PRE + MID, NS):
        for g in loads3(vm, T, LA): emit(a, g)
    a.e("s_waitcnt lgkmcnt(0)")
    interleave(a, mfmas(0, 0, 0), [(k // 2 - 1, [r]) for k, r in enumerate(reads(1, 0, 1))])
    for T in range(NT3):
        if T == NT3 - 1:
            a.e("s_waitcnt lgkmcnt(0)")
            for m in mfmas(1, T, 1): a.e(m)
            break
        if T in (cT, cT + 1, 16, 30): st(a, cfg, f"T{T}")
        if T == cT:
            L = lbl("noc")
            a.e("s_cmp_lg_u32 s20, 0"); a.e(f"s_cbranch_scc1 {L}")
            a.e(f"s_waitcnt vmcnt({len(vm.ops) - pidx})")
            flag_spin(a, "s41", 20, pre=True)
            a.label(L)
        a.e(f"s_waitcnt vmcnt({vm.need([('W',T+1),('A',T+1,0),('A',T+1,1)] + (['U'] if T == uT else []))}) lgkmcnt(0)")
        a.e("s_barrier")
        if T == uT: upub()
        if T == pT:
            L = lbl("nop")
            a.e("s_cmp_lg_u32 s20, 0"); a.e(f"s_cbranch_scc1 {L}")
            flag_issue(a, "s41", 20)
            a.label(L)
            pidx = len(vm.ops)
        fill = [(k // 2 - 1, [r]) for k, r in enumerate(reads(0, T + 1, 0))]
        if T + NS < NT3:
            g = wdma(vm, T + NS); i = g.index("@")
            fill.append((0, g[:i])); fill.append((1, g[i+1:]))
        if T + LA < NT3: fill.append((3, aload(vm, T + LA, 0)))
        interleave(a, mfmas(1, T, 1), fill)
        a.e("s_waitcnt lgkmcnt(0)")
        fill = [(k // 2 - 1, [r]) for k, r in enumerate(reads(1, T + 1, 1))]
        if T + LA < NT3: fill.append((2, aload(vm, T + LA, 1)))
        if T3 and T in T3[1:]:
            vm.add("T3")
            fill.append((3, [f"buffer_load_dword v233, v232, {sr(SWOUT,4)}, 0 offen", f"v_add_u32 v232, {1024*2048}, v232"]))
        if T == NT3 - LA:
            for cp in range(2):
                vm.add(("X", cp))
                fill.append((2, [f"buffer_load_dwordx4 {vr(16+4*cp,4)}, v231, {sr(SX,4)}, s26 offen offset:{cp*64}"]))
        interleave(a, mfmas(0, T + 1, 0), fill)
    a("; cold")
    st(a, cfg, 7)
    a.e(f"s_mov_b32 s30, {f2u(-LOG2E):#x}"); a.e(f"s_mov_b32 s31, {f2u(-LOG2E):#x}")
    a.e(f"s_mov_b32 s32, 1.0"); a.e(f"s_mov_b32 s33, 1.0")
    a.e("s_mov_b32 s34, 0xffff0000")
    a.e("s_waitcnt vmcnt(0)")
    for cp in range(2):
        a.e(f"v_permlane16_swap_b32 v{16+4*cp}, v{18+4*cp}"); a.e(f"v_permlane16_swap_b32 v{17+4*cp}, v{19+4*cp}")
    a.e("s_nop 4")
    H, S, T_, X = 144, 128, 24, 40
    for k in range(8): a.e(f"v_pk_mul_f32 {vr(T_+2*k,2)}, {vr(H+2*k,2)}, s[30:31]")
    for k in range(16): a.e(f"v_exp_f32 v{T_+k}, v{T_+k}")
    for k in range(8):
        a.e(f"v_lshlrev_b32 v{X+2*k}, 16, v{16+k}"); a.e(f"v_and_b32 v{X+2*k+1}, s34, v{16+k}")
    for k in range(8): a.e(f"v_pk_add_f32 {vr(T_+2*k,2)}, {vr(T_+2*k,2)}, s[32:33]")
    for k in range(16): a.e(f"v_rcp_f32 v{T_+k}, v{T_+k}")
    for k in range(8): a.e(f"v_pk_mul_f32 {vr(H+2*k,2)}, {vr(H+2*k,2)}, {vr(S+2*k,2)}")
    for k in range(8): a.e(f"v_pk_fma_f32 {vr(X+2*k,2)}, {vr(H+2*k,2)}, {vr(T_+2*k,2)}, {vr(X+2*k,2)}")
    for cp in range(2): pack(a, 16 + 4*cp, X + 8*cp, X + 8*cp + 4)
    a.e("s_nop 1")
    for cp in range(2):
        a.e(f"v_permlane16_swap_b32 v{16+4*cp}, v{18+4*cp}"); a.e(f"v_permlane16_swap_b32 v{17+4*cp}, v{19+4*cp}")
    a.e("s_nop 1")
    for cp in range(2):
        a.e(f"buffer_store_dwordx4 {vr(16+4*cp,4)}, v231, {sr(SOUT,4)}, s26 offen offset:{cp*64}")
    if cfg.get("tim"):
        a.e("s_memrealtime s[98:99]")
        a.e(f"{'s_memrealtime' if cfg.get('rt') else 's_memtime'} s[30:31]")
        a.e("s_waitcnt lgkmcnt(0)")
        a.e("s_lshl_b32 s100, s2, 3"); a.e("s_add_u32 s100, s100, s20"); a.e("s_lshl_b32 s100, s100, 6"); a.e(f"s_add_u32 s100, s100, {TIM}")
        a.e("v_mov_b32 v0, 0")
        for k, s in enumerate([80 + 2*k for k in range(8)] + [30, 96, 98]):
            a.e(f"v_mov_b32 v1, s{s}")
            a.e(f"buffer_store_dword v1, v0, {WS}, s100 offen offset:{4*k}")
            a.e("s_nop 1")

def srd_at(a, d, b, soff, nbytes):
    a.e(f"s_add_u32 s{d}, s{b}, {soff}"); a.e(f"s_addc_u32 s{d+1}, s{b+1}, 0"); a.e(f"s_and_b32 s{d+1}, s{d+1}, 0xffff")
    a.e(f"s_mov_b32 s{d+2}, {nbytes}"); a.e(f"s_mov_b32 s{d+3}, 0x00020000")

def fused(a, cfg):
    name = KN + "_kernel"
    kernel_begin(a, name)
    a.label("L_start")
    a.e("s_cmp_ge_u32 s2, 256")
    a.e("s_cbranch_scc1 L_end")
    if cfg.get("tim"): a.e("s_memrealtime s[96:97]")
    st(a, cfg, 0)
    a.e("s_load_dwordx16 s[24:39], s[0:1], 0")
    a.e("s_load_dwordx4 s[40:43], s[0:1], 64")
    a.e("s_load_dwordx2 s[44:45], s[0:1], 80")
    if cfg.get("cpf", 0) == 1:
        a.e(f"s_getpc_b64 s[{STCH}:{STCH+1}]")
        a.label("L_pc")
        a.e(f"s_and_b32 s{STCH+1}, s{STCH+1}, 0xffff")
        a.e(f"s_mov_b32 s{STCH+2}, L_end-L_pc"); a.e(f"s_mov_b32 s{STCH+3}, 0x00020000")
        a.e("v_lshlrev_b32 v127, 7, v0")
        a.e(f"buffer_load_dword v127, v127, {sr(STCH,4)}, 0 offen")
    a.e("v_lshrrev_b32 v1, 6, v0")
    a.e("v_and_b32 v12, 63, v0")
    a.e("v_readfirstlane_b32 s20, v1")
    a.e("v_and_b32 v13, 7, v12"); a.e("v_lshrrev_b32 v14, 3, v12")
    a.e("v_bfe_u32 v15, v12, 2, 1"); a.e("v_and_b32 v16, 3, v12"); a.e("v_lshl_add_u32 v15, v15, 3, v16")
    a.e("v_lshlrev_b32 v64, 11, v15"); a.e("v_lshl_add_u32 v64, v14, 4, v64")
    a.e("v_and_b32 v15, 3, v14"); a.e("v_lshlrev_b32 v65, 4, v13"); a.e("v_lshl_add_u32 v65, v15, 8, v65")
    a.e("v_lshrrev_b32 v15, 2, v14"); a.e("v_lshl_add_u32 v65, v15, 13, v65")
    a.e("v_lshlrev_b32 v63, 6, v13"); a.e(f"v_add_u32 v63, {SS}, v63"); a.e("v_lshl_add_u32 v62, v1, 3, v63")
    a.e("s_and_b32 s21, s2, 1"); a.e("s_lshl_b32 s21, s21, 3"); a.e("s_bfe_u32 s46, s2, 0x30003"); a.e("s_add_u32 s21, s21, s46")
    a.e("s_bfe_u32 s22, s2, 0x20001"); a.e("s_lshl_b32 s22, s22, 2"); a.e("s_lshr_b32 s46, s2, 6"); a.e("s_add_u32 s22, s22, s46")
    m3 = cfg.get("map3", 4)
    if m3 == 4:
        a.e("s_and_b32 s50, s2, 3"); a.e("s_lshl_b32 s50, s50, 2"); a.e("s_bfe_u32 s46, s2, 0x20003"); a.e("s_add_u32 s50, s50, s46")
        a.e("s_bfe_u32 s51, s2, 0x10002"); a.e("s_lshl_b32 s51, s51, 3"); a.e("s_lshr_b32 s46, s2, 5"); a.e("s_add_u32 s51, s51, s46")
    elif m3 == 42:
        a.e("s_and_b32 s50, s2, 1"); a.e("s_lshl_b32 s50, s50, 3"); a.e("s_bfe_u32 s46, s2, 0x10001"); a.e("s_lshl_b32 s46, s46, 2"); a.e("s_add_u32 s50, s50, s46")
        a.e("s_bfe_u32 s46, s2, 0x20003"); a.e("s_add_u32 s50, s50, s46")
        a.e("s_bfe_u32 s51, s2, 0x10002"); a.e("s_lshl_b32 s51, s51, 3"); a.e("s_lshr_b32 s46, s2, 5"); a.e("s_add_u32 s51, s51, s46")
    elif m3 == 2:
        a.e("s_and_b32 s50, s2, 7"); a.e("s_lshl_b32 s50, s50, 1"); a.e("s_bfe_u32 s46, s2, 0x10003"); a.e("s_add_u32 s50, s50, s46")
        a.e("s_lshr_b32 s51, s2, 4")
    elif m3 == 8:
        a.e("s_mov_b32 s50, s21"); a.e("s_mov_b32 s51, s22")
    elif m3 == 41:
        a.e("s_and_b32 s50, s2, 3"); a.e("s_lshl_b32 s50, s50, 2"); a.e("s_bfe_u32 s46, s2, 0x20003"); a.e("s_add_u32 s50, s50, s46")
        a.e("s_bfe_u32 s51, s2, 0x10002"); a.e("s_lshr_b32 s46, s2, 5"); a.e("s_lshl_b32 s46, s46, 1"); a.e("s_add_u32 s51, s51, s46")
    m1 = cfg.get("map1", 8)
    if m1 == 4:
        a.e("s_and_b32 s21, s2, 3"); a.e("s_lshl_b32 s21, s21, 2"); a.e("s_bfe_u32 s46, s2, 0x20003"); a.e("s_add_u32 s21, s21, s46")
        a.e("s_bfe_u32 s22, s2, 0x10002"); a.e("s_lshl_b32 s22, s22, 3"); a.e("s_lshr_b32 s46, s2, 5"); a.e("s_add_u32 s22, s22, s46")
    if m1 == 81:
        a.e("s_bfe_u32 s22, s2, 0x20001"); a.e("s_lshr_b32 s46, s2, 6"); a.e("s_lshl_b32 s46, s46, 2"); a.e("s_add_u32 s22, s22, s46")
    jm = cfg.get("jm", 2)
    if jm == 0: a.e("s_mov_b32 s100, s22"); a.e("s_mov_b32 s101, s22")
    elif jm == 2:
        tk = cfg.get("tk", [3, 7, 15, 11, 2, 6, 10, 14, 1, 5, 9, 13, 0, 4, 8, 12])
        tq = cfg.get("tq", [0, 4, 8, 12, 7, 3, 15, 11, 2, 6, 10, 14, 1, 5, 9, 13])
        assert sorted(tk) == list(range(16)) and sorted(tq) == list(range(16))
        a.e("s_lshl_b32 s49, s22, 2")
        for d, t in ((100, tk), (101, tq)):
            c = sum(v << (4 * k) for k, v in enumerate(t))
            a.e(f"s_mov_b32 s46, {c & 0xffffffff:#x}"); a.e(f"s_mov_b32 s47, {c >> 32:#x}")
            a.e("s_lshr_b64 s[46:47], s[46:47], s49"); a.e(f"s_and_b32 s{d}, s46, 15")
    else:
        a.e("s_and_b32 s46, s22, 3"); a.e("s_lshl_b32 s46, s46, 2"); a.e("s_lshr_b32 s47, s22, 2")
        a.e("s_sub_u32 s100, 3, s47"); a.e("s_add_u32 s47, s100, 1"); a.e("s_and_b32 s47, s47, 3")
        a.e("s_add_u32 s100, s100, s46"); a.e("s_add_u32 s101, s47, s46")
    a.e("s_and_b32 s23, s20, 1")
    a.e("v_lshlrev_b32 v11, 4, v12")
    a.e("s_lshl_b32 s46, s20, 11"); a.e("v_add_u32 v2, s46, v11")
    a.e("v_lshrrev_b32 v13, 2, v12"); a.e("s_lshl_b32 s46, s23, 4"); a.e("v_add_u32 v13, s46, v13")
    a.e("v_bfe_u32 v14, v12, 5, 1"); a.e("v_lshlrev_b32 v14, 1, v14"); a.e("v_and_b32 v15, 3, v12"); a.e("v_xor_b32 v14, v14, v15")
    a.e("v_lshrrev_b32 v16, 1, v14")
    a.e("v_lshlrev_b32 v14, 4, v14")
    a.e("v_mul_u32_u24 v3, 6144, v13"); a.e("v_add_u32 v3, v3, v14")
    a.e("v_mul_u32_u24 v4, 7168, v13"); a.e("v_add_u32 v4, v4, v14")
    a.e("s_lshl_b32 s46, s23, 12"); a.e("v_add_u32 v5, s46, v11"); a.e(f"v_add_u32 v6, {2*S1}, v5")
    a.e("v_lshrrev_b32 v13, 5, v12"); a.e("v_mul_u32_u24 v7, 13312, v13")
    a.e("v_bfe_u32 v13, v12, 4, 1"); a.e("v_mul_u32_u24 v14, 544, v13"); a.e("v_add_u32 v7, v7, v14")
    a.e("v_bfe_u32 v14, v12, 2, 2"); a.e("v_lshl_add_u32 v7, v14, 6, v7"); a.e("v_lshl_add_u32 v7, v15, 3, v7")
    a.e("v_add_u32 v7, 8192, v7"); a.e("v_xor_b32 v8, 32, v7")
    a.e(f"v_add_u32 v9, {2*S1}, v7"); a.e(f"v_add_u32 v10, {2*S1}, v8")
    a.e("s_and_b32 s46, s22, 1"); a.e("s_cmp_eq_u32 s46, 0"); a.e("s_cselect_b32 s47, 192, 0"); a.e("s_lshl_b32 s46, s46, 5")
    a.e("v_mul_u32_u24 v15, 3552, v16"); a.e("v_add_u32 v15, v15, v4"); a.e("v_add_u32 v15, s47, v15")
    a.e("v_add_u32 v4, s46, v4")
    a.e("s_lshl_b32 s48, s21, 2"); a.e("s_lshr_b32 s46, s22, 2"); a.e("s_add_u32 s48, s48, s46"); a.e("s_lshl_b32 s48, s48, 5")
    a.e("s_bfe_u32 s46, s22, 0x10001"); a.e("s_lshl_b32 s46, s46, 2"); a.e("s_add_u32 s48, s48, s46")
    a.e("s_and_b32 s46, s22, 1"); a.e("s_lshl_b32 s46, s46, 4"); a.e("s_add_u32 s48, s48, s46")
    a.e("s_lshl_b32 s48, s48, 11"); a.e("s_lshl_b32 s46, s20, 8"); a.e("s_add_u32 s48, s48, s46")
    a.e("s_waitcnt lgkmcnt(0)")
    st(a, cfg, "ka")
    srd(a, SX, 24, 4 * MB)
    for n in range(2):
        a.e(f"buffer_load_dwordx4 v[{16+4*n}:{19+4*n}], v64, {sr(SX,4)}, s48 offen offset:{128*n}")
    srd(a, SWS, 44, WS_SIZE); srd(a, SQKV, 26, 1024 * 6144); srd(a, SWIN, 32, 1024 * 7168)
    srd(a, SDBG, 42, 256); srd(a, SWSP, 34, 2048 * 4096); srd(a, SB, 36, 4096); srd(a, SWO, 28, 1024 * 2048)
    srd(a, SWOUT, 38, 1792 * 2048); srd(a, SOUT, 40, 4 * MB)
    a.e("s_lshr_b32 s46, s20, 1")
    for G in (1, 2, 3):
        a.e(f"s_cmp_eq_u32 s46, {G}"); a.e(f"s_cbranch_scc1 L_g{G}")
    vm = VM()
    for G in range(4):
        a.label(f"L_g{G}")
        D = len(dmas1(G, 0))
        a.e("s_lshl_b32 s24, s21, 18")
        a.e(f"s_lshl_b32 s25, s{101 if G == 0 else 100}, 7")
        if G & 1: a.e(f"s_add_u32 s25, s25, {2048 if G == 1 else 4096}")
        a.e("s_mul_i32 s26, s22, 224")
        a.e("s_lshl_b32 s27, s20, 11")
        a.e("s_mul_i32 s28, s23, 13312")
        TP = cfg.get("pf", 1)
        ln(a, cfg, G)
        if G < 2:
            addr2(a)
            if G == 0:
                L = lbl("nox")
                a.e("s_cmp_lg_u32 s20, 0"); a.e(f"s_cbranch_scc1 {L}")
                if NON:
                    a.e("s_lshl_b32 s30, s21, 11"); a.e(f"s_add_u32 s30, s30, {FLG + 3*32768}")
                    tag_spin(a, "s30", 66)
                else: poll_spin(a, "s30", 66)
                a.label(L)
            a.e("s_barrier")
            st(a, cfg, 1)
            n2 = cfg.get("ln_n2", 4)
            for s in range(4):
                for grp in dmas1(G, s, "A" if s < n2 else "AB"): emit(a, grp)
            c = [2 if s < n2 else 4 for s in range(4)]
            w0 = [sum(c[1:]), sum(c[2:]), c[3] + 4, 8, 8]
        else:
            nt = touch(a, cfg, G) if cfg.get('tpos', 1) == 1 else 0
            addr2(a)
            a.e("s_barrier")
            st(a, cfg, 1)
            for s in range(cfg.get("ln_n2", 4), 4):
                for grp in dmas1(G, s): emit(a, grp)
            if cfg.get('tpos', 1) == 2: nt = touch(a, cfg, G)
            w0 = [3*D + nt, 2*D + nt, 2*D + nt, 2*D + nt, 2*D]
        a.e(f"s_waitcnt vmcnt({w0[0]})")
        a.e("s_barrier")
        st(a, cfg, "d0")
        a("; hot")
        for r in reads1(G, 0, 0): a.e(r)
        tch = G >= 2 and TP
        ts = cfg.get("tstep", 2) if G == 3 else 0
        for t in range(4):
            step1(a, cfg, G, t, dmas1(G, t), w0[t + 1] + (NTCH(G) if tch and t > ts else 0), first=(t == 0), extra=TOUCH(G) if tch and t == ts else None)
        a.e("s_mov_b32 s29, 6")
        st(a, cfg, "c6")
        a.label(f"L_loop1_{G}")
        for t in range(4):
            step1(a, cfg, G, t, dmas1(G, t), 2*D + (NTCH(G) if tch and t != ts else 0),
                  extra=TOUCH(G) if tch and t == ts else None)
        a.e("s_sub_u32 s29, s29, 1")
        for k in range(6):
            if cfg.get("tim") and f"c{k}" in cfg.get("stamps", []):
                L = lbl("st"); a.e(f"s_cmp_lg_u32 s29, {k}"); a.e(f"s_cbranch_scc1 {L}"); st(a, cfg, f"c{k}"); a.label(L)
        a.e("s_cmp_lg_u32 s29, 0"); a.e(f"s_cbranch_scc1 L_loop1_{G}")
        for t in range(3): step1(a, cfg, G, t, [], [2*D, D, 0][t])
        DM = []
        if G < 2:
            a.e("s_lshl_b32 s24, s21, 19"); a.e("s_lshl_b32 s36, s20, 17"); a.e("s_add_u32 s24, s24, s36"); a.e("s_lshl_b32 s27, s20, 12")
            if ROT:
                a.e("s_mov_b32 s26, s24"); a.e("s_add_u32 s25, s24, 4096")
                a.e(f"s_mul_i32 s36, s21, {128*ROT}"); a.e("s_and_b32 s36, s36, 4095"); a.e("s_add_u32 s24, s24, s36")
            for s in range(4): DM += dmas2(0, s)
        step1(a, cfg, G, 3, DM, None, last=True, dpos=(0, 1.6) if False else (0, 2))
        a("; cold")
        st(a, cfg, 2)
        for k, c in ((42, GC1), (44, 1.0), (46, LOG2E), (48, 1e-6)):
            a.e(f"s_mov_b32 s{k}, {f2u(c):#x}"); a.e(f"s_mov_b32 s{k+1}, {f2u(c):#x}")
        a.e(f"v_mov_b32 v12, {f2u(GC0):#x}"); a.e(f"v_mov_b32 v13, {f2u(GC0):#x}")
        epi_addr(a, G)
        if G == 3 and cfg.get("t2", [3]):
            a.e("s_lshl_b32 s30, s21, 2"); a.e("s_and_b32 s31, s22, 3"); a.e("s_add_u32 s30, s30, s31"); a.e("s_lshl_b32 s30, s30, 1")
            a.e("s_add_u32 s30, s30, s23"); a.e("s_lshl_b32 s30, s30, 16")
            a.e("v_and_b32 v124, 15, v1"); a.e("v_lshlrev_b32 v124, 12, v124"); a.e("v_lshrrev_b32 v125, 4, v1"); a.e("v_lshl_add_u32 v124, v125, 10, v124")
            if cfg.get("t2h", 4) < 4:
                a.e(f"v_cmp_gt_u32 vcc, {16 * cfg['t2h']}, v1"); a.e("v_bfrev_b32 v125, 1"); a.e("v_cndmask_b32 v124, v125, v124, vcc")
            for c in cfg.get("t2", [3]): a.e(f"buffer_load_dword v125, v124, {sr(SWSP,4)}, s30 offen offset:{128*c}")
        if G == 3:
            a.e("v_and_b32 v127, 15, v1"); a.e("v_lshlrev_b32 v127, 4, v127")
            a.e(f"buffer_load_dword v126, v127, {DBG}, 0 offen sc1")
        epi_z2a(a, cfg, G)
        late = G in cfg.get("late", [])
        if not late: epi_attn(a, cfg, G)
        st(a, cfg, "at")
        epi_z2b(a, cfg, G)
        st(a, cfg, "zs")
        epi_z1(a, cfg, G, 0)
        st(a, cfg, "z1")
        a.e("s_waitcnt vmcnt(0)")
        if G == 3:
            L, X, C = lbl("ini"), lbl("inix"), lbl("inic")
            a.e("s_mov_b32 s36, 0"); a.e(f"s_branch {C}")
            a.label(L)
            a.e(f"buffer_load_dword v126, v127, {DBG}, 0 offen sc1")
            a.e("s_waitcnt vmcnt(0)")
            a.label(C)
            a.e("v_cmp_gt_u32 vcc, 16, v126")
            a.e("s_add_u32 s36, s36, 1")
            a.e(f"s_cmp_ge_u32 s36, {BOUND}"); a.e(f"s_cbranch_scc1 {X}")
            a.e("s_cmp_lg_u64 vcc, 0"); a.e(f"s_cbranch_scc1 {L}")
            a.label(X)
        a.e("s_barrier")
        st(a, cfg, "s3")
        if G == 0:
            L = lbl("noz")
            a.e("s_cmp_lg_u32 s20, 0"); a.e(f"s_cbranch_scc1 {L}")
            flag_set(a, 0, 20)
            a.e("s_lshl_b32 s30, s22, 11"); a.e(f"s_add_u32 s30, s30, {FLG}")
            flag_spin(a, "s30", 24)
            if NON:
                a.e("s_cmp_lg_u32 s2, 0"); a.e(f"s_cbranch_scc1 {L}")
                for k in range(4): a.e(f"v_mov_b32 v{28+k}, v{126 + (k & 1)}")
                a.e(f"s_mov_b32 s30, {FLG + 4*32768}"); a.e("s_mov_b64 exec, 0xff")
                a.e(f"buffer_store_dwordx4 v[28:31], v11, {WS}, s30 offen sc1")
                a.e("s_mov_b64 exec, -1")
            a.label(L)
        epi_z1(a, cfg, G, 1)
        if late: epi_attn(a, cfg, G)
        if G == 0: a.e("s_branch L_r0")
        else: stage2(a, cfg, G - 1, vm)
    stage3(a, cfg, vm)
    a.label("L_end")
    a.e("s_endpgm")
    return (name, "(256,1,1)", "(512,1,1)", LDS, dict(vgpr=256, sgpr=102, accum=256))

def gen(cfg):
    global BOUND, SLEEP, ASC, XR, ROT, T3, LT, NON
    NON = cfg.get('non', 1)
    LT = cfg.get('lt', 1)
    T3 = cfg.get('t3', [0, 2, 16])
    ROT = cfg.get('rot', 0)
    XR = cfg.get('xr', [0, 0, 0])
    ASC = '' if cfg.get('nosc1') else ' sc1'
    BOUND = cfg.get('bound', 6000); SLEEP = cfg.get('sleep', 0)
    Lbl.n = 0
    body = Asm()
    name, g, b, lds, d = fused(body, cfg)
    a = Asm()
    a(f"; @launch grid={g} block={b} lds={lds}")
    a('.amdgcn_target "amdgcn-amd-amdhsa--gfx950"')
    a.lines += [l.strip() if l.startswith("    ") else l for l in body.lines]
    kernel_desc(a, name, **d)
    t = a.text()
    if cfg.get("align", 1):
        from align import align
        t, nfix = align(t)
        if cfg.get("verbose"): print("align fixes (e64, nop, left):", nfix)
    return t
if __name__ == "__main__":
    import sys, json
    cfg = json.loads(sys.argv[2]) if len(sys.argv) > 2 else {}
    if "k1_d" in cfg: cfg["k1_d"] = {int(k): v for k, v in cfg["k1_d"].items()}
    open(sys.argv[1], "w").write(gen(cfg))
```

```python
from gen_common import *
from gen_k1 import gelu8, phi8, pack
import gen_k1
S1 = 34 * 1024
S2 = 30 * 1024
ZS = 4 * S2
SS = ZS + 28 * 1024
CNT = SS + 5 * 1024
LDS = 160 * 1024
BOUND = 6000
SWS, SDBG, SQKV, SWIN, SX, SWSP, SB, SWO, SWOUT, SOUT, STCH = 16, 4, 8, 12, 52, 56, 60, 64, 68, 72, 76
WS, DBG = sr(SWS, 4), sr(SDBG, 4)
ACC = 128
def st(a, cfg, name):
    names = cfg.get("stamps", [0, 1, 2, 3, 4, 5, 6, 7])
    if cfg.get("tim") and name in names:
        idx = names.index(name)
        a.e(f"{'s_memrealtime' if cfg.get('rt') else 's_memtime'} s[{80+2*idx}:{81+2*idx}]")
def emit(a, grp):
    for ins in grp: a.e("s_nop 0" if ins == "@" else ins)
class Lbl:
    n = 0
def lbl(p):
    Lbl.n += 1; return f"L_{p}_{Lbl.n}"
def atomic_inc(a, soff, t=12):
    a.e(f"v_mov_b32 v{t}, 1"); a.e(f"v_mov_b32 v{t+1}, 0")
    a.e("s_mov_b64 exec, 1")
    a.e(f"buffer_atomic_add v{t}, v{t+1}, {DBG}, {soff} offen sc1")
    a.e("s_mov_b64 exec, -1")
def poll_issue(a, soff, t):
    a.e(f"v_mov_b32 v{t+1}, 0")
    a.e("s_mov_b64 exec, 1")
    a.e(f"buffer_load_dword v{t}, v{t+1}, {DBG}, {soff} offen sc1")
    a.e("s_mov_b64 exec, -1")
def poll_spin(a, soff, t, pre=False):
    L, X, C = lbl("poll"), lbl("pollx"), lbl("pollc")
    a.e("s_mov_b32 s36, 0")
    if pre: a.e(f"s_branch {C}")
    a.label(L)
    if SLEEP: a.e(f"s_sleep {SLEEP}")
    poll_issue(a, soff, t)
    a.e("s_waitcnt vmcnt(0)")
    a.label(C)
    a.e(f"v_readfirstlane_b32 s37, v{t}")
    a.e("s_add_u32 s36, s36, 1")
    a.e("s_cmp_ge_u32 s37, 16")
    a.e(f"s_cbranch_scc1 {X}")
    a.e(f"s_cmp_lt_u32 s36, {BOUND}")
    a.e(f"s_cbranch_scc1 {L}")
    a.label(X)

FLG = 45 * MB
def tag_spin(a, soff, t):
    L, X = lbl("poll"), lbl("pollx")
    a.e("s_mov_b32 s36, 0"); a.e(f"v_lshlrev_b32 v{t+2}, 3, v11")
    a.e("s_mov_b64 exec, 0xffff")
    a.label(L)
    a.e(f"buffer_load_dwordx2 {vr(t,2)}, v{t+2}, {WS}, {soff} offen sc1")
    a.e("s_add_u32 s36, s36, 1")
    a.e("s_waitcnt vmcnt(0)")
    a.e(f"v_cmp_ne_u64 vcc, {vr(t,2)}, v[126:127]")
    a.e(f"s_cmp_ge_u32 s36, {BOUND}"); a.e(f"s_cbranch_scc1 {X}")
    a.e("s_cmp_lg_u64 vcc, 0"); a.e(f"s_cbranch_scc1 {L}")
    a.label(X)
    a.e("s_mov_b64 exec, -1")
def flag_set(a, which, t, tag=False):
    A, B = ("s22", "s21") if which == 0 else ("s21", "s22")
    a.e(f"s_lshl_b32 s30, {A}, 4"); a.e(f"s_add_u32 s30, s30, {B}"); a.e("s_lshl_b32 s30, s30, 7"); a.e(f"s_add_u32 s30, s30, {FLG + which*32768}")
    for k in range(4): a.e(f"v_mov_b32 v{t+k}, {'v%d' % (126 + (k & 1)) if tag else 0}")
    a.e("s_mov_b64 exec, 0xff")
    a.e(f"buffer_store_dwordx4 {vr(t,4)}, v11, {WS}, s30 offen sc1")
    a.e("s_mov_b64 exec, -1")
def flag_issue(a, soff, t):
    a.e(f"v_mov_b32 v{t}, 0"); a.e(f"v_lshlrev_b32 v{t+1}, 3, v11")
    a.e("s_mov_b64 exec, 0xffff")
    a.e(f"buffer_load_dword v{t}, v{t+1}, {WS}, {soff} offen sc1")
    a.e("s_mov_b64 exec, -1")
def flag_spin(a, soff, t, pre=False):
    L, X, C = lbl("poll"), lbl("pollx"), lbl("pollc")
    a.e("s_mov_b32 s36, 0")
    if pre: a.e(f"s_branch {C}")
    a.label(L)
    flag_issue(a, soff, t)
    a.e("s_waitcnt vmcnt(0)")
    a.label(C)
    a.e(f"v_cmp_eq_u32 vcc, -1, v{t}")
    a.e("s_add_u32 s36, s36, 1")
    a.e(f"s_cmp_ge_u32 s36, {BOUND}"); a.e(f"s_cbranch_scc1 {X}")
    a.e("s_cmp_lg_u64 vcc, 0"); a.e(f"s_cbranch_scc1 {L}")
    a.label(X)

def acc(n, m): return ACC + (n * 4 + m) * 4
def fa(P, m): return 16 + 16 * P + 4 * m
def fb(P, n): return 48 + 28 * P + 4 * n
def tiles_of(G):
    z1 = lambda p: ("z1", 6 + p // 2 if p < 6 else 9, p & 1 if p < 6 else 0, p)
    z2 = lambda p: ("z2", 10 + p // 2 if p < 6 else 9, p & 1 if p < 6 else 1, p)
    if G == 0: return [("k", 2, 0, 0), ("k", 2, 1, 1), ("v", 4, 0, 0), ("v", 4, 1, 1), z2(0), z2(1), z1(0)]
    if G == 1: return [("k", 3, 0, 0), ("k", 3, 1, 1), ("v", 5, 0, 0), ("v", 5, 1, 1), z2(2), z1(1), z1(2)]
    if G == 2: return [("q", 0, 0, 0), ("q", 0, 1, 1), z2(3), z2(4), z1(3), z1(4)]
    if G == 3: return [("q", 1, 0, 0), ("q", 1, 1, 1), z2(5), z2(6), z1(5), z1(6)]
def dmas1(G, slot, which="AB"):
    out = []
    base = slot * S1
    def B(c, imm, v, srd_, so):
        return [f"s_add_u32 m0, s28, {base + 8192 + c*1024 - imm}", "@",
                f"buffer_load_dwordx4 v{v}, {sr(srd_,4)}, s{so} offen offset:{imm} lds"]
    if G in (0, 1):
        if "A" in which:
            out.append([f"s_add_u32 m0, s27, {base}", "@", f"buffer_load_dwordx4 v2, {WS}, s24 offen{ASC} lds"])
            out.append([f"buffer_load_dwordx4 v2, {WS}, s24 offen offset:1024{ASC} lds", "s_add_u32 s24, s24, 8192"])
        if "B" in which:
            c0 = 0 if G == 0 else 2
            out.append(B(c0, 0, 3, SQKV, 25))
            out.append(B(c0 + 1, 64, 3, SQKV, 25) + [f"s_add_u32 s25, s25, {32*6144}"])
    if G == 2:
        for c in range(3): out.append(B(6 + c, 64 * c, 4, SWIN, 26))
        out.append(B(9, 0, 15, SWIN, 26) + [f"s_add_u32 s26, s26, {32*7168}"])
    if G == 3:
        out.append(B(4, 0, 3, SQKV, 25))
        out.append(B(5, 64, 3, SQKV, 25) + [f"s_add_u32 s25, s25, {32*6144}"])
        for c in range(3): out.append(B(10 + c, 3584 + 64 * c, 4, SWIN, 26))
        out[-1].append(f"s_add_u32 s26, s26, {32*7168}")
    return out
def reads1(G, P, slot):
    hi = slot >> 1
    base = (slot & 1) * S1
    out = [f"ds_read_b128 {vr(fa(P,m),4)}, v{5+hi} offset:{base + m*1024}" for m in range(4)]
    for n, (kind, blk, hf, zn) in enumerate(tiles_of(G)):
        for h in range(2):
            out.append(f"ds_read_b64_tr_b16 {vr(fb(P,n)+2*h,2)}, v{7+2*hi+hf} offset:{base + blk*1024 + h*256}")
    if XR[0] == 1: out = out[::2]
    if XR[0] == 2: out = out[4:]
    return out
def mfmas1(G, P, first=False):
    out = []
    for n, (kind, blk, hf, zn) in enumerate(tiles_of(G)):
        for m in range(4):
            A, Bq = vr(fa(P, m), 4), vr(fb(P, n), 4)
            if kind in ("q", "z1"): A, Bq = Bq, A
            out.append(f"v_mfma_f32_16x16x32_bf16 {vr(acc(n,m),4)}, {A}, {Bq}, {'0' if first else vr(acc(n,m),4)}")
    return out
def place(fill, DM, d0, ds, nM):
    used = set()
    for k, grp in enumerate(DM):
        p = min(d0 + k * ds, nM - 2)
        if "@" in grp:
            assert p not in used; used.add(p)
            i = grp.index("@")
            fill.append((p, grp[:i])); fill.append((p + 1, grp[i+1:]))
        else:
            fill.append((p + 1, grp))
def step1(a, cfg, G, t, DM, nwait, first=False, last=False, extra=None, dpos=None):
    P = t & 1
    a.e(f"s_waitcnt vmcnt({nwait}) lgkmcnt(0)" if nwait is not None else "s_waitcnt lgkmcnt(0)")
    a.e("s_barrier")
    M = mfmas1(G, P, first)
    fill = []
    if not last:
        r0 = cfg.get("k1_r0", 0); rs = cfg.get("k1_rs", 1.0)
        for k, r in enumerate(reads1(G, P ^ 1, (t + 1) & 3)): fill.append((int(r0 + k * rs), [r]))
    d0, ds = dpos or cfg.get("k1_d", {}).get(G, (2, 5))
    place(fill, DM, d0, ds, len(M))
    if cfg.get("dot"):
        nt = len(tiles_of(G))
        ops = [f"v_dot2_f32_bf16 v{240+n}, v{fb(P,n)+h}, s49, v{240+n}" for h in range(2) for n in range(nt)]
        ops += [f"v_dot2_f32_bf16 v{248+u}, v{fa(P,G)+h}, {'s49' if u == 0 else 'v%d' % (fa(P,G)+h)}, v{248+u}" for h in range(4) for u in range(2)]
        for k, o in enumerate(ops): fill.append((int(k * (len(M) - 1) / len(ops)), [o]))
    if extra: fill.append((len(M) - 1, extra))
    interleave(a, M, fill)

def TOUCH(G, single=False):
    t = [f"buffer_load_dword v125, v124, s[76:79], 0 offen", "v_add_u32 v124, s3, v124"]
    if G == 2 and LT: t += [f"buffer_load_dword v125, v126, s[76:79], 0 offen", "v_add_u32 v126, s3, v126"]
    if G == 3 and TB: t = t * 4
    if G == 2 and T2X and not single:
        t = t + t[0::2] + [f"v_xor_b32 v{r}, 0x80000000, v{r}" for r in ((124, 126) if LT else (124,))]
    return t
def TOUCHP(G, t):
    regs = (124, 126) if G == 2 and LT else (124,)
    out = [f"s_cmp_eq_u32 s41, {t}", "s_cselect_b32 s40, 0, 0x40000000"]
    out += [f"v_or_b32 v{240+k}, s40, v{r}" for k, r in enumerate(regs)]
    out += [f"buffer_load_dword v125, v{240+k}, s[76:79], 0 offen" for k, r in enumerate(regs)]
    if t == 3: out += [f"v_add_u32 v{r}, s3, v{r}" for r in regs]
    return out
def NTCH(G, single=False): return sum("buffer_load" in x for x in TOUCH(G, single))
def touch(a, cfg, G):
    if G < 2 or not cfg.get("pf", 1): return 0
    L, L2 = lbl("t"), lbl("t")
    a.e("s_cmp_lg_u32 s23, 0"); a.e(f"s_cbranch_scc1 {L}")
    for mw in range(2):
        if G == 2:
            sb, stride = ((SQKV, 6144), (SWIN, 7168))[mw]
            n = stride // 256
            srd_at(a, STCH, sb, 128 * stride, 896 * stride)
            a.e(f"s_mov_b32 s3, {128 * stride}")
            if LT:
                a.e("s_and_b32 s46, s21, 7"); a.e("s_lshl_b32 s46, s46, 4"); a.e("v_and_b32 v124, 15, v12"); a.e("v_add_u32 v124, s46, v124")
                a.e(f"v_mul_u32_u24 v124, {stride}, v124"); a.e("v_lshrrev_b32 v125, 4, v12")
                if mw == 0:
                    a.e("v_lshl_add_u32 v124, v125, 11, v124"); a.e("s_lshl_b32 s46, s101, 7"); a.e("s_lshl_b32 s47, s100, 7")
                    a.e("v_mov_b32 v125, s47"); a.e("v_mov_b32 v126, s46"); a.e("v_cmp_gt_u32 vcc, 16, v12"); a.e("v_cndmask_b32 v125, v125, v126, vcc")
                else:
                    a.e("v_lshlrev_b32 v125, 7, v125"); a.e("v_min_u32 v125, 220, v125"); a.e("s_mul_i32 s46, s22, 224"); a.e("v_add_u32 v125, s46, v125")
                a.e("v_add_u32 v124, v124, v125")
                a.e("v_cmp_gt_u32 vcc, 48, v12"); a.e("v_bfrev_b32 v126, 2"); a.e("v_cndmask_b32 v124, v126, v124, vcc")
                if mw: a.e("v_add_u32 v126, 3584, v124")
                if mw == 0: a.e(f"s_branch {L2}"); a.label(L)
                continue
            a.e(f"s_mul_i32 s46, s2, {n}"); a.e("v_add_u32 v124, s46, v12"); a.e("v_lshlrev_b32 v124, 7, v124")
            a.e(f"v_cmp_gt_u32 vcc, {n}, v12"); a.e("v_bfrev_b32 v125, 1"); a.e("v_cndmask_b32 v124, v125, v124, vcc")
        else:
            sb, n = ((SWSP, 32768), (SWOUT, 14336))[mw]
            a.e(f"s_mul_i32 s46, s2, {n}"); srd_at(a, STCH, sb, "s46", n)
            nl = cfg.get("tsp", [64, 64])[mw]
            a.e(f"s_mov_b32 s3, {128 * nl}"); a.e(f"v_min_u32 v124, {nl - 1}, v12"); a.e("v_lshlrev_b32 v124, 7, v124")
            dl = cfg.get("tdl", [3, 1])[mw]
            assert (7 - dl) * nl * 128 * (4 if TB else 1) >= n
            if dl: a.e(f"v_subrev_u32 v124, {128 * nl * dl * (4 if TB else 1)}, v124")
        if mw == 0: a.e(f"s_branch {L2}"); a.label(L)
    a.label(L2)
    if G == 3:
        if cfg.get("cpf", 0) >= 2:
            Lp = lbl("pc")
            a.e("s_getpc_b64 s[40:41]"); a.label(Lp)
            a.e(f"s_sub_u32 s40, s40, {Lp}-L_start"); a.e("s_subb_u32 s41, s41, 0"); a.e("s_and_b32 s41, s41, 0xffff")
            a.e("s_mov_b32 s42, L_end-L_start"); a.e("s_mov_b32 s43, 0x00020000")
            if cfg["cpf"] == 2:
                a.e("s_lshr_b32 s46, s2, 3"); a.e("s_lshl_b32 s46, s46, 1"); a.e("s_add_u32 s46, s46, s23"); a.e("s_mul_i32 s46, s46, 9")
                a.e("v_min_u32 v126, 8, v12"); a.e("v_add_u32 v126, s46, v126"); a.e("v_lshlrev_b32 v126, 7, v126")
                a.e("buffer_load_dword v125, v126, s[40:43], 0 offen")
                return 1
            a.e("s_lshl_b32 s46, s23, 6"); a.e("v_add_u32 v126, s46, v12"); a.e("v_lshlrev_b32 v126, 7, v126")
            for k in range(5):
                a.e("buffer_load_dword v125, v126, s[40:43], 0 offen")
                if k < 4: a.e("v_add_u32 v126, 16384, v126")
            return 5
        tl = cfg.get("tlb", 0)
        if tl:
            a.e(f"v_lshlrev_b32 v126, {tl}, v12"); a.e(f"s_lshl_b32 s46, s23, {tl + 6}"); a.e(f"s_add_u32 s46, s46, {Z2N}")
            a.e(f"buffer_load_dword v125, v126, {WS}, s46 offen sc1")
            a.e("v_lshlrev_b32 v126, 12, v12"); a.e("s_lshl_b32 s46, s50, 18")
            a.e(f"buffer_load_dword v125, v126, {sr(SOUT,4)}, s46 offen")
            return 2
        return 0
    for t in range(cfg.get("tn", 1)): emit(a, TOUCH(G, True))
    return cfg.get("tn", 1) * NTCH(G, True)

def ln(a, cfg, G):
    LO, SO, T = 64, 65, 66
    wh = "B" if G < 2 else "AB"
    n0, n1 = cfg.get("ln_n0", 2), cfg.get("ln_n1", 0)
    a.e("s_lshr_b32 s30, s22, 1"); a.e("s_and_b32 s31, s22, 1")
    nv = touch(a, cfg, G) if cfg.get("tpos", 1) == 0 else 0
    for s in range(n0):
        for grp in dmas1(G, s, wh): emit(a, grp); nv += 1
    if G == 0 and NON:
        a.e("v_mov_b32 v125, 0"); a.e(f"s_mov_b32 s33, {FLG + 4*32768}")
        a.e(f"buffer_load_dwordx2 v[126:127], v125, {WS}, s33 offen sc1")
        nv += 1
    if G == 0:
        a.e("s_lshl_b32 s33, s21, 4"); a.e("s_add_u32 s33, s33, s22"); a.e("s_lshl_b32 s33, s33, 10")
        a.e(f"s_add_u32 s33, s33, {STATS}")
        a.e("s_mul_i32 s34, s100, 6144"); a.e("s_mul_i32 s35, s21, 384"); a.e("s_add_u32 s34, s34, s35")
        a.e(f"s_add_u32 s34, s34, {KVR}")
        a.e("s_cmp_eq_u32 s23, 0")
        a.e("s_cselect_b32 s33, s33, s34")
        a.e("s_cselect_b32 s34, 63, 23")
        a.e(f"v_min_u32 v{T+2}, s34, v12"); a.e(f"v_lshlrev_b32 v{T+2}, 4, v{T+2}")
        for k in range(4): a.e(f"v_mov_b32 v{72+k}, -1")
        a.e(f"buffer_store_dwordx4 v[72:75], v{T+2}, {WS}, s33 offen sc1")
        nv += 1
    if G == 1:
        a.e("s_lshl_b32 s33, s22, 4"); a.e("s_add_u32 s33, s33, s21"); a.e("s_lshl_b32 s34, s21, 4"); a.e("s_add_u32 s34, s34, s22")
        a.e(f"v_mov_b32 v72, s33"); a.e("v_mov_b32 v73, s34"); a.e("v_cmp_gt_u32 vcc, 8, v12"); a.e("v_cndmask_b32 v72, v73, v72, vcc")
        a.e("v_min_u32 v73, 23, v12"); a.e("v_lshrrev_b32 v74, 3, v73"); a.e("v_lshl_add_u32 v72, v74, 8, v72")
        a.e("v_and_b32 v73, 7, v73"); a.e("v_lshlrev_b32 v73, 4, v73"); a.e(f"v_lshl_add_u32 v{T+2}, v72, 7, v73")
        a.e(f"s_mov_b32 s33, {FLG}")
        for k in range(4): a.e(f"v_mov_b32 v{72+k}, -1")
        a.e(f"buffer_store_dwordx4 v[72:75], v{T+2}, {WS}, s33 offen sc1")
        nv += 1
    a.e("s_lshl_b32 s32, s21, 18"); a.e("s_lshl_b32 s33, s30, 10"); a.e("s_add_u32 s32, s32, s33")
    a.e("s_lshl_b32 s33, s31, 7"); a.e("s_add_u32 s32, s32, s33")
    a.e("s_lshl_b32 s33, s20, 15"); a.e("s_add_u32 s32, s32, s33")
    a.e("s_add_u32 s33, s32, 16384")
    a.e("s_mov_b32 s36, 0xffff0000")
    st(a, cfg, "dma")
    a.e(f"s_waitcnt vmcnt({nv})")
    st(a, cfg, "x")
    if cfg.get("tpos", 1) == 3: touch(a, cfg, G)
    for k in range(8):
        a.e(f"v_lshlrev_b32 v{32+2*k}, 16, v{16+k}")
        a.e(f"v_and_b32 v{33+2*k}, s36, v{16+k}")
    x = lambda k: vr(32 + 2*k, 2)
    p0, p1 = vr(T, 2), vr(T+2, 2)
    a.e(f"v_pk_add_f32 {p0}, {x(0)}, {x(1)}"); a.e(f"v_pk_mul_f32 {p1}, {x(0)}, {x(0)}")
    for k in range(1, 8):
        if k > 1: a.e(f"v_pk_add_f32 {p0}, {p0}, {x(k)}")
        a.e(f"v_pk_fma_f32 {p1}, {x(k)}, {x(k)}, {p1}")
    a.e(f"v_add_f32 v{T}, v{T}, v{T+1}"); a.e(f"v_add_f32 v{T+1}, v{T+2}, v{T+3}")
    a.e("s_nop 1")
    for k in range(2): a.e(f"v_add_f32_dpp v{T+k}, v{T+k}, v{T+k} row_ror:8 row_mask:0xf bank_mask:0xf")
    for op in ("v_permlane16_swap_b32", "v_permlane32_swap_b32"):
        for k in range(2): a.e(f"v_mov_b32 v{T+2+k}, v{T+k}")
        a.e("s_nop 1")
        for k in range(2): a.e(f"{op} v{T+2+k}, v{T+k}")
        a.e("s_nop 1")
        a.e(f"v_pk_add_f32 {p0}, {p0}, {p1}")
    a.e("s_mov_b64 exec, 0xff")
    a.e(f"ds_write_b64 v62, {p0}")
    a.e("s_mov_b64 exec, -1")
    a.e("s_waitcnt lgkmcnt(0)")
    a.e("s_barrier")
    for k in range(4): a.e(f"ds_read_b128 {vr(16+4*k,4)}, v63 offset:{16*k}")
    a.e("s_waitcnt lgkmcnt(0)")
    for lv in (4, 2, 1):
        for k in range(lv): a.e(f"v_pk_add_f32 {vr(16+2*k,2)}, {vr(16+2*k,2)}, {vr(16+2*(k+lv),2)}")
    a.e(f"v_mul_f32 v16, {f2u(1.0/1024):#x}, v16"); a.e(f"v_mul_f32 v17, {f2u(1.0/1024):#x}, v17")
    a.e("v_fma_f32 v17, -v16, v16, v17"); a.e("v_max_f32 v17, 0, v17"); a.e(f"v_add_f32 v17, {f2u(1e-5):#x}, v17")
    a.e("v_rsq_f32 v18, v17")
    a.e("v_mul_f32 v16, -1.0, v16")
    a.e("v_mov_b32 v17, v16"); a.e("v_mov_b32 v19, v18")
    for k in range(8): a.e(f"v_pk_add_f32 {x(k)}, {x(k)}, v[16:17]")
    for k in range(8): a.e(f"v_pk_mul_f32 {x(k)}, {x(k)}, v[18:19]")
    for k in range(8): a.e(f"v_cvt_pk_bf16_f32 v{20+k}, v{32+2*k}, v{33+2*k}")
    for n in range(2):
        a.e(f"buffer_store_dwordx4 v[{20+4*n}:{23+4*n}], v{SO}, {WS}, s{32+n} offen sc1")
    nv = 0
    for s in range(n0, n0 + n1):
        for grp in dmas1(G, s, wh): emit(a, grp); nv += 1
    a.e("s_lshl_b32 s30, s21, 4")
    st(a, cfg, "ln")
    a.e(f"s_waitcnt vmcnt({nv})")
    a.e("s_barrier")
    st(a, cfg, "xn")
    if G == 0:
        L = lbl("noarr")
        a.e("s_cmp_lg_u32 s20, 0"); a.e(f"s_cbranch_scc1 {L}")
        if NON:
            a.e("v_add_u32 v126, 1, v126"); a.e("v_add_u32 v127, 1, v127")
            flag_set(a, 3, 72, tag=True)
            a.e("s_lshl_b32 s30, s21, 4")
        atomic_inc(a, "s30", T)
        a.label(L)
    for s in range(n0 + n1, cfg.get("ln_n2", 4)):
        for grp in dmas1(G, s, wh): emit(a, grp)

def addr2(a):
    a.e("v_lshrrev_b32 v13, 3, v12"); a.e("v_lshrrev_b32 v14, 5, v12"); a.e("v_and_b32 v123, 3, v13")
    a.e("v_lshl_add_u32 v14, v14, 3, v123"); a.e("v_lshlrev_b32 v14, 12, v14")
    a.e("v_lshrrev_b32 v13, 4, v12"); a.e("v_and_b32 v123, 7, v12"); a.e("v_xor_b32 v13, v13, v123")
    a.e("v_lshl_add_u32 v112, v13, 4, v14")
    a.e("v_xor_b32 v113, 64, v112")
    a.e(f"v_add_u32 v114, {16384-2048}, v112")
    a.e(f"v_add_u32 v115, {81920-3072}, v113")
    a.e(f"v_add_u32 v113, {65536-1024}, v113")
    a.e("v_and_b32 v13, 15, v12"); a.e("v_lshrrev_b32 v14, 1, v13"); a.e("v_lshrrev_b32 v123, 4, v12")
    a.e("v_xor_b32 v14, v14, v123"); a.e("v_lshlrev_b32 v14, 4, v14")
    a.e("v_lshl_add_u32 v116, v13, 7, v14")
    a.e("s_and_b32 s36, s20, 3"); a.e("s_lshl_b32 s36, s36, 12")
    a.e("v_add_u32 v116, s36, v116")
    a.e("v_xor_b32 v117, 64, v116")
    a.e(f"v_add_u32 v118, {2*S2}, v116"); a.e(f"v_add_u32 v119, {2*S2}, v117")
    a.e("s_lshr_b32 s36, s20, 2"); a.e("s_lshl_b32 s36, s36, 12"); a.e("s_add_u32 s36, s36, 16384")
    a.e("v_add_u32 v121, s36, v11"); a.e(f"v_add_u32 v122, {2*S2}, v121")
    a.e("v_bfe_u32 v13, v12, 2, 2"); a.e("v_and_b32 v14, 3, v12"); a.e("v_lshl_add_u32 v13, v13, 3, v14")
    a.e("v_lshlrev_b32 v120, 1, v13")

def epi_z2a(a, cfg, G):
    T = tiles_of(G)
    S, Q = 16, 32
    zt = [n for n, t in enumerate(T) if t[0] == "z2"]
    for zi, n in enumerate(zt):
        for p in range(2):
            r0, r1 = acc(n, 2*p), acc(n, 2*p+1)
            xs = [r0, r0+2, r1, r1+2]
            gelu8(a, xs, 104)
            for k in range(4):
                s, q = S + 8*p + 2*k, Q + 8*p + 2*k
                if zi == 0: a.e(f"v_pk_mul_f32 {vr(q,2)}, {vr(xs[k],2)}, {vr(xs[k],2)}")
                else:
                    a.e(f"v_pk_add_f32 {vr(s,2)}, {vr(xs[k]-16,2)}, {vr(xs[k],2)}")
                    a.e(f"v_pk_fma_f32 {vr(q,2)}, {vr(xs[k],2)}, {vr(xs[k],2)}, {vr(q,2)}")
    a.e("s_nop 1")
    src = (lambda k: S + k) if len(zt) > 1 else (lambda k: acc(zt[0], 0) + k)
    for k in range(16): a.e(f"v_add_f32_dpp v{S+k}, v{src(k)}, v{src(k)} row_ror:8 row_mask:0xf bank_mask:0x3")
    for k in range(16): a.e(f"v_add_f32_dpp v{S+k}, v{Q+k}, v{Q+k} row_ror:8 row_mask:0xf bank_mask:0xc")
    for k in range(8): a.e(f"v_add_f32_dpp v{S+k}, v{S+k}, v{S+k} row_shl:4 row_mask:0xf bank_mask:0x5")
    for k in range(8): a.e(f"v_add_f32_dpp v{S+k}, v{S+8+k}, v{S+8+k} row_shr:4 row_mask:0xf bank_mask:0xa")
    for k in range(8): a.e(f"v_add_f32_dpp v{S+k}, v{S+k}, v{S+k} quad_perm:[1,0,3,2] row_mask:0xf bank_mask:0xf")
    for k in range(8): a.e(f"v_add_f32_dpp v{S+k}, v{S+k}, v{S+k} quad_perm:[2,3,0,1] row_mask:0xf bank_mask:0xf")
    a.e("s_mov_b32 s30, 0x11111111"); a.e("s_mov_b32 s31, 0x11111111")
    a.e("s_mov_b64 exec, s[30:31]")
    a.e(f"ds_write_b128 v2, {vr(S,4)} offset:{G*1024}")
    a.e(f"ds_write_b128 v2, {vr(S+4,4)} offset:{G*1024+16}")
    a.e("s_mov_b64 exec, -1")
    st(a, cfg, "g2")
    a.e("s_waitcnt lgkmcnt(0)")
    a.e("s_barrier")
    st(a, cfg, "s1")
    if G == 2:
        for g in range(4): a.e(f"ds_read2st64_b32 {vr(16+2*g,2)}, v3 offset0:{4*g} offset1:{4*g+2}")
        a.e("s_lshl_b32 s34, s21, 14"); a.e(f"s_add_u32 s34, s34, {STATS}")
        a.e("s_lshl_b32 s35, s22, 10"); a.e("s_add_u32 s35, s35, s34")
        a.e("s_waitcnt lgkmcnt(0)")
        a.e("v_pk_add_f32 v[16:17], v[16:17], v[18:19]")
        a.e("v_pk_add_f32 v[20:21], v[20:21], v[22:23]")
        a.e("v_pk_add_f32 v[16:17], v[16:17], v[20:21]")
        a.e(f"buffer_store_dwordx2 v[16:17], v4, {WS}, s35 offen sc1")

def epi_addr(a, G):
    a.e("v_and_b32 v1, 63, v0")
    a.e("v_bfe_u32 v2, v1, 3, 1"); a.e("v_lshlrev_b32 v2, 9, v2")
    a.e("v_bfe_u32 v3, v1, 2, 1"); a.e("v_lshl_add_u32 v2, v3, 7, v2")
    a.e("v_lshrrev_b32 v3, 4, v1"); a.e("v_lshlrev_b32 v5, 5, v3")
    a.e("s_lshl_b32 s30, s23, 8"); a.e(f"s_add_u32 s30, s30, {SS}")
    a.e("v_add_u32 v5, s30, v5")
    a.e("v_add_u32 v2, v2, v5")
    if G == 2:
        a.e("s_lshl_b32 s30, s23, 6"); a.e("v_add_u32 v4, s30, v1")
        a.e("v_lshlrev_b32 v3, 2, v4"); a.e(f"v_add_u32 v3, {SS}, v3")
        a.e("v_lshlrev_b32 v4, 3, v4")
    a.e("s_lshl_b32 s30, s23, 11"); a.e(f"s_add_u32 s30, s30, {ZS}")
    a.e("v_add_u32 v6, s30, v11")

def epi_attn(a, cfg, G):
    if G in (0, 1):
        for k in range(4): a.e(f"v_mov_b32 v{48+k}, 0x3f803f80")
        for et in range(2):
            for p in range(2): pack(a, 32 + 8*et + 4*p, acc(2+et, 2*p), acc(2+et, 2*p+1))
        for dt in range(2):
            for p in range(2):
                r0, r1 = acc(dt, 2*p), acc(dt, 2*p+1)
                phi8(a, [r0, r0+2, r1, r1+2], 104)
                pack(a, 16 + 8*dt + 4*p, r0, r1)
        a.e("s_nop 1")
        for p in range(2):
            for et in range(3):
                for dt in range(2):
                    d = vr(56 + 8*et + 4*dt, 4)
                    Bq = vr(32 + 8*et + 4*p, 4) if et < 2 else vr(48, 4)
                    a.e(f"v_mfma_f32_16x16x32_bf16 {d}, {vr(16+8*dt+4*p,4)}, {Bq}, {'0' if p == 0 else d}")
        a.e(f"s_lshl_b32 s30, s100, 1")
        if G: a.e("s_add_u32 s30, s30, 1")
        a.e("s_lshl_b32 s30, s30, 5"); a.e("s_lshl_b32 s31, s21, 1"); a.e("s_add_u32 s30, s30, s31"); a.e("s_add_u32 s30, s30, s23")
        a.e("s_mul_i32 s30, s30, 6144"); a.e(f"s_add_u32 s30, s30, {KVP}"); a.e("s_add_u32 s31, s30, 4096")
        a.e("s_nop 7")
        for k in range(6):
            a.e(f"buffer_store_dwordx4 {vr(56+4*k,4)}, v11, {WS}, s{30 + (k>>2)} offen offset:{(k&3)*1024} sc1")
    else:
        for m in range(4):
            r0, r1 = acc(0, m), acc(1, m)
            phi8(a, [r0, r0+2, r1, r1+2], 104)
            pack(a, 240 + 4*m, r0, r1)

def epi_z2b(a, cfg, G):
    T = tiles_of(G)
    if G == 2:
        for k in range(1, 4): a.e(f"s_add_u32 s{37+k}, s34, {4096*k}")
        a.e("s_mov_b32 s36, 0")
        L, X = lbl("sp"), lbl("spx")
        a.label(L)
        for k in range(16):
            a.e(f"buffer_load_dwordx2 {vr(32+2*k,2)}, v4, {WS}, s{34 if k < 4 else 37 + (k>>2)} offen offset:{(k&3)*1024} sc1")
        a.e("s_add_u32 s36, s36, 1")
        for lv in (8, 4, 2, 1):
            if lv == 8: a.e("s_waitcnt vmcnt(0)")
            for k in range(lv): a.e(f"v_pk_add_f32 {vr(32+2*k,2)}, {vr(32+2*k,2)}, {vr(32+2*(k+lv),2)}")
        a.e("v_cmp_u_f32 vcc, v32, v33")
        a.e(f"s_cmp_ge_u32 s36, {BOUND}"); a.e(f"s_cbranch_scc1 {X}")
        a.e("s_cmp_lg_u64 vcc, 0"); a.e(f"s_cbranch_scc1 {L}")
        a.label(X)
        a.e(f"v_mul_f32 v32, {f2u(1.0/1792):#x}, v32")
        a.e(f"v_mul_f32 v33, {f2u(1.0/1792):#x}, v33")
        a.e("v_fma_f32 v33, -v32, v32, v33")
        a.e("v_max_f32 v33, 0, v33")
        a.e(f"v_add_f32 v33, {f2u(1e-5):#x}, v33")
        a.e("v_rsq_f32 v33, v33")
        a.e("s_nop 0")
        a.e("v_mul_f32_e64 v32, -v32, v33")
        a.e("ds_write2st64_b32 v3, v33, v32 offset0:16 offset1:18")
        a.e("s_waitcnt lgkmcnt(0)")
    a.e("s_barrier")
    st(a, cfg, 3)
    RS, NM = 16, 32
    for p in range(2):
        for q in range(2):
            a.e(f"ds_read_b128 {vr(RS+8*p+4*q,4)}, v5 offset:{4096 + p*128 + q*16}")
            a.e(f"ds_read_b128 {vr(NM+8*p+4*q,4)}, v5 offset:{4608 + p*128 + q*16}")
    a.e("s_lshl_b32 s32, s22, 6"); a.e("s_lshl_b32 s33, s21, 2"); a.e("s_add_u32 s32, s32, s33")
    a.e("s_lshl_b32 s33, s23, 1"); a.e("s_add_u32 s32, s32, s33")
    a.e("s_mul_i32 s32, s32, 7168"); a.e(f"s_add_u32 s32, s32, {Z2N}")
    a.e("s_waitcnt lgkmcnt(0)")
    k = 0
    for n, (kind, blk, hf, pos) in enumerate(T):
        if kind != "z2": continue
        for p in range(2):
            r0, r1 = acc(n, 2*p), acc(n, 2*p+1)
            xs = [r0, r0+2, r1, r1+2]
            for u in range(4): a.e(f"v_pk_fma_f32 {vr(xs[u],2)}, {vr(xs[u],2)}, {vr(RS+8*p+2*u,2)}, {vr(NM+8*p+2*u,2)}")
            d = 80 + 4 * (k & 3); k += 1
            a.e(f"s_add_u32 s33, s32, {p*7168 + pos*1024}")
            pack(a, d, r0, r1)
            a.e(f"buffer_store_dwordx4 {vr(d,4)}, v11, {WS}, s33 offen sc1")

def epi_z1(a, cfg, G, which):
    zt = [(n, t[3]) for n, t in enumerate(tiles_of(G)) if t[0] == "z1"]
    for n, pos in zt[which:which+1]:
        for p in range(2):
            r0, r1 = acc(n, 2*p), acc(n, 2*p+1)
            gelu8(a, [r0, r0+2, r1, r1+2], 104)
            pack(a, 96 + 4*p, r0, r1)
            a.e(f"ds_write_b128 v6, {vr(96+4*p,4)} offset:{pos*4096 + p*1024}")

def acc2(n, m): return ACC + (n * 2 + m) * 4
def fw(P, m): return 24 + 8 * P + 4 * m
def fz(P, n): return 40 + 16 * P + 4 * n
def ntiles(R): return 4 if R == 0 else 3
def dmas2(R, slot):
    base = slot * S2
    out = []
    D = 3 if R == 2 else 4
    for n in range(D):
        if R == 0: g = [f"buffer_load_dwordx4 v{112+n}, {sr(SWSP,4)}, s24 offen offset:{n*1024} lds"]
        else: g = [f"buffer_load_dwordx4 v11, {WS}, s24 offen offset:{n*1024}{ASC} lds"]
        if n == 0: g = [f"s_add_u32 m0, s27, {base}", "@"] + g
        if n == D - 1:
            g.append(f"s_add_u32 s24, s24, {128 if R == 0 else 14336}")
            if ROT: g += ["s_cmp_eq_u32 s24, s25", "s_cselect_b32 s24, s26, s24"]
        out.append(g)
    return out
def reads2(R, P, slot, sub):
    hi = slot >> 1
    base = (slot & 1) * S2
    out = [f"ds_read_b128 {vr(fw(P,m),4)}, v{116+2*hi+sub} offset:{base + m*2048}" for m in range(2)]
    out += [f"ds_read_b128 {vr(fz(P,n),4)}, v{121+hi} offset:{base + sub*7168 + n*1024}" for n in range(ntiles(R))]
    if XR[1] == 1: out = out[::2]
    if XR[1] == 2: out = out[2:]
    return out
def mfmas2(R, P, first=False):
    return [f"v_mfma_f32_16x16x32_bf16 {vr(acc2(n,m),4)}, {vr(fz(P,n),4)}, {vr(fw(P,m),4)}, {'0' if first else vr(acc2(n,m),4)}"
            for n in range(ntiles(R)) for m in range(2)]
def body2(a, cfg, R, slot, DM, nwait, last=False, prebar=None, dpos=None):
    a.e(f"s_waitcnt vmcnt({nwait}) lgkmcnt(0)" if nwait is not None else "s_waitcnt lgkmcnt(0)")
    if prebar: prebar()
    if not last: a.e("s_barrier")
    d0, ds = dpos or (cfg.get("k2_d0", 0), cfg.get("k2_ds", 1))
    M = mfmas2(R, 1)
    fill = []
    if not last:
        for k, r in enumerate(reads2(R, 0, (slot + 1) & 3, 0)): fill.append((k - 1, [r]))
    h = len(DM) if last or (cfg.get("k2_all") and not dpos) else (len(DM) + 1) // 2
    place(fill, DM[:h], d0, ds, len(M))
    interleave(a, M, fill)
    if last: return
    a.e("s_waitcnt lgkmcnt(0)")
    M = mfmas2(R, 0)
    fill = [(k - 1, [r]) for k, r in enumerate(reads2(R, 1, (slot + 1) & 3, 1))]
    place(fill, DM[h:], d0, ds, len(M))
    interleave(a, M, fill)

NS, NT3 = 8, 44
def fa3(T, sub): return 160 + 8 * (T % NS) + 4 * sub
def fw3(P, nt): return 88 + 16 * P + 4 * nt
def acc3(T, nt): return (128 if T < 16 else 144) + 4 * nt
class VM:
    def __init__(self): self.ops = []
    def add(self, tag): self.ops.append(tag)
    def need(self, tags):
        assert all(t in self.ops for t in tags), tags
        return min(63, len(self.ops) - 1 - max(i for i, t in enumerate(self.ops) if t in tags))
def aload(vm, T, sub):
    kp = 2 * T + sub - 32
    r = fa3(T, sub)
    vm.add(("A", T, sub))
    if kp >= 0 and kp % 7 == 3:
        vm.add(("A", T, sub))
        return [f"buffer_load_dwordx2 {vr(r,2)}, v225, {WS}, s24 offen{ASC}",
                f"buffer_load_dwordx2 {vr(r+2,2)}, v225, {WS}, s24 offen offset:1024{ASC}", "s_add_u32 s24, s24, 8192"]
    return [f"buffer_load_dwordx4 {vr(r,4)}, v224, {WS}, s24 offen{ASC}", "s_add_u32 s24, s24, 8192"]
def wdma(vm, T):
    vm.add(("W", T))
    return [f"s_add_u32 m0, s27, {(T % NS) * 8192}", "@",
            f"buffer_load_dwordx4 v226, {sr(SWO if T < 16 else SWOUT, 4)}, s25 offen lds",
            "s_mov_b32 s25, s40" if T == 15 else f"s_add_u32 s25, s25, {64*2048}"]
def loads3(vm, T, LA):
    out = [wdma(vm, T)]
    if T < LA: out += [aload(vm, T, 0), aload(vm, T, 1)]
    return out
def addr3(a):
    a.e("v_and_b32 v12, 63, v0")
    a.e("s_lshl_b32 s27, s20, 10")
    a.e("v_add_u32 v224, s27, v11")
    a.e("s_lshr_b32 s38, s20, 1"); a.e("s_lshl_b32 s39, s38, 11"); a.e("s_and_b32 s30, s20, 1"); a.e("s_lshl_b32 s31, s30, 3")
    a.e("s_add_u32 s39, s39, s31"); a.e("v_add_u32 v225, s39, v11")
    a.e("v_lshrrev_b32 v13, 3, v12"); a.e("v_bfe_u32 v14, v12, 4, 2"); a.e("v_lshlrev_b32 v14, 1, v14")
    a.e("v_and_b32 v15, 7, v12"); a.e("v_xor_b32 v14, v14, v15"); a.e("v_lshlrev_b32 v14, 4, v14")
    a.e("v_lshl_add_u32 v226, v13, 11, v14")
    a.e("s_lshl_b32 s39, s20, 14"); a.e("v_add_u32 v226, s39, v226")
    a.e("v_bfe_u32 v13, v12, 2, 3"); a.e("v_lshrrev_b32 v14, 5, v12"); a.e("v_lshlrev_b32 v14, 10, v14")
    a.e("v_lshl_add_u32 v14, v13, 7, v14"); a.e("v_lshrrev_b32 v13, 1, v13"); a.e("v_lshl_add_u32 v14, v13, 5, v14")
    a.e("v_and_b32 v15, 3, v12")
    a.e("v_lshl_add_u32 v227, v15, 3, v14")
    a.e("v_xor_b32 v228, 32, v227"); a.e("v_xor_b32 v229, 64, v227"); a.e("v_xor_b32 v230, 96, v227")
    a.e("v_bfe_u32 v13, v12, 2, 2"); a.e("v_lshl_add_u32 v13, v13, 3, v15"); a.e("v_lshlrev_b32 v231, 11, v13")
    a.e("v_bfe_u32 v13, v12, 4, 1"); a.e("v_lshl_add_u32 v231, v13, 5, v231")
    a.e("v_lshrrev_b32 v13, 5, v12"); a.e("v_lshl_add_u32 v231, v13, 4, v231")
    a.e("s_lshl_b32 s26, s50, 7"); a.e("s_lshl_b32 s38, s38, 5"); a.e("s_add_u32 s26, s26, s38")
    a.e("s_lshl_b32 s30, s30, 2"); a.e("s_add_u32 s26, s26, s30"); a.e("s_lshl_b32 s26, s26, 11")
    a.e("s_lshl_b32 s40, s51, 7"); a.e("s_add_u32 s26, s26, s40")
    a.e(f"s_mul_i32 s24, s50, {88*8192}"); a.e(f"s_add_u32 s24, s24, {AU}")
    a.e("s_mov_b32 s25, s40")
    a.e("s_lshl_b32 s41, s50, 11"); a.e(f"s_add_u32 s41, s41, {FLG + 32768}")
    if T3:
        a.e("s_lshr_b32 s30, s2, 3"); a.e("s_lshl_b32 s30, s30, 3"); a.e("s_add_u32 s30, s30, s20"); a.e("s_lshl_b32 s30, s30, 13")
        a.e("s_and_b32 s31, s51, 8"); a.e("s_add_u32 s31, s31, 3"); a.e("s_lshl_b32 s31, s31, 7"); a.e("s_add_u32 s30, s30, s31")
        a.e("v_lshlrev_b32 v232, 11, v12"); a.e("v_add_u32 v232, s30, v232")
        a.e("v_cmp_gt_u32 vcc, 4, v12"); a.e("v_bfrev_b32 v233, 1"); a.e("v_cndmask_b32 v232, v233, v232, vcc")

def stage2(a, cfg, R, vm):
    NT = ntiles(R); D = len(dmas2(R, 0)); nw = 0 if R == 0 else 1
    LA = cfg.get("k3_la", 7); PRE = cfg.get("pre3", 3)
    a.label(f"L_r{R}")
    a.e("s_and_b32 s23, s20, 3")
    if R < 2:
        a.e("s_cmp_ge_u32 s20, 3"); a.e("s_cselect_b32 s36, 1, 0")
        a.e("s_mul_i32 s37, s36, 3"); a.e("s_sub_u32 s37, s20, s37")
        a.e("s_lshl_b32 s38, s100, 1"); a.e("s_add_u32 s38, s38, s36")
        a.e("s_mul_i32 s39, s21, 24"); a.e("s_lshl_b32 s37, s37, 3"); a.e("s_add_u32 s39, s39, s37")
        a.e("v_lshrrev_b32 v17, 3, v1"); a.e("v_add_u32 v17, s39, v17")
        a.e("v_and_b32 v18, 7, v1"); a.e("v_mul_u32_u24 v18, 24576, v18"); a.e("v_lshl_add_u32 v18, v17, 4, v18")
        a.e(f"s_mul_i32 s39, s38, {32*6144}"); a.e(f"s_add_u32 s39, s39, {KVP}")
    if R:
        a.e(f"s_mul_i32 s24, s22, {64*7168}"); a.e(f"s_add_u32 s24, s24, {Z2N}")
        a.e("s_and_b32 s27, s20, 1"); a.e(f"s_mul_i32 s27, s27, {4096 if R == 1 else 3072}")
        if R == 2: a.e("s_add_u32 s27, s27, 8192")
        a.e("s_add_u32 s24, s24, s27"); a.e("s_add_u32 s27, s27, 16384")
        if ROT:
            a.e("s_mov_b32 s26, s24"); a.e(f"s_add_u32 s25, s24, {64*7168}")
            a.e(f"s_mul_i32 s36, s21, {ROT}"); a.e("s_and_b32 s36, s36, 31"); a.e("s_mul_i32 s36, s36, 14336"); a.e("s_add_u32 s24, s24, s36")
    P2 = cfg.get("p2", 0) if R == 2 else 0
    def ev2(mask):
        out = [f"v_or_b32 v20, {mask}, v22", f"v_or_b32 v21, {mask}, v23"]
        if P2 & 1: out.append(f"buffer_load_dword v125, v20, {sr(SWSP,4)}, 0 offen")
        if P2 & 2: out.append(f"buffer_load_dword v125, v21, {WS}, s40 offen{ASC}")
        return out + ["v_add_u32 v22, 512, v22", "v_add_u32 v23, 57344, v23"]
    NE = bin(P2).count("1")
    if P2:
        a.e("s_lshl_b32 s30, s21, 2"); a.e("s_and_b32 s31, s22, 3"); a.e("s_add_u32 s30, s30, s31"); a.e("s_lshl_b32 s30, s30, 1")
        a.e("s_and_b32 s31, s20, 1"); a.e("s_add_u32 s30, s30, s31"); a.e("s_lshl_b32 s30, s30, 16"); a.e("s_add_u32 s30, s30, 512")
        a.e("v_and_b32 v22, 15, v1"); a.e("v_lshlrev_b32 v22, 12, v22"); a.e("v_lshrrev_b32 v23, 4, v1"); a.e("v_lshl_add_u32 v22, v23, 7, v22")
        a.e("v_add_u32 v22, s30, v22")
        a.e("s_and_b32 s30, s21, 7"); a.e("s_lshl_b32 s30, s30, 1"); a.e("s_add_u32 s30, s30, s31"); a.e("s_mul_i32 s30, s30, 3584")
        a.e("s_add_u32 s30, s30, 57344")
        a.e("v_min_u32 v23, 27, v1"); a.e("v_lshlrev_b32 v23, 7, v23"); a.e("v_add_u32 v23, s30, v23")
        a.e(f"s_mul_i32 s40, s22, {64*7168}"); a.e(f"s_add_u32 s40, s40, {Z2N}")
    a.e("s_waitcnt lgkmcnt(0)")
    a.e("s_barrier")
    st(a, cfg, 4)
    if R:
        for s in range(4):
            for grp in dmas2(R, s): emit(a, grp)
    if R < 2:
        for u in range(4):
            a.e(f"buffer_load_dwordx4 {vr(72+4*u,4)}, v18, {WS}, s39 offen sc1")
            if u < 3: a.e("s_add_u32 s39, s39, 6144")
    if P2: emit(a, ev2("0"))
    if R: a.e(f"s_waitcnt vmcnt({3*D + (4 if R == 1 else 0) + NE})")
    a.e("s_barrier")
    st(a, cfg, "d2")
    a("; hot")
    for r in reads2(R, 0, 0, 0): a.e(r)
    a.e("s_waitcnt lgkmcnt(0)")
    interleave(a, mfmas2(R, 0, True), [(k - 1, [r]) for k, r in enumerate(reads2(R, 1, 0, 1))])
    a.e("s_mov_b32 s29, 7")
    a.label(f"L_loop2_{R}")
    for t in range(4):
        DM = dmas2(R, t)
        if P2 and t == 0: DM[-1] = DM[-1] + ["s_cmp_eq_u32 s29, 1", "s_cselect_b32 s31, 0x40000000, 0"] + ev2("s31")
        body2(a, cfg, R, t, DM, 2*D + (NE if t else 0))
    a.e("s_sub_u32 s29, s29, 1")
    sides = {0: [6], 1: [6, 4, 3, 2], 2: [4, 3] if cfg.get("wos", 1) else [5, 4, 3]}[R]
    for s in sides:
        a.e(f"s_cmp_eq_u32 s29, {s}"); a.e(f"s_cbranch_scc1 L_side{R}_{s}")
    a.e("s_cmp_lg_u32 s29, 0")
    a.e(f"s_cbranch_scc1 L_loop2_{R}")
    a("; cold")
    st(a, cfg, "l2")
    addr3(a)
    E = 2
    if R == 0: flag_issue(a, "s41", 20); E = 3
    a.e("s_lshl_b32 s30, s21, 8"); a.e("s_lshl_b32 s31, s23, 6"); a.e("s_add_u32 s30, s30, s31")
    a.e(f"buffer_load_ushort v88, v120, {sr(SB,4)}, s30 offen")
    a.e(f"buffer_load_ushort v90, v120, {sr(SB,4)}, s30 offen offset:8")
    a.e(f"s_lshl_b32 s30, s23, 10"); a.e(f"s_add_u32 s30, s30, {ZS + nw*16384}"); a.e("v_add_u32 v16, s30, v11")
    a("; hot")
    tt = 1 if T3 and T3[0] >= 0 else 0
    if tt: a.e(f"buffer_load_dword v233, v232, {sr(SWO,4)}, 0 offen")
    body2(a, cfg, R, 0, [], 2*D + E + tt)
    body2(a, cfg, R, 1, [], D + E + tt)
    vm.ops = ["T3"] * tt
    L3 = []
    for T in range(PRE): L3 += loads3(vm, T, LA)
    n2 = (len(L3) * 2 + 2) // 3
    body2(a, cfg, R, 2, L3[:n2], 2 + tt, prebar=(lambda: flag_spin(a, "s41", 20, pre=True)) if R == 0 else None, dpos=(0, 2))
    body2(a, cfg, R, 3, L3[n2:], None, last=True, dpos=(0, 2))
    a("; cold")
    st(a, cfg, 5)
    for n in range(NT): a.e(f"ds_read_b128 {vr(72+4*n,4)}, v16 offset:{n*4096}")
    a.e("s_mov_b32 s33, 0xffff0000")
    a.e(f"s_mul_i32 s30, s21, {88*8192}"); a.e("s_lshl_b32 s31, s23, 11"); a.e("s_add_u32 s30, s30, s31")
    a.e(f"s_add_u32 s30, s30, {AU + 32*8192}")
    a.e("s_lshr_b32 s32, s22, 1"); a.e(f"s_mul_i32 s32, s32, {7*8192}"); a.e("s_add_u32 s30, s30, s32")
    a.e("s_and_b32 s34, s22, 1")
    a.e("s_lshl_b32 s35, s34, 15"); a.e("s_add_u32 s35, s35, s30")
    if nw == 0: a.e("s_add_u32 s39, s35, 8192")
    else:
        a.e("s_add_u32 s35, s35, 16384")
        a.e("s_lshl_b32 s39, s34, 10"); a.e("s_add_u32 s39, s39, s30"); a.e(f"s_add_u32 s39, s39, {3*8192}")
    a.e(f"s_waitcnt vmcnt({len(vm.ops)})")
    a.e("v_lshlrev_b32 v88, 16, v88"); a.e("v_lshlrev_b32 v90, 16, v90")
    a.e("v_mov_b32 v89, v88"); a.e("v_mov_b32 v91, v90")
    a.e("s_waitcnt lgkmcnt(0)")
    for n in range(NT):
        for m in range(2):
            z = 72 + 4*n + 2*m
            t = 92 + 4 * m
            a.e(f"v_lshlrev_b32 v{t}, 16, v{z}"); a.e(f"v_and_b32 v{t+1}, s33, v{z}")
            a.e(f"v_lshlrev_b32 v{t+2}, 16, v{z+1}"); a.e(f"v_and_b32 v{t+3}, s33, v{z+1}")
            r = acc2(n, m)
            for h in range(2): a.e(f"v_pk_add_f32 {vr(r+2*h,2)}, {vr(r+2*h,2)}, {vr(88+2*m,2)}")
            for h in range(2): a.e(f"v_pk_mul_f32 {vr(r+2*h,2)}, {vr(r+2*h,2)}, {vr(t+2*h,2)}")
        if n & 1:
            for m in range(2):
                d = 48 + 8 * (n >> 1) + 4 * m
                pack(a, d, acc2(n-1, m), acc2(n, m))
                a.e(f"buffer_store_dwordx4 {vr(d,4)}, v11, {WS}, s{35 if n == 1 else 39} offen offset:{m*1024} sc1")
        elif n == 2 and NT == 3:
            pack(a, 56, acc2(n, 0), acc2(n, 1))
            a.e(f"buffer_store_dwordx4 v[56:59], v11, {WS}, s39 offen sc1")
    st(a, cfg, "us")
    for k in range(3): vm.add("U")
    a.e("s_branch L_stage3")
    for s in sides:
        a.label(f"L_side{R}_{s}")
        if s == 6:
            a.e("v_lshrrev_b32 v18, 7, v17"); a.e("v_lshlrev_b32 v18, 10, v18"); a.e("v_and_b32 v19, 63, v17")
            a.e("v_lshl_add_u32 v18, v19, 4, v18"); a.e("v_bfe_u32 v19, v17, 6, 1"); a.e("v_lshl_add_u32 v18, v19, 3, v18")
            a.e("s_mul_i32 s37, s38, 3072"); a.e(f"s_add_u32 s37, s37, {KVR}")
            for h in range(2):
                a.e(f"v_pk_add_f32 {vr(72+2*h,2)}, {vr(72+2*h,2)}, {vr(76+2*h,2)}")
                a.e(f"v_pk_add_f32 {vr(80+2*h,2)}, {vr(80+2*h,2)}, {vr(84+2*h,2)}")
            for h in range(2): a.e(f"v_pk_add_f32 {vr(72+2*h,2)}, {vr(72+2*h,2)}, {vr(80+2*h,2)}")
            for ctl in ("row_half_mirror", "quad_perm:[1,0,3,2]", "quad_perm:[2,3,0,1]"):
                a.e("s_nop 1")
                for k in range(4): a.e(f"v_add_f32_dpp v{72+k}, v{72+k}, v{72+k} {ctl} row_mask:0xf bank_mask:0xf")
            a.e("v_cvt_pk_bf16_f32 v72, v72, v73"); a.e("v_cvt_pk_bf16_f32 v73, v74, v75")
            a.e("s_mov_b32 s36, 0x01010101"); a.e("s_mov_b32 exec_lo, s36"); a.e("s_mov_b32 exec_hi, s36")
            a.e(f"buffer_store_dwordx2 v[72:73], v18, {WS}, s37 offen sc1")
            a.e("s_mov_b64 exec, -1")
        kvr = [f"buffer_load_dwordx4 {vr(100+4*et,4)}, v11, {WS}, s37 offen offset:{et*1024} sc1" for et in range(3)]
        if s == 5:
            a.e("s_cmp_lg_u32 s20, 6"); a.e(f"s_cbranch_scc1 L_loop2_{R}")
            a.e("s_lshl_b32 s30, s2, 13"); a.e("v_lshlrev_b32 v124, 3, v11")
            a.e(f"buffer_load_dword v125, v124, {sr(SWO,4)}, s30 offen")
        if s == 4:
            a.e("s_lshl_b32 s38, s101, 1")
            if R == 2: a.e("s_add_u32 s38, s38, 1")
            a.e("s_mul_i32 s37, s38, 3072"); a.e(f"s_add_u32 s37, s37, {KVR}")
            for l in kvr: a.e(l)
        if s == 3:
            L, X, C = lbl("kv"), lbl("kvx"), lbl("kvc")
            a.e("s_mov_b32 s36, 0"); a.e(f"s_branch {C}")
            a.label(L)
            for l in kvr: a.e(l)
            a.e("s_waitcnt vmcnt(0)")
            a.label(C)
            a.e("v_max3_u32 v19, v100, v101, v102")
            for k in range(103, 111, 2): a.e(f"v_max3_u32 v19, v19, v{k}, v{k+1}")
            a.e("v_max_u32 v19, v19, v111")
            a.e("v_cmp_eq_u32 vcc, -1, v19")
            a.e("s_add_u32 s36, s36, 1")
            a.e(f"s_cmp_ge_u32 s36, {BOUND}"); a.e(f"s_cbranch_scc1 {X}")
            a.e("s_cmp_lg_u64 vcc, 0"); a.e(f"s_cbranch_scc1 {L}")
            a.label(X)
            for m in range(4):
                for et in range(3):
                    a.e(f"v_mfma_f32_16x16x32_bf16 {vr(160+12*m+4*et,4)}, {vr(100+4*et,4)}, {vr(240+4*m,4)}, 0")
            a.e(f"s_mul_i32 s30, s21, {88*8192}"); a.e("s_lshl_b32 s31, s38, 13"); a.e("s_add_u32 s30, s30, s31")
            a.e("s_and_b32 s31, s20, 1"); a.e("s_lshl_b32 s31, s31, 12"); a.e("s_add_u32 s30, s30, s31")
            a.e(f"s_add_u32 s30, s30, {AU}")
            a.e("s_nop 7")
            for m in range(4): a.e(f"v_add_f32 v{168+12*m}, {f2u(1e-6):#x}, v{168+12*m}")
            for m in range(4): a.e(f"v_rcp_f32 v{168+12*m}, v{168+12*m}")
            for m in range(4): a.e(f"v_mov_b32 v{169+12*m}, v{168+12*m}")
            for m in range(4):
                b = 160 + 12 * m
                for h in range(4): a.e(f"v_pk_mul_f32 {vr(b+2*h,2)}, {vr(b+2*h,2)}, {vr(b+8,2)}")
                pack(a, 208 + 4*m, b, b + 4)
                a.e(f"buffer_store_dwordx4 {vr(208+4*m,4)}, v11, {WS}, s30 offen offset:{m*1024} sc1")
        if s == 2:
            a.e("s_cmp_lg_u32 s20, 4"); a.e(f"s_cbranch_scc1 L_loop2_{R}")
            flag_set(a, 1, 20)
        a.e(f"s_branch L_loop2_{R}")

def stage3(a, cfg, vm):
    LA = cfg.get("k3_la", 7); PRE = cfg.get("pre3", 3); MID = cfg.get("mid3", 2)
    cT = 16 - LA; pT = cT - cfg.get("pollgap", 2)
    def reads(P, T, sub):
        return [f"ds_read_b64_tr_b16 {vr(fw3(P,nt)+2*h,2)}, v{227+nt} offset:{(T % NS)*8192 + sub*4096 + h*2048}" for nt in range(4) for h in range(2)][::(2 if XR[2] else 1)]
    def mfmas(P, T, sub):
        first = sub == 0 and T in (0, 16)
        return [f"v_mfma_f32_16x16x32_bf16 {vr(acc3(T,nt),4)}, {vr(fw3(P,nt),4)}, {vr(fa3(T,sub),4)}, {'0' if first else vr(acc3(T,nt),4)}" for nt in range(4)]
    a.label("L_stage3")
    for T in range(PRE, PRE + MID):
        for g in loads3(vm, T, LA): emit(a, g)
    def upub():
        L = lbl("nou")
        a.e(f"s_cmp_lg_u32 s20, {cfg.get('uw', 0)}"); a.e(f"s_cbranch_scc1 {L}")
        flag_set(a, 2, 20)
        a.label(L)
    uT = cfg.get("uT", -1)
    a.e(f"s_waitcnt vmcnt({vm.need(['U'] if uT < 0 else [('W',0),('A',0,0),('A',0,1)])})")
    a.e("s_barrier")
    st(a, cfg, 6)
    if uT < 0: upub()
    a.e("s_add_u32 s41, s41, 32768")
    a("; hot")
    for r in reads(0, 0, 0): a.e(r)
    for T in range(PRE + MID, NS):
        for g in loads3(vm, T, LA): emit(a, g)
    a.e("s_waitcnt lgkmcnt(0)")
    interleave(a, mfmas(0, 0, 0), [(k // 2 - 1, [r]) for k, r in enumerate(reads(1, 0, 1))])
    for T in range(NT3):
        if T == NT3 - 1:
            a.e("s_waitcnt lgkmcnt(0)")
            for m in mfmas(1, T, 1): a.e(m)
            break
        if T in (cT, cT + 1, 16, 30): st(a, cfg, f"T{T}")
        if T == cT:
            L = lbl("noc")
            a.e("s_cmp_lg_u32 s20, 0"); a.e(f"s_cbranch_scc1 {L}")
            a.e(f"s_waitcnt vmcnt({len(vm.ops) - pidx})")
            flag_spin(a, "s41", 20, pre=True)
            a.label(L)
        a.e(f"s_waitcnt vmcnt({vm.need([('W',T+1),('A',T+1,0),('A',T+1,1)] + (['U'] if T == uT else []))}) lgkmcnt(0)")
        a.e("s_barrier")
        if T == uT: upub()
        if T == pT:
            L = lbl("nop")
            a.e("s_cmp_lg_u32 s20, 0"); a.e(f"s_cbranch_scc1 {L}")
            flag_issue(a, "s41", 20)
            a.label(L)
            pidx = len(vm.ops)
        fill = [(k // 2 - 1, [r]) for k, r in enumerate(reads(0, T + 1, 0))]
        if T + NS < NT3:
            g = wdma(vm, T + NS); i = g.index("@")
            fill.append((0, g[:i])); fill.append((1, g[i+1:]))
        if T + LA < NT3: fill.append((3, aload(vm, T + LA, 0)))
        interleave(a, mfmas(1, T, 1), fill)
        a.e("s_waitcnt lgkmcnt(0)")
        fill = [(k // 2 - 1, [r]) for k, r in enumerate(reads(1, T + 1, 1))]
        if T + LA < NT3: fill.append((2, aload(vm, T + LA, 1)))
        if T3 and T in T3[1:]:
            vm.add("T3")
            fill.append((3, [f"buffer_load_dword v233, v232, {sr(SWOUT,4)}, 0 offen", f"v_add_u32 v232, {1024*2048}, v232"]))
        if T == NT3 - LA:
            for cp in range(2):
                vm.add(("X", cp))
                fill.append((2, [f"buffer_load_dwordx4 {vr(16+4*cp,4)}, v231, {sr(SX,4)}, s26 offen offset:{cp*64}"]))
        interleave(a, mfmas(0, T + 1, 0), fill)
    a("; cold")
    st(a, cfg, 7)
    a.e(f"s_mov_b32 s30, {f2u(-LOG2E):#x}"); a.e(f"s_mov_b32 s31, {f2u(-LOG2E):#x}")
    a.e(f"s_mov_b32 s32, 1.0"); a.e(f"s_mov_b32 s33, 1.0")
    a.e("s_mov_b32 s34, 0xffff0000")
    a.e("s_waitcnt vmcnt(0)")
    for cp in range(2):
        a.e(f"v_permlane16_swap_b32 v{16+4*cp}, v{18+4*cp}"); a.e(f"v_permlane16_swap_b32 v{17+4*cp}, v{19+4*cp}")
    a.e("s_nop 4")
    H, S, T_, X = 144, 128, 24, 40
    for k in range(8): a.e(f"v_pk_mul_f32 {vr(T_+2*k,2)}, {vr(H+2*k,2)}, s[30:31]")
    for k in range(16): a.e(f"v_exp_f32 v{T_+k}, v{T_+k}")
    for k in range(8):
        a.e(f"v_lshlrev_b32 v{X+2*k}, 16, v{16+k}"); a.e(f"v_and_b32 v{X+2*k+1}, s34, v{16+k}")
    for k in range(8): a.e(f"v_pk_add_f32 {vr(T_+2*k,2)}, {vr(T_+2*k,2)}, s[32:33]")
    for k in range(16): a.e(f"v_rcp_f32 v{T_+k}, v{T_+k}")
    for k in range(8): a.e(f"v_pk_mul_f32 {vr(H+2*k,2)}, {vr(H+2*k,2)}, {vr(S+2*k,2)}")
    for k in range(8): a.e(f"v_pk_fma_f32 {vr(X+2*k,2)}, {vr(H+2*k,2)}, {vr(T_+2*k,2)}, {vr(X+2*k,2)}")
    for cp in range(2): pack(a, 16 + 4*cp, X + 8*cp, X + 8*cp + 4)
    a.e("s_nop 1")
    for cp in range(2):
        a.e(f"v_permlane16_swap_b32 v{16+4*cp}, v{18+4*cp}"); a.e(f"v_permlane16_swap_b32 v{17+4*cp}, v{19+4*cp}")
    a.e("s_nop 1")
    ob = cfg.get("ost", "")
    if ob:
        a.e("v_bfe_u32 v28, v0, 3, 1"); a.e(f"v_mul_u32_u24 v28, {32768 - 64}, v28"); a.e("v_sub_u32 v28, v231, v28")
        a.e("s_add_u32 s27, s26, 32768")
        for k in range(4): a.e(f"v_mov_b32 v{24+k}, v{16+k}")
        a.e("s_nop 1")
        for k in range(4): a.e(f"v_mov_b32_dpp v{16+k}, v{20+k} row_ror:8 row_mask:0xf bank_mask:0xc")
        for k in range(4): a.e(f"v_mov_b32_dpp v{20+k}, v{24+k} row_ror:8 row_mask:0xf bank_mask:0x3")
        a.e("s_nop 0")
        for cp in range(2): a.e(f"buffer_store_dwordx4 {vr(16+4*cp,4)}, v28, {sr(SOUT,4)}, s{26+cp} offen {ob.replace('-', '')}")
    else:
      for cp in range(2):
        a.e(f"buffer_store_dwordx4 {vr(16+4*cp,4)}, v231, {sr(SOUT,4)}, s26 offen offset:{cp*64}")
    if cfg.get("tim"):
        a.e("s_memrealtime s[98:99]")
        a.e(f"{'s_memrealtime' if cfg.get('rt') else 's_memtime'} s[30:31]")
        a.e("s_waitcnt lgkmcnt(0)")
        a.e("s_lshl_b32 s100, s2, 3"); a.e("s_add_u32 s100, s100, s20"); a.e("s_lshl_b32 s100, s100, 6"); a.e(f"s_add_u32 s100, s100, {TIM}")
        a.e("v_mov_b32 v0, 0")
        for k, s in enumerate([80 + 2*k for k in range(8)] + [30, 96, 98]):
            a.e(f"v_mov_b32 v1, s{s}")
            a.e(f"buffer_store_dword v1, v0, {WS}, s100 offen offset:{4*k}")
            a.e("s_nop 1")

def srd_at(a, d, b, soff, nbytes):
    a.e(f"s_add_u32 s{d}, s{b}, {soff}"); a.e(f"s_addc_u32 s{d+1}, s{b+1}, 0"); a.e(f"s_and_b32 s{d+1}, s{d+1}, 0xffff")
    a.e(f"s_mov_b32 s{d+2}, {nbytes}"); a.e(f"s_mov_b32 s{d+3}, 0x00020000")

def fused(a, cfg):
    name = KN + "_kernel"
    kernel_begin(a, name)
    a.label("L_start")
    a.e("s_cmp_ge_u32 s2, 256")
    a.e("s_cbranch_scc1 L_end")
    if cfg.get("tim"): a.e("s_memrealtime s[96:97]")
    st(a, cfg, 0)
    a.e("s_load_dwordx16 s[24:39], s[0:1], 0")
    a.e("s_load_dwordx4 s[40:43], s[0:1], 64")
    a.e("s_load_dwordx2 s[44:45], s[0:1], 80")
    if cfg.get("cpf", 0) == 1:
        a.e(f"s_getpc_b64 s[{STCH}:{STCH+1}]")
        a.label("L_pc")
        a.e(f"s_and_b32 s{STCH+1}, s{STCH+1}, 0xffff")
        a.e(f"s_mov_b32 s{STCH+2}, L_end-L_pc"); a.e(f"s_mov_b32 s{STCH+3}, 0x00020000")
        a.e("v_lshlrev_b32 v127, 7, v0")
        a.e(f"buffer_load_dword v127, v127, {sr(STCH,4)}, 0 offen")
    a.e("v_lshrrev_b32 v1, 6, v0")
    a.e("v_and_b32 v12, 63, v0")
    a.e("v_readfirstlane_b32 s20, v1")
    a.e("v_and_b32 v13, 7, v12"); a.e("v_lshrrev_b32 v14, 3, v12")
    a.e("v_bfe_u32 v15, v12, 2, 1"); a.e("v_and_b32 v16, 3, v12"); a.e("v_lshl_add_u32 v15, v15, 3, v16")
    a.e("v_lshlrev_b32 v64, 11, v15"); a.e("v_lshl_add_u32 v64, v14, 4, v64")
    a.e("v_and_b32 v15, 3, v14"); a.e("v_lshlrev_b32 v65, 4, v13"); a.e("v_lshl_add_u32 v65, v15, 8, v65")
    a.e("v_lshrrev_b32 v15, 2, v14"); a.e("v_lshl_add_u32 v65, v15, 13, v65")
    a.e("v_lshlrev_b32 v63, 6, v13"); a.e(f"v_add_u32 v63, {SS}, v63"); a.e("v_lshl_add_u32 v62, v1, 3, v63")
    a.e("s_and_b32 s21, s2, 1"); a.e("s_lshl_b32 s21, s21, 3"); a.e("s_bfe_u32 s46, s2, 0x30003"); a.e("s_add_u32 s21, s21, s46")
    a.e("s_bfe_u32 s22, s2, 0x20001"); a.e("s_lshl_b32 s22, s22, 2"); a.e("s_lshr_b32 s46, s2, 6"); a.e("s_add_u32 s22, s22, s46")
    m3 = cfg.get("map3", 4)
    if m3 == 4:
        a.e("s_and_b32 s50, s2, 3"); a.e("s_lshl_b32 s50, s50, 2"); a.e("s_bfe_u32 s46, s2, 0x20003"); a.e("s_add_u32 s50, s50, s46")
        a.e("s_bfe_u32 s51, s2, 0x10002"); a.e("s_lshl_b32 s51, s51, 3"); a.e("s_lshr_b32 s46, s2, 5"); a.e("s_add_u32 s51, s51, s46")
    elif m3 == 42:
        a.e("s_and_b32 s50, s2, 1"); a.e("s_lshl_b32 s50, s50, 3"); a.e("s_bfe_u32 s46, s2, 0x10001"); a.e("s_lshl_b32 s46, s46, 2"); a.e("s_add_u32 s50, s50, s46")
        a.e("s_bfe_u32 s46, s2, 0x20003"); a.e("s_add_u32 s50, s50, s46")
        a.e("s_bfe_u32 s51, s2, 0x10002"); a.e("s_lshl_b32 s51, s51, 3"); a.e("s_lshr_b32 s46, s2, 5"); a.e("s_add_u32 s51, s51, s46")
    elif m3 == 2:
        a.e("s_and_b32 s50, s2, 7"); a.e("s_lshl_b32 s50, s50, 1"); a.e("s_bfe_u32 s46, s2, 0x10003"); a.e("s_add_u32 s50, s50, s46")
        a.e("s_lshr_b32 s51, s2, 4")
    elif m3 == 8:
        a.e("s_mov_b32 s50, s21"); a.e("s_mov_b32 s51, s22")
    elif m3 == 41:
        a.e("s_and_b32 s50, s2, 3"); a.e("s_lshl_b32 s50, s50, 2"); a.e("s_bfe_u32 s46, s2, 0x20003"); a.e("s_add_u32 s50, s50, s46")
        a.e("s_bfe_u32 s51, s2, 0x10002"); a.e("s_lshr_b32 s46, s2, 5"); a.e("s_lshl_b32 s46, s46, 1"); a.e("s_add_u32 s51, s51, s46")
    m1 = cfg.get("map1", 8)
    if m1 == 4:
        a.e("s_and_b32 s21, s2, 3"); a.e("s_lshl_b32 s21, s21, 2"); a.e("s_bfe_u32 s46, s2, 0x20003"); a.e("s_add_u32 s21, s21, s46")
        a.e("s_bfe_u32 s22, s2, 0x10002"); a.e("s_lshl_b32 s22, s22, 3"); a.e("s_lshr_b32 s46, s2, 5"); a.e("s_add_u32 s22, s22, s46")
    if m1 == 81:
        a.e("s_bfe_u32 s22, s2, 0x20001"); a.e("s_lshr_b32 s46, s2, 6"); a.e("s_lshl_b32 s46, s46, 2"); a.e("s_add_u32 s22, s22, s46")
    jm = cfg.get("jm", 2)
    if jm == 0: a.e("s_mov_b32 s100, s22"); a.e("s_mov_b32 s101, s22")
    elif jm == 2:
        tk = cfg.get("tk", [3, 7, 15, 11, 2, 6, 10, 14, 1, 5, 9, 13, 0, 4, 8, 12])
        tq = cfg.get("tq", [0, 4, 8, 12, 7, 3, 15, 11, 2, 6, 10, 14, 1, 5, 9, 13])
        assert sorted(tk) == list(range(16)) and sorted(tq) == list(range(16))
        a.e("s_lshl_b32 s49, s22, 2")
        for d, t in ((100, tk), (101, tq)):
            c = sum(v << (4 * k) for k, v in enumerate(t))
            a.e(f"s_mov_b32 s46, {c & 0xffffffff:#x}"); a.e(f"s_mov_b32 s47, {c >> 32:#x}")
            a.e("s_lshr_b64 s[46:47], s[46:47], s49"); a.e(f"s_and_b32 s{d}, s46, 15")
    else:
        a.e("s_and_b32 s46, s22, 3"); a.e("s_lshl_b32 s46, s46, 2"); a.e("s_lshr_b32 s47, s22, 2")
        a.e("s_sub_u32 s100, 3, s47"); a.e("s_add_u32 s47, s100, 1"); a.e("s_and_b32 s47, s47, 3")
        a.e("s_add_u32 s100, s100, s46"); a.e("s_add_u32 s101, s47, s46")
    a.e("s_and_b32 s23, s20, 1")
    a.e("v_lshlrev_b32 v11, 4, v12")
    a.e("s_lshl_b32 s46, s20, 11"); a.e("v_add_u32 v2, s46, v11")
    a.e("v_lshrrev_b32 v13, 2, v12"); a.e("s_lshl_b32 s46, s23, 4"); a.e("v_add_u32 v13, s46, v13")
    a.e("v_bfe_u32 v14, v12, 5, 1"); a.e("v_lshlrev_b32 v14, 1, v14"); a.e("v_and_b32 v15, 3, v12"); a.e("v_xor_b32 v14, v14, v15")
    a.e("v_lshrrev_b32 v16, 1, v14")
    a.e("v_lshlrev_b32 v14, 4, v14")
    a.e("v_mul_u32_u24 v3, 6144, v13"); a.e("v_add_u32 v3, v3, v14")
    a.e("v_mul_u32_u24 v4, 7168, v13"); a.e("v_add_u32 v4, v4, v14")
    a.e("s_lshl_b32 s46, s23, 12"); a.e("v_add_u32 v5, s46, v11"); a.e(f"v_add_u32 v6, {2*S1}, v5")
    a.e("v_lshrrev_b32 v13, 5, v12"); a.e("v_mul_u32_u24 v7, 13312, v13")
    a.e("v_bfe_u32 v13, v12, 4, 1"); a.e("v_mul_u32_u24 v14, 544, v13"); a.e("v_add_u32 v7, v7, v14")
    a.e("v_bfe_u32 v14, v12, 2, 2"); a.e("v_lshl_add_u32 v7, v14, 6, v7"); a.e("v_lshl_add_u32 v7, v15, 3, v7")
    a.e("v_add_u32 v7, 8192, v7"); a.e("v_xor_b32 v8, 32, v7")
    a.e(f"v_add_u32 v9, {2*S1}, v7"); a.e(f"v_add_u32 v10, {2*S1}, v8")
    a.e("s_and_b32 s46, s22, 1"); a.e("s_cmp_eq_u32 s46, 0"); a.e("s_cselect_b32 s47, 192, 0"); a.e("s_lshl_b32 s46, s46, 5")
    a.e("v_mul_u32_u24 v15, 3552, v16"); a.e("v_add_u32 v15, v15, v4"); a.e("v_add_u32 v15, s47, v15")
    a.e("v_add_u32 v4, s46, v4")
    a.e("s_lshl_b32 s48, s21, 2"); a.e("s_lshr_b32 s46, s22, 2"); a.e("s_add_u32 s48, s48, s46"); a.e("s_lshl_b32 s48, s48, 5")
    a.e("s_bfe_u32 s46, s22, 0x10001"); a.e("s_lshl_b32 s46, s46, 2"); a.e("s_add_u32 s48, s48, s46")
    a.e("s_and_b32 s46, s22, 1"); a.e("s_lshl_b32 s46, s46, 4"); a.e("s_add_u32 s48, s48, s46")
    a.e("s_lshl_b32 s48, s48, 11"); a.e("s_lshl_b32 s46, s20, 8"); a.e("s_add_u32 s48, s48, s46")
    a.e("s_waitcnt lgkmcnt(0)")
    st(a, cfg, "ka")
    srd(a, SX, 24, 4 * MB)
    for n in range(2):
        a.e(f"buffer_load_dwordx4 v[{16+4*n}:{19+4*n}], v64, {sr(SX,4)}, s48 offen offset:{128*n}")
    srd(a, SWS, 44, WS_SIZE); srd(a, SQKV, 26, 1024 * 6144); srd(a, SWIN, 32, 1024 * 7168)
    srd(a, SDBG, 42, 256); srd(a, SWSP, 34, 2048 * 4096); srd(a, SB, 36, 4096); srd(a, SWO, 28, 1024 * 2048)
    srd(a, SWOUT, 38, 1792 * 2048); srd(a, SOUT, 40, 4 * MB)
    a.e("s_lshr_b32 s46, s20, 1")
    for G in (1, 2, 3):
        a.e(f"s_cmp_eq_u32 s46, {G}"); a.e(f"s_cbranch_scc1 L_g{G}")
    vm = VM()
    for G in range(4):
        a.label(f"L_g{G}")
        D = len(dmas1(G, 0))
        a.e("s_lshl_b32 s24, s21, 18")
        a.e(f"s_lshl_b32 s25, s{101 if G == 0 else 100}, 7")
        if G & 1: a.e(f"s_add_u32 s25, s25, {2048 if G == 1 else 4096}")
        a.e("s_mul_i32 s26, s22, 224")
        a.e("s_lshl_b32 s27, s20, 11")
        a.e("s_mul_i32 s28, s23, 13312")
        TP = cfg.get("pf", 1)
        ln(a, cfg, G)
        if G < 2:
            addr2(a)
            if G == 0:
                L = lbl("nox")
                a.e("s_cmp_lg_u32 s20, 0"); a.e(f"s_cbranch_scc1 {L}")
                if NON:
                    a.e("s_lshl_b32 s30, s21, 11"); a.e(f"s_add_u32 s30, s30, {FLG + 3*32768}")
                    tag_spin(a, "s30", 66)
                else: poll_spin(a, "s30", 66)
                a.label(L)
            a.e("s_barrier")
            st(a, cfg, 1)
            n2 = cfg.get("ln_n2", 4)
            for s in range(4):
                for grp in dmas1(G, s, "A" if s < n2 else "AB"): emit(a, grp)
            c = [2 if s < n2 else 4 for s in range(4)]
            w0 = [sum(c[1:]), sum(c[2:]), c[3] + 4, 8, 8]
        else:
            nt = touch(a, cfg, G) if cfg.get('tpos', 1) == 1 else 0
            addr2(a)
            a.e("s_barrier")
            st(a, cfg, 1)
            for s in range(cfg.get("ln_n2", 4), 4):
                for grp in dmas1(G, s): emit(a, grp)
            if cfg.get('tpos', 1) == 2: nt = touch(a, cfg, G)
            w0 = [3*D + nt, 2*D + nt, 2*D + nt, 2*D + nt, 2*D]
        a.e(f"s_waitcnt vmcnt({w0[0]})")
        a.e("s_barrier")
        st(a, cfg, "d0")
        a("; hot")
        for r in reads1(G, 0, 0): a.e(r)
        tch = G >= 2 and TP
        ts = cfg.get("tstep", 0) if G == 3 else 0
        STG = tch and cfg.get("stg", 3)
        if STG: a.e(f"s_bfe_u32 s41, s2, {0x20000 + STG:#x}")
        for t in range(4):
          if STG: step1(a, cfg, G, t, dmas1(G, t), w0[t + 1] + NTCH(G) * t, first=(t == 0), extra=TOUCHP(G, t))
          else:
            step1(a, cfg, G, t, dmas1(G, t), w0[t + 1] + (NTCH(G) if tch and t > ts else 0), first=(t == 0), extra=TOUCH(G) if tch and t == ts else None)
        a.e("s_mov_b32 s29, 6")
        st(a, cfg, "c6")
        a.label(f"L_loop1_{G}")
        for t in range(4):
          if STG: step1(a, cfg, G, t, dmas1(G, t), 2*D + 3*NTCH(G), extra=TOUCHP(G, t))
          else:
            step1(a, cfg, G, t, dmas1(G, t), 2*D + (NTCH(G) if tch and t != ts else 0),
                  extra=TOUCH(G) if tch and t == ts else None)
        a.e("s_sub_u32 s29, s29, 1")
        for k in range(6):
            if cfg.get("tim") and f"c{k}" in cfg.get("stamps", []):
                L = lbl("st"); a.e(f"s_cmp_lg_u32 s29, {k}"); a.e(f"s_cbranch_scc1 {L}"); st(a, cfg, f"c{k}"); a.label(L)
        a.e("s_cmp_lg_u32 s29, 0"); a.e(f"s_cbranch_scc1 L_loop1_{G}")
        for t in range(3): step1(a, cfg, G, t, [], [2*D, D, 0][t])
        DM = []
        if G < 2:
            a.e("s_lshl_b32 s24, s21, 19"); a.e("s_lshl_b32 s36, s20, 17"); a.e("s_add_u32 s24, s24, s36"); a.e("s_lshl_b32 s27, s20, 12")
            if ROT:
                a.e("s_mov_b32 s26, s24"); a.e("s_add_u32 s25, s24, 4096")
                a.e(f"s_mul_i32 s36, s21, {128*ROT}"); a.e("s_and_b32 s36, s36, 4095"); a.e("s_add_u32 s24, s24, s36")
            for s in range(4): DM += dmas2(0, s)
        step1(a, cfg, G, 3, DM, None, last=True, dpos=(0, 1.6) if False else (0, 2))
        a("; cold")
        st(a, cfg, 2)
        for k, c in ((42, GC1), (44, 1.0), (46, LOG2E), (48, 1e-6)):
            a.e(f"s_mov_b32 s{k}, {f2u(c):#x}"); a.e(f"s_mov_b32 s{k+1}, {f2u(c):#x}")
        a.e(f"v_mov_b32 v12, {f2u(GC0):#x}"); a.e(f"v_mov_b32 v13, {f2u(GC0):#x}")
        epi_addr(a, G)
        if G == 3 and cfg.get("t2", [3]):
            a.e("s_lshl_b32 s30, s21, 2"); a.e("s_and_b32 s31, s22, 3"); a.e("s_add_u32 s30, s30, s31"); a.e("s_lshl_b32 s30, s30, 1")
            a.e("s_add_u32 s30, s30, s23"); a.e("s_lshl_b32 s30, s30, 16")
            a.e("v_and_b32 v124, 15, v1"); a.e("v_lshlrev_b32 v124, 12, v124"); a.e("v_lshrrev_b32 v125, 4, v1"); a.e("v_lshl_add_u32 v124, v125, 10, v124")
            if cfg.get("t2h", 4) < 4:
                a.e(f"v_cmp_gt_u32 vcc, {16 * cfg['t2h']}, v1"); a.e("v_bfrev_b32 v125, 1"); a.e("v_cndmask_b32 v124, v125, v124, vcc")
            for c in cfg.get("t2", [3]): a.e(f"buffer_load_dword v125, v124, {sr(SWSP,4)}, s30 offen offset:{128*c}")
        if G == 3 and cfg.get("wos", 1):
            a.e("s_lshl_b32 s30, s2, 1"); a.e("s_add_u32 s30, s30, s23"); a.e("s_lshl_b32 s30, s30, 12")
            a.e("v_and_b32 v127, 31, v1"); a.e("v_lshlrev_b32 v127, 7, v127")
            a.e(f"buffer_load_dword v125, v127, {sr(SWO,4)}, s30 offen")
            a.e("s_lshl_b32 s30, s21, 1"); a.e("s_add_u32 s30, s30, s23"); a.e("s_lshl_b32 s30, s30, 7"); a.e("v_mov_b32 v126, 0")
            a.e(f"buffer_load_dword v125, v126, {sr(SB,4)}, s30 offen")
        if G == 3:
            a.e("v_and_b32 v127, 15, v1"); a.e("v_lshlrev_b32 v127, 4, v127")
            a.e(f"buffer_load_dword v126, v127, {DBG}, 0 offen sc1")
        epi_z2a(a, cfg, G)
        late = G in cfg.get("late", [])
        if not late: epi_attn(a, cfg, G)
        st(a, cfg, "at")
        epi_z2b(a, cfg, G)
        st(a, cfg, "zs")
        epi_z1(a, cfg, G, 0)
        st(a, cfg, "z1")
        a.e("s_waitcnt vmcnt(0)")
        if G == 3:
            L, X, C = lbl("ini"), lbl("inix"), lbl("inic")
            a.e("s_mov_b32 s36, 0"); a.e(f"s_branch {C}")
            a.label(L)
            a.e(f"buffer_load_dword v126, v127, {DBG}, 0 offen sc1")
            a.e("s_waitcnt vmcnt(0)")
            a.label(C)
            a.e("v_cmp_gt_u32 vcc, 16, v126")
            a.e("s_add_u32 s36, s36, 1")
            a.e(f"s_cmp_ge_u32 s36, {BOUND}"); a.e(f"s_cbranch_scc1 {X}")
            a.e("s_cmp_lg_u64 vcc, 0"); a.e(f"s_cbranch_scc1 {L}")
            a.label(X)
        a.e("s_barrier")
        st(a, cfg, "s3")
        if G == 0:
            L = lbl("noz")
            a.e("s_cmp_lg_u32 s20, 0"); a.e(f"s_cbranch_scc1 {L}")
            flag_set(a, 0, 20)
            a.e("s_lshl_b32 s30, s22, 11"); a.e(f"s_add_u32 s30, s30, {FLG}")
            flag_spin(a, "s30", 24)
            if NON:
                a.e("s_cmp_lg_u32 s2, 0"); a.e(f"s_cbranch_scc1 {L}")
                for k in range(4): a.e(f"v_mov_b32 v{28+k}, v{126 + (k & 1)}")
                a.e(f"s_mov_b32 s30, {FLG + 4*32768}"); a.e("s_mov_b64 exec, 0xff")
                a.e(f"buffer_store_dwordx4 v[28:31], v11, {WS}, s30 offen sc1")
                a.e("s_mov_b64 exec, -1")
            a.label(L)
        epi_z1(a, cfg, G, 1)
        if late: epi_attn(a, cfg, G)
        if G == 0: a.e("s_branch L_r0")
        else: stage2(a, cfg, G - 1, vm)
    stage3(a, cfg, vm)
    a.label("L_end")
    a.e("s_endpgm")
    return (name, "(256,1,1)", "(512,1,1)", LDS, dict(vgpr=256, sgpr=102, accum=256))

def gen(cfg):
    global BOUND, SLEEP, ASC, XR, ROT, T3, LT, NON, TB, T2X
    NON = cfg.get('non', 0); TB = cfg.get('tb', 0); T2X = cfg.get('t2x', 0)
    LT = cfg.get('lt', 1)
    T3 = cfg.get('t3', [0, 2, 16])
    ROT = cfg.get('rot', 0)
    XR = cfg.get('xr', [0, 0, 0])
    ASC = '' if cfg.get('nosc1') else ' sc1'
    BOUND = cfg.get('bound', 6000); SLEEP = cfg.get('sleep', 0)
    Lbl.n = 0
    body = Asm()
    name, g, b, lds, d = fused(body, cfg)
    a = Asm()
    a(f"; @launch grid={g} block={b} lds={lds}")
    a('.amdgcn_target "amdgcn-amd-amdhsa--gfx950"')
    a.lines += [l.strip() if l.startswith("    ") else l for l in body.lines]
    kernel_desc(a, name, **d)
    t = a.text()
    if cfg.get("align", 1):
        from align import align
        t, nfix = align(t)
        if cfg.get("verbose"): print("align fixes (e64, nop, left):", nfix)
    return t
if __name__ == "__main__":
    import sys, json
    cfg = json.loads(sys.argv[2]) if len(sys.argv) > 2 else {}
    if "k1_d" in cfg: cfg["k1_d"] = {int(k): v for k, v in cfg["k1_d"].items()}
    open(sys.argv[1], "w").write(gen(cfg))
```

```python
from gen_common import *
from gen_k1 import gelu8, phi8, pack
import gen_k1
S1 = 34 * 1024
S2 = 30 * 1024
ZS = 4 * S2
SS = ZS + 28 * 1024
CNT = SS + 5 * 1024
LDS = 160 * 1024
BOUND = 6000
SWS, SDBG, SQKV, SWIN, SX, SWSP, SB, SWO, SWOUT, SOUT, STCH = 16, 4, 8, 12, 52, 56, 60, 64, 68, 72, 76
WS, DBG = sr(SWS, 4), sr(SDBG, 4)
ACC = 128
def st(a, cfg, name):
    names = cfg.get("stamps", [0, 1, 2, 3, 4, 5, 6, 7])
    if cfg.get("tim") and name in names:
        idx = names.index(name)
        a.e(f"{'s_memrealtime' if cfg.get('rt') else 's_memtime'} s[{80+2*idx}:{81+2*idx}]")
def emit(a, grp):
    for ins in grp: a.e("s_nop 0" if ins == "@" else ins)
class Lbl:
    n = 0
def lbl(p):
    Lbl.n += 1; return f"L_{p}_{Lbl.n}"
def atomic_inc(a, soff, t=12):
    a.e(f"v_mov_b32 v{t}, 1"); a.e(f"v_mov_b32 v{t+1}, 0")
    a.e("s_mov_b64 exec, 1")
    a.e(f"buffer_atomic_add v{t}, v{t+1}, {DBG}, {soff} offen sc1")
    a.e("s_mov_b64 exec, -1")
def poll_issue(a, soff, t):
    a.e(f"v_mov_b32 v{t+1}, 0")
    a.e("s_mov_b64 exec, 1")
    a.e(f"buffer_load_dword v{t}, v{t+1}, {DBG}, {soff} offen sc1")
    a.e("s_mov_b64 exec, -1")
def poll_spin(a, soff, t, pre=False):
    L, X, C = lbl("poll"), lbl("pollx"), lbl("pollc")
    a.e("s_mov_b32 s36, 0")
    if pre: a.e(f"s_branch {C}")
    a.label(L)
    if SLEEP: a.e(f"s_sleep {SLEEP}")
    poll_issue(a, soff, t)
    a.e("s_waitcnt vmcnt(0)")
    a.label(C)
    a.e(f"v_readfirstlane_b32 s37, v{t}")
    a.e("s_add_u32 s36, s36, 1")
    a.e("s_cmp_ge_u32 s37, 16")
    a.e(f"s_cbranch_scc1 {X}")
    a.e(f"s_cmp_lt_u32 s36, {BOUND}")
    a.e(f"s_cbranch_scc1 {L}")
    a.label(X)

FLG = 45 * MB
def tag_spin(a, soff, t):
    L, X = lbl("poll"), lbl("pollx")
    a.e("s_mov_b32 s36, 0"); a.e(f"v_lshlrev_b32 v{t+2}, 3, v11")
    a.e("s_mov_b64 exec, 0xffff")
    a.label(L)
    a.e(f"buffer_load_dwordx2 {vr(t,2)}, v{t+2}, {WS}, {soff} offen sc1")
    a.e("s_add_u32 s36, s36, 1")
    a.e("s_waitcnt vmcnt(0)")
    a.e(f"v_cmp_ne_u64 vcc, {vr(t,2)}, v[126:127]")
    a.e(f"s_cmp_ge_u32 s36, {BOUND}"); a.e(f"s_cbranch_scc1 {X}")
    a.e("s_cmp_lg_u64 vcc, 0"); a.e(f"s_cbranch_scc1 {L}")
    a.label(X)
    a.e("s_mov_b64 exec, -1")
def flag_set(a, which, t, tag=False):
    A, B = ("s22", "s21") if which == 0 else ("s21", "s22")
    a.e(f"s_lshl_b32 s30, {A}, 4"); a.e(f"s_add_u32 s30, s30, {B}"); a.e("s_lshl_b32 s30, s30, 7"); a.e(f"s_add_u32 s30, s30, {FLG + which*32768}")
    for k in range(4): a.e(f"v_mov_b32 v{t+k}, {'v%d' % (126 + (k & 1)) if tag else 0}")
    a.e("s_mov_b64 exec, 0xff")
    a.e(f"buffer_store_dwordx4 {vr(t,4)}, v11, {WS}, s30 offen sc1")
    a.e("s_mov_b64 exec, -1")
def flag_issue(a, soff, t):
    a.e(f"v_mov_b32 v{t}, 0"); a.e(f"v_lshlrev_b32 v{t+1}, 3, v11")
    a.e("s_mov_b64 exec, 0xffff")
    a.e(f"buffer_load_dword v{t}, v{t+1}, {WS}, {soff} offen sc1")
    a.e("s_mov_b64 exec, -1")
def flag_spin(a, soff, t, pre=False):
    L, X, C = lbl("poll"), lbl("pollx"), lbl("pollc")
    a.e("s_mov_b32 s36, 0")
    if pre: a.e(f"s_branch {C}")
    a.label(L)
    flag_issue(a, soff, t)
    a.e("s_waitcnt vmcnt(0)")
    a.label(C)
    a.e(f"v_cmp_eq_u32 vcc, -1, v{t}")
    a.e("s_add_u32 s36, s36, 1")
    a.e(f"s_cmp_ge_u32 s36, {BOUND}"); a.e(f"s_cbranch_scc1 {X}")
    a.e("s_cmp_lg_u64 vcc, 0"); a.e(f"s_cbranch_scc1 {L}")
    a.label(X)

def acc(n, m): return ACC + (n * 4 + m) * 4
def fa(P, m): return 16 + 16 * P + 4 * m
def fb(P, n): return 48 + 28 * P + 4 * n
def tiles_of(G):
    z1 = lambda p: ("z1", 6 + p // 2 if p < 6 else 9, p & 1 if p < 6 else 0, p)
    z2 = lambda p: ("z2", 10 + p // 2 if p < 6 else 9, p & 1 if p < 6 else 1, p)
    if G == 0: return [("k", 2, 0, 0), ("k", 2, 1, 1), ("v", 4, 0, 0), ("v", 4, 1, 1), z2(0), z2(1), z1(0)]
    if G == 1: return [("k", 3, 0, 0), ("k", 3, 1, 1), ("v", 5, 0, 0), ("v", 5, 1, 1), z2(2), z1(1), z1(2)]
    if G == 2: return [("q", 0, 0, 0), ("q", 0, 1, 1), z2(3), z2(4), z1(3), z1(4)]
    if G == 3: return [("q", 1, 0, 0), ("q", 1, 1, 1), z2(5), z2(6), z1(5), z1(6)]
def dmas1(G, slot, which="AB"):
    out = []
    base = slot * S1
    def B(c, imm, v, srd_, so):
        return [f"s_add_u32 m0, s28, {base + 8192 + c*1024 - imm}", "@",
                f"buffer_load_dwordx4 v{v}, {sr(srd_,4)}, s{so} offen offset:{imm} lds"]
    if G in (0, 1):
        if "A" in which:
            out.append([f"s_add_u32 m0, s27, {base}", "@", f"buffer_load_dwordx4 v2, {WS}, s24 offen{ASC} lds"])
            out.append([f"buffer_load_dwordx4 v2, {WS}, s24 offen offset:1024{ASC} lds", "s_add_u32 s24, s24, 8192"])
        if "B" in which:
            c0 = 0 if G == 0 else 2
            out.append(B(c0, 0, 3, SQKV, 25))
            out.append(B(c0 + 1, 64, 3, SQKV, 25) + [f"s_add_u32 s25, s25, {32*6144}"])
    if G == 2:
        for c in range(3): out.append(B(6 + c, 64 * c, 4, SWIN, 26))
        out.append(B(9, 0, 15, SWIN, 26) + [f"s_add_u32 s26, s26, {32*7168}"])
    if G == 3:
        out.append(B(4, 0, 3, SQKV, 25))
        out.append(B(5, 64, 3, SQKV, 25) + [f"s_add_u32 s25, s25, {32*6144}"])
        for c in range(3): out.append(B(10 + c, 3584 + 64 * c, 4, SWIN, 26))
        out[-1].append(f"s_add_u32 s26, s26, {32*7168}")
    return out
def reads1(G, P, slot):
    hi = slot >> 1
    base = (slot & 1) * S1
    out = [f"ds_read_b128 {vr(fa(P,m),4)}, v{5+hi} offset:{base + m*1024}" for m in range(4)]
    for n, (kind, blk, hf, zn) in enumerate(tiles_of(G)):
        for h in range(2):
            out.append(f"ds_read_b64_tr_b16 {vr(fb(P,n)+2*h,2)}, v{7+2*hi+hf} offset:{base + blk*1024 + h*256}")
    if XR[0] == 1: out = out[::2]
    if XR[0] == 2: out = out[4:]
    return out
def mfmas1(G, P, first=False):
    out = []
    for n, (kind, blk, hf, zn) in enumerate(tiles_of(G)):
        for m in range(4):
            A, Bq = vr(fa(P, m), 4), vr(fb(P, n), 4)
            if kind in ("q", "z1"): A, Bq = Bq, A
            out.append(f"v_mfma_f32_16x16x32_bf16 {vr(acc(n,m),4)}, {A}, {Bq}, {'0' if first else vr(acc(n,m),4)}")
    return out
def place(fill, DM, d0, ds, nM):
    used = set()
    for k, grp in enumerate(DM):
        p = min(d0 + k * ds, nM - 2)
        if "@" in grp:
            assert p not in used; used.add(p)
            i = grp.index("@")
            fill.append((p, grp[:i])); fill.append((p + 1, grp[i+1:]))
        else:
            fill.append((p + 1, grp))
def step1(a, cfg, G, t, DM, nwait, first=False, last=False, extra=None, dpos=None):
    P = t & 1
    a.e(f"s_waitcnt vmcnt({nwait}) lgkmcnt(0)" if nwait is not None else "s_waitcnt lgkmcnt(0)")
    a.e("s_barrier")
    M = mfmas1(G, P, first)
    fill = []
    if not last:
        r0 = cfg.get("k1_r0", 0); rs = cfg.get("k1_rs", 1.0)
        for k, r in enumerate(reads1(G, P ^ 1, (t + 1) & 3)): fill.append((int(r0 + k * rs), [r]))
    d0, ds = dpos or cfg.get("k1_d", {}).get(G, (2, 5))
    place(fill, DM, d0, ds, len(M))
    if cfg.get("dot"):
        nt = len(tiles_of(G))
        ops = [f"v_dot2_f32_bf16 v{240+n}, v{fb(P,n)+h}, s49, v{240+n}" for h in range(2) for n in range(nt)]
        ops += [f"v_dot2_f32_bf16 v{248+u}, v{fa(P,G)+h}, {'s49' if u == 0 else 'v%d' % (fa(P,G)+h)}, v{248+u}" for h in range(4) for u in range(2)]
        for k, o in enumerate(ops): fill.append((int(k * (len(M) - 1) / len(ops)), [o]))
    if extra: fill.append((len(M) - 1, extra))
    interleave(a, M, fill)

def TOUCH(G, single=False):
    t = [f"buffer_load_dword v125, v124, s[76:79], 0 offen", "v_add_u32 v124, s3, v124"]
    if G == 2 and LT: t += [f"buffer_load_dword v125, v126, s[76:79], 0 offen", "v_add_u32 v126, s3, v126"]
    if G == 3 and TB: t = t * 4
    if G == 2 and T2X and not single:
        t = t + t[0::2] + [f"v_xor_b32 v{r}, 0x80000000, v{r}" for r in ((124, 126) if LT else (124,))]
    return t
def TOUCHP(G, t):
    regs = (124, 126) if G == 2 and LT else (124,)
    out = [f"s_cmp_eq_u32 s41, {t}", "s_cselect_b32 s40, 0, 0x40000000"]
    out += [f"v_or_b32 v{240+k}, s40, v{r}" for k, r in enumerate(regs)]
    out += [f"buffer_load_dword v125, v{240+k}, s[76:79], 0 offen" for k, r in enumerate(regs)]
    if t == 3: out += [f"v_add_u32 v{r}, s3, v{r}" for r in regs]
    return out
def NTCH(G, single=False): return sum("buffer_load" in x for x in TOUCH(G, single))
def touch(a, cfg, G):
    if G < 2 or not cfg.get("pf", 1): return 0
    L, L2 = lbl("t"), lbl("t")
    a.e("s_cmp_lg_u32 s23, 0"); a.e(f"s_cbranch_scc1 {L}")
    for mw in range(2):
        if G == 2:
            sb, stride = ((SQKV, 6144), (SWIN, 7168))[mw]
            n = stride // 256
            srd_at(a, STCH, sb, 128 * stride, 896 * stride)
            a.e(f"s_mov_b32 s3, {128 * stride}")
            if LT:
                a.e("s_and_b32 s46, s21, 7"); a.e("s_lshl_b32 s46, s46, 4"); a.e("v_and_b32 v124, 15, v12"); a.e("v_add_u32 v124, s46, v124")
                a.e(f"v_mul_u32_u24 v124, {stride}, v124"); a.e("v_lshrrev_b32 v125, 4, v12")
                if mw == 0:
                    a.e("v_lshl_add_u32 v124, v125, 11, v124"); a.e("s_lshl_b32 s46, s101, 7"); a.e("s_lshl_b32 s47, s100, 7")
                    a.e("v_mov_b32 v125, s47"); a.e("v_mov_b32 v126, s46"); a.e("v_cmp_gt_u32 vcc, 16, v12"); a.e("v_cndmask_b32 v125, v125, v126, vcc")
                else:
                    a.e("v_lshlrev_b32 v125, 7, v125"); a.e("v_min_u32 v125, 220, v125"); a.e("s_mul_i32 s46, s22, 224"); a.e("v_add_u32 v125, s46, v125")
                a.e("v_add_u32 v124, v124, v125")
                a.e("v_cmp_gt_u32 vcc, 48, v12"); a.e("v_bfrev_b32 v126, 2"); a.e("v_cndmask_b32 v124, v126, v124, vcc")
                if mw: a.e("v_add_u32 v126, 3584, v124")
                if mw == 0: a.e(f"s_branch {L2}"); a.label(L)
                continue
            a.e(f"s_mul_i32 s46, s2, {n}"); a.e("v_add_u32 v124, s46, v12"); a.e("v_lshlrev_b32 v124, 7, v124")
            a.e(f"v_cmp_gt_u32 vcc, {n}, v12"); a.e("v_bfrev_b32 v125, 1"); a.e("v_cndmask_b32 v124, v125, v124, vcc")
        else:
            sb, n = ((SWSP, 32768), (SWOUT, 14336))[mw]
            a.e(f"s_mul_i32 s46, s2, {n}"); srd_at(a, STCH, sb, "s46", n)
            nl = cfg.get("tsp", [64, 64])[mw]
            a.e(f"s_mov_b32 s3, {128 * nl}"); a.e(f"v_min_u32 v124, {nl - 1}, v12"); a.e("v_lshlrev_b32 v124, 7, v124")
            dl = cfg.get("tdl", [3, 1])[mw]
            assert (7 - dl) * nl * 128 * (4 if TB else 1) >= n
            if dl: a.e(f"v_subrev_u32 v124, {128 * nl * dl * (4 if TB else 1)}, v124")
        if mw == 0: a.e(f"s_branch {L2}"); a.label(L)
    a.label(L2)
    if G == 3:
        if cfg.get("cpf", 0) >= 2:
            Lp = lbl("pc")
            a.e("s_getpc_b64 s[40:41]"); a.label(Lp)
            a.e(f"s_sub_u32 s40, s40, {Lp}-L_start"); a.e("s_subb_u32 s41, s41, 0"); a.e("s_and_b32 s41, s41, 0xffff")
            a.e("s_mov_b32 s42, L_end-L_start"); a.e("s_mov_b32 s43, 0x00020000")
            if cfg["cpf"] == 2:
                a.e("s_lshr_b32 s46, s2, 3"); a.e("s_lshl_b32 s46, s46, 1"); a.e("s_add_u32 s46, s46, s23"); a.e("s_mul_i32 s46, s46, 9")
                a.e("v_min_u32 v126, 8, v12"); a.e("v_add_u32 v126, s46, v126"); a.e("v_lshlrev_b32 v126, 7, v126")
                a.e("buffer_load_dword v125, v126, s[40:43], 0 offen")
                return 1
            a.e("s_lshl_b32 s46, s23, 6"); a.e("v_add_u32 v126, s46, v12"); a.e("v_lshlrev_b32 v126, 7, v126")
            for k in range(5):
                a.e("buffer_load_dword v125, v126, s[40:43], 0 offen")
                if k < 4: a.e("v_add_u32 v126, 16384, v126")
            return 5
        tl = cfg.get("tlb", 0)
        if tl:
            a.e(f"v_lshlrev_b32 v126, {tl}, v12"); a.e(f"s_lshl_b32 s46, s23, {tl + 6}"); a.e(f"s_add_u32 s46, s46, {Z2N}")
            a.e(f"buffer_load_dword v125, v126, {WS}, s46 offen sc1")
            a.e("v_lshlrev_b32 v126, 12, v12"); a.e("s_lshl_b32 s46, s50, 18")
            a.e(f"buffer_load_dword v125, v126, {sr(SOUT,4)}, s46 offen")
            return 2
        return 0
    for t in range(cfg.get("tn", 1)): emit(a, TOUCH(G, True))
    return cfg.get("tn", 1) * NTCH(G, True)

def ln(a, cfg, G):
    LO, SO, T = 64, 65, 66
    wh = "B" if G < 2 else "AB"
    n0, n1 = cfg.get("ln_n0", 2), cfg.get("ln_n1", 0)
    a.e("s_lshr_b32 s30, s22, 1"); a.e("s_and_b32 s31, s22, 1")
    nv = touch(a, cfg, G) if cfg.get("tpos", 1) == 0 else 0
    if G == 1:
        a.e("s_lshl_b32 s33, s22, 4"); a.e("s_add_u32 s33, s33, s21"); a.e("s_lshl_b32 s34, s21, 4"); a.e("s_add_u32 s34, s34, s22")
        a.e(f"v_mov_b32 v72, s33"); a.e("v_mov_b32 v73, s34"); a.e("v_cmp_gt_u32 vcc, 8, v12"); a.e("v_cndmask_b32 v72, v73, v72, vcc")
        a.e("v_min_u32 v73, 31, v12"); a.e("v_lshrrev_b32 v74, 3, v73"); a.e("v_lshl_add_u32 v72, v74, 8, v72")
        a.e("v_and_b32 v73, 7, v73"); a.e("v_lshlrev_b32 v73, 4, v73"); a.e(f"v_lshl_add_u32 v{T+2}, v72, 7, v73")
        a.e(f"s_mov_b32 s33, {FLG}")
        for k in range(4): a.e(f"v_mov_b32 v{72+k}, -1")
        a.e(f"buffer_store_dwordx4 v[72:75], v{T+2}, {WS}, s33 offen sc1")
        nv += 1
    nd = 0
    for s in range(n0):
        for grp in dmas1(G, s, wh): emit(a, grp); nv += 1; nd += 1
    if G == 0 and NON:
        a.e("v_mov_b32 v125, 0"); a.e(f"s_mov_b32 s33, {FLG + 4*32768}")
        a.e(f"buffer_load_dwordx2 v[126:127], v125, {WS}, s33 offen sc1")
        nv += 1
    if G == 0:
        a.e("s_lshl_b32 s33, s21, 4"); a.e("s_add_u32 s33, s33, s22"); a.e("s_lshl_b32 s33, s33, 10")
        a.e(f"s_add_u32 s33, s33, {STATS}")
        a.e("s_mul_i32 s34, s100, 6144"); a.e("s_mul_i32 s35, s21, 384"); a.e("s_add_u32 s34, s34, s35")
        a.e(f"s_add_u32 s34, s34, {KVR}")
        a.e("s_cmp_eq_u32 s23, 0")
        a.e("s_cselect_b32 s33, s33, s34")
        a.e("s_cselect_b32 s34, 63, 23")
        a.e(f"v_min_u32 v{T+2}, s34, v12"); a.e(f"v_lshlrev_b32 v{T+2}, 4, v{T+2}")
        for k in range(4): a.e(f"v_mov_b32 v{72+k}, -1")
        a.e(f"buffer_store_dwordx4 v[72:75], v{T+2}, {WS}, s33 offen sc1")
        nv += 1
    a.e("s_lshl_b32 s32, s21, 18"); a.e("s_lshl_b32 s33, s30, 10"); a.e("s_add_u32 s32, s32, s33")
    a.e("s_lshl_b32 s33, s31, 7"); a.e("s_add_u32 s32, s32, s33")
    a.e("s_lshl_b32 s33, s20, 15"); a.e("s_add_u32 s32, s32, s33")
    a.e("s_add_u32 s33, s32, 16384")
    a.e("s_mov_b32 s36, 0xffff0000")
    st(a, cfg, "dma")
    a.e(f"s_waitcnt vmcnt({nv})")
    st(a, cfg, "x")
    if cfg.get("tpos", 1) == 3: touch(a, cfg, G)
    for k in range(8):
        a.e(f"v_lshlrev_b32 v{32+2*k}, 16, v{16+k}")
        a.e(f"v_and_b32 v{33+2*k}, s36, v{16+k}")
    x = lambda k: vr(32 + 2*k, 2)
    p0, p1 = vr(T, 2), vr(T+2, 2)
    a.e(f"v_pk_add_f32 {p0}, {x(0)}, {x(1)}"); a.e(f"v_pk_mul_f32 {p1}, {x(0)}, {x(0)}")
    for k in range(1, 8):
        if k > 1: a.e(f"v_pk_add_f32 {p0}, {p0}, {x(k)}")
        a.e(f"v_pk_fma_f32 {p1}, {x(k)}, {x(k)}, {p1}")
    a.e(f"v_add_f32 v{T}, v{T}, v{T+1}"); a.e(f"v_add_f32 v{T+1}, v{T+2}, v{T+3}")
    a.e("s_nop 1")
    for k in range(2): a.e(f"v_add_f32_dpp v{T+k}, v{T+k}, v{T+k} row_ror:8 row_mask:0xf bank_mask:0xf")
    for op in ("v_permlane16_swap_b32", "v_permlane32_swap_b32"):
        for k in range(2): a.e(f"v_mov_b32 v{T+2+k}, v{T+k}")
        a.e("s_nop 1")
        for k in range(2): a.e(f"{op} v{T+2+k}, v{T+k}")
        a.e("s_nop 1")
        a.e(f"v_pk_add_f32 {p0}, {p0}, {p1}")
    a.e("s_mov_b64 exec, 0xff")
    a.e(f"ds_write_b64 v62, {p0}")
    a.e("s_mov_b64 exec, -1")
    a.e("s_waitcnt lgkmcnt(0)")
    a.e("s_barrier")
    for k in range(4): a.e(f"ds_read_b128 {vr(16+4*k,4)}, v63 offset:{16*k}")
    if G == 1 and EI:
        L = lbl("ei")
        a.e("s_cmp_lg_u32 s23, 0"); a.e(f"s_cbranch_scc1 {L}")
        a.e("s_lshl_b32 s34, s21, 4"); a.e(f"s_waitcnt vmcnt({nd})")
        atomic_inc(a, "s34", 76)
        a.label(L)
    a.e("s_waitcnt lgkmcnt(0)")
    for lv in (4, 2, 1):
        for k in range(lv): a.e(f"v_pk_add_f32 {vr(16+2*k,2)}, {vr(16+2*k,2)}, {vr(16+2*(k+lv),2)}")
    a.e(f"v_mul_f32 v16, {f2u(1.0/1024):#x}, v16"); a.e(f"v_mul_f32 v17, {f2u(1.0/1024):#x}, v17")
    a.e("v_fma_f32 v17, -v16, v16, v17"); a.e("v_max_f32 v17, 0, v17"); a.e(f"v_add_f32 v17, {f2u(1e-5):#x}, v17")
    a.e("v_rsq_f32 v18, v17")
    a.e("v_mul_f32 v16, -1.0, v16")
    a.e("v_mov_b32 v17, v16"); a.e("v_mov_b32 v19, v18")
    for k in range(8): a.e(f"v_pk_add_f32 {x(k)}, {x(k)}, v[16:17]")
    for k in range(8): a.e(f"v_pk_mul_f32 {x(k)}, {x(k)}, v[18:19]")
    for k in range(8): a.e(f"v_cvt_pk_bf16_f32 v{20+k}, v{32+2*k}, v{33+2*k}")
    for n in range(2):
        a.e(f"buffer_store_dwordx4 v[{20+4*n}:{23+4*n}], v{SO}, {WS}, s{32+n} offen sc1")
    nv = 0
    if G == 1 and EI:
        assert n1 == 0 and cfg.get("tpos", 1) != 3
        L = lbl("ei")
        a.e("s_cmp_lg_u32 s23, 0"); a.e(f"s_cbranch_scc1 {L}")
        poll_issue(a, "s34", 78)
        a.label(L)
    for s in range(n0, n0 + n1):
        for grp in dmas1(G, s, wh): emit(a, grp); nv += 1
    a.e("s_lshl_b32 s30, s21, 4")
    st(a, cfg, "ln")
    a.e(f"s_waitcnt vmcnt({nv})")
    a.e("s_barrier")
    st(a, cfg, "xn")
    if G == 0:
        L = lbl("noarr")
        a.e("s_cmp_lg_u32 s20, 0"); a.e(f"s_cbranch_scc1 {L}")
        if NON:
            a.e("v_add_u32 v126, 1, v126"); a.e("v_add_u32 v127, 1, v127")
            flag_set(a, 3, 72, tag=True)
            a.e("s_lshl_b32 s30, s21, 4")
        if EI: flag_set(a, 3, 72)
        else: atomic_inc(a, "s30", T)
        a.label(L)
    for s in range(n0 + n1, cfg.get("ln_n2", 4)):
        for grp in dmas1(G, s, wh): emit(a, grp)

def addr2(a):
    a.e("v_lshrrev_b32 v13, 3, v12"); a.e("v_lshrrev_b32 v14, 5, v12"); a.e("v_and_b32 v123, 3, v13")
    a.e("v_lshl_add_u32 v14, v14, 3, v123"); a.e("v_lshlrev_b32 v14, 12, v14")
    a.e("v_lshrrev_b32 v13, 4, v12"); a.e("v_and_b32 v123, 7, v12"); a.e("v_xor_b32 v13, v13, v123")
    a.e("v_lshl_add_u32 v112, v13, 4, v14")
    a.e("v_xor_b32 v113, 64, v112")
    a.e(f"v_add_u32 v114, {16384-2048}, v112")
    a.e(f"v_add_u32 v115, {81920-3072}, v113")
    a.e(f"v_add_u32 v113, {65536-1024}, v113")
    a.e("v_and_b32 v13, 15, v12"); a.e("v_lshrrev_b32 v14, 1, v13"); a.e("v_lshrrev_b32 v123, 4, v12")
    a.e("v_xor_b32 v14, v14, v123"); a.e("v_lshlrev_b32 v14, 4, v14")
    a.e("v_lshl_add_u32 v116, v13, 7, v14")
    a.e("s_and_b32 s36, s20, 3"); a.e("s_lshl_b32 s36, s36, 12")
    a.e("v_add_u32 v116, s36, v116")
    a.e("v_xor_b32 v117, 64, v116")
    a.e(f"v_add_u32 v118, {2*S2}, v116"); a.e(f"v_add_u32 v119, {2*S2}, v117")
    a.e("s_lshr_b32 s36, s20, 2"); a.e("s_lshl_b32 s36, s36, 12"); a.e("s_add_u32 s36, s36, 16384")
    a.e("v_add_u32 v121, s36, v11"); a.e(f"v_add_u32 v122, {2*S2}, v121")
    a.e("v_bfe_u32 v13, v12, 2, 2"); a.e("v_and_b32 v14, 3, v12"); a.e("v_lshl_add_u32 v13, v13, 3, v14")
    a.e("v_lshlrev_b32 v120, 1, v13")

def epi_z2a(a, cfg, G):
    T = tiles_of(G)
    S, Q = 16, 32
    zt = [n for n, t in enumerate(T) if t[0] == "z2"]
    for zi, n in enumerate(zt):
        for p in range(2):
            r0, r1 = acc(n, 2*p), acc(n, 2*p+1)
            xs = [r0, r0+2, r1, r1+2]
            gelu8(a, xs, 104)
            for k in range(4):
                s, q = S + 8*p + 2*k, Q + 8*p + 2*k
                if zi == 0: a.e(f"v_pk_mul_f32 {vr(q,2)}, {vr(xs[k],2)}, {vr(xs[k],2)}")
                else:
                    a.e(f"v_pk_add_f32 {vr(s,2)}, {vr(xs[k]-16,2)}, {vr(xs[k],2)}")
                    a.e(f"v_pk_fma_f32 {vr(q,2)}, {vr(xs[k],2)}, {vr(xs[k],2)}, {vr(q,2)}")
    a.e("s_nop 1")
    src = (lambda k: S + k) if len(zt) > 1 else (lambda k: acc(zt[0], 0) + k)
    for k in range(16): a.e(f"v_add_f32_dpp v{S+k}, v{src(k)}, v{src(k)} row_ror:8 row_mask:0xf bank_mask:0x3")
    for k in range(16): a.e(f"v_add_f32_dpp v{S+k}, v{Q+k}, v{Q+k} row_ror:8 row_mask:0xf bank_mask:0xc")
    for k in range(8): a.e(f"v_add_f32_dpp v{S+k}, v{S+k}, v{S+k} row_shl:4 row_mask:0xf bank_mask:0x5")
    for k in range(8): a.e(f"v_add_f32_dpp v{S+k}, v{S+8+k}, v{S+8+k} row_shr:4 row_mask:0xf bank_mask:0xa")
    for k in range(8): a.e(f"v_add_f32_dpp v{S+k}, v{S+k}, v{S+k} quad_perm:[1,0,3,2] row_mask:0xf bank_mask:0xf")
    for k in range(8): a.e(f"v_add_f32_dpp v{S+k}, v{S+k}, v{S+k} quad_perm:[2,3,0,1] row_mask:0xf bank_mask:0xf")
    a.e("s_mov_b32 s30, 0x11111111"); a.e("s_mov_b32 s31, 0x11111111")
    a.e("s_mov_b64 exec, s[30:31]")
    a.e(f"ds_write_b128 v2, {vr(S,4)} offset:{G*1024}")
    a.e(f"ds_write_b128 v2, {vr(S+4,4)} offset:{G*1024+16}")
    a.e("s_mov_b64 exec, -1")
    st(a, cfg, "g2")
    a.e("s_waitcnt lgkmcnt(0)")
    a.e("s_barrier")
    st(a, cfg, "s1")
    if G == 2:
        for g in range(4): a.e(f"ds_read2st64_b32 {vr(16+2*g,2)}, v3 offset0:{4*g} offset1:{4*g+2}")
        a.e("s_lshl_b32 s34, s21, 14"); a.e(f"s_add_u32 s34, s34, {STATS}")
        a.e("s_lshl_b32 s35, s22, 10"); a.e("s_add_u32 s35, s35, s34")
        a.e("s_waitcnt lgkmcnt(0)")
        a.e("v_pk_add_f32 v[16:17], v[16:17], v[18:19]")
        a.e("v_pk_add_f32 v[20:21], v[20:21], v[22:23]")
        a.e("v_pk_add_f32 v[16:17], v[16:17], v[20:21]")
        a.e(f"buffer_store_dwordx2 v[16:17], v4, {WS}, s35 offen sc1")

def epi_addr(a, G):
    a.e("v_and_b32 v1, 63, v0")
    a.e("v_bfe_u32 v2, v1, 3, 1"); a.e("v_lshlrev_b32 v2, 9, v2")
    a.e("v_bfe_u32 v3, v1, 2, 1"); a.e("v_lshl_add_u32 v2, v3, 7, v2")
    a.e("v_lshrrev_b32 v3, 4, v1"); a.e("v_lshlrev_b32 v5, 5, v3")
    a.e("s_lshl_b32 s30, s23, 8"); a.e(f"s_add_u32 s30, s30, {SS}")
    a.e("v_add_u32 v5, s30, v5")
    a.e("v_add_u32 v2, v2, v5")
    if G == 2:
        a.e("s_lshl_b32 s30, s23, 6"); a.e("v_add_u32 v4, s30, v1")
        a.e("v_lshlrev_b32 v3, 2, v4"); a.e(f"v_add_u32 v3, {SS}, v3")
        a.e("v_lshlrev_b32 v4, 3, v4")
    a.e("s_lshl_b32 s30, s23, 11"); a.e(f"s_add_u32 s30, s30, {ZS}")
    a.e("v_add_u32 v6, s30, v11")

def epi_attn(a, cfg, G):
    if G in (0, 1):
        for k in range(4): a.e(f"v_mov_b32 v{48+k}, 0x3f803f80")
        for et in range(2):
            for p in range(2): pack(a, 32 + 8*et + 4*p, acc(2+et, 2*p), acc(2+et, 2*p+1))
        for dt in range(2):
            for p in range(2):
                r0, r1 = acc(dt, 2*p), acc(dt, 2*p+1)
                phi8(a, [r0, r0+2, r1, r1+2], 104)
                pack(a, 16 + 8*dt + 4*p, r0, r1)
        a.e("s_nop 1")
        for p in range(2):
            for et in range(3):
                for dt in range(2):
                    d = vr(56 + 8*et + 4*dt, 4)
                    Bq = vr(32 + 8*et + 4*p, 4) if et < 2 else vr(48, 4)
                    a.e(f"v_mfma_f32_16x16x32_bf16 {d}, {vr(16+8*dt+4*p,4)}, {Bq}, {'0' if p == 0 else d}")
        a.e(f"s_lshl_b32 s30, s100, 1")
        if G: a.e("s_add_u32 s30, s30, 1")
        a.e("s_lshl_b32 s30, s30, 5"); a.e("s_lshl_b32 s31, s21, 1"); a.e("s_add_u32 s30, s30, s31"); a.e("s_add_u32 s30, s30, s23")
        a.e("s_mul_i32 s30, s30, 6144"); a.e(f"s_add_u32 s30, s30, {KVP}"); a.e("s_add_u32 s31, s30, 4096")
        a.e("s_nop 7")
        for k in range(6):
            a.e(f"buffer_store_dwordx4 {vr(56+4*k,4)}, v11, {WS}, s{30 + (k>>2)} offen offset:{(k&3)*1024} sc1")
    else:
        for m in range(4):
            r0, r1 = acc(0, m), acc(1, m)
            phi8(a, [r0, r0+2, r1, r1+2], 104)
            pack(a, 240 + 4*m, r0, r1)

def epi_z2b(a, cfg, G):
    T = tiles_of(G)
    if G == 2:
        for k in range(1, 4): a.e(f"s_add_u32 s{37+k}, s34, {4096*k}")
        a.e("s_mov_b32 s36, 0")
        L, X = lbl("sp"), lbl("spx")
        a.label(L)
        for k in range(16):
            a.e(f"buffer_load_dwordx2 {vr(32+2*k,2)}, v4, {WS}, s{34 if k < 4 else 37 + (k>>2)} offen offset:{(k&3)*1024} sc1")
        a.e("s_add_u32 s36, s36, 1")
        for lv in (8, 4, 2, 1):
            if lv == 8: a.e("s_waitcnt vmcnt(0)")
            for k in range(lv): a.e(f"v_pk_add_f32 {vr(32+2*k,2)}, {vr(32+2*k,2)}, {vr(32+2*(k+lv),2)}")
        a.e("v_cmp_u_f32 vcc, v32, v33")
        a.e(f"s_cmp_ge_u32 s36, {BOUND}"); a.e(f"s_cbranch_scc1 {X}")
        a.e("s_cmp_lg_u64 vcc, 0"); a.e(f"s_cbranch_scc1 {L}")
        a.label(X)
        a.e(f"v_mul_f32 v32, {f2u(1.0/1792):#x}, v32")
        a.e(f"v_mul_f32 v33, {f2u(1.0/1792):#x}, v33")
        a.e("v_fma_f32 v33, -v32, v32, v33")
        a.e("v_max_f32 v33, 0, v33")
        a.e(f"v_add_f32 v33, {f2u(1e-5):#x}, v33")
        a.e("v_rsq_f32 v33, v33")
        a.e("s_nop 0")
        a.e("v_mul_f32_e64 v32, -v32, v33")
        a.e("ds_write2st64_b32 v3, v33, v32 offset0:16 offset1:18")
        a.e("s_waitcnt lgkmcnt(0)")
    a.e("s_barrier")
    st(a, cfg, 3)
    RS, NM = 16, 32
    if OWN == 2:
        a.e(f"s_mul_i32 s32, s23, {S2}"); a.e("s_add_u32 s32, s32, 16384"); a.e("v_add_u32 v7, s32, v11")
    for p in range(2):
        for q in range(2):
            a.e(f"ds_read_b128 {vr(RS+8*p+4*q,4)}, v5 offset:{4096 + p*128 + q*16}")
            a.e(f"ds_read_b128 {vr(NM+8*p+4*q,4)}, v5 offset:{4608 + p*128 + q*16}")
    a.e("s_lshl_b32 s32, s22, 6"); a.e("s_lshl_b32 s33, s21, 2"); a.e("s_add_u32 s32, s32, s33")
    a.e("s_lshl_b32 s33, s23, 1"); a.e("s_add_u32 s32, s32, s33")
    a.e("s_mul_i32 s32, s32, 7168"); a.e(f"s_add_u32 s32, s32, {Z2N}")
    a.e("s_waitcnt lgkmcnt(0)")
    k = 0
    for n, (kind, blk, hf, pos) in enumerate(T):
        if kind != "z2": continue
        for p in range(2):
            r0, r1 = acc(n, 2*p), acc(n, 2*p+1)
            xs = [r0, r0+2, r1, r1+2]
            for u in range(4): a.e(f"v_pk_fma_f32 {vr(xs[u],2)}, {vr(xs[u],2)}, {vr(RS+8*p+2*u,2)}, {vr(NM+8*p+2*u,2)}")
            d = 80 + 4 * (k & 3); k += 1
            a.e(f"s_add_u32 s33, s32, {p*7168 + pos*1024}")
            pack(a, d, r0, r1)
            a.e(f"buffer_store_dwordx4 {vr(d,4)}, v11, {WS}, s33 offen sc1")
            if OWN == 2: a.e(f"ds_write_b128 v7, {vr(d,4)} offset:{p*7168 + pos*1024}")

def epi_z1(a, cfg, G, which):
    zt = [(n, t[3]) for n, t in enumerate(tiles_of(G)) if t[0] == "z1"]
    for n, pos in zt[which:which+1]:
        for p in range(2):
            r0, r1 = acc(n, 2*p), acc(n, 2*p+1)
            gelu8(a, [r0, r0+2, r1, r1+2], 104)
            pack(a, 96 + 4*p, r0, r1)
            a.e(f"ds_write_b128 v6, {vr(96+4*p,4)} offset:{pos*4096 + p*1024}")

def acc2(n, m): return ACC + (n * 2 + m) * 4
def fw(P, m): return 24 + 8 * P + 4 * m
def fz(P, n): return 40 + 16 * P + 4 * n
def ntiles(R): return 4 if R == 0 else 3
def dmas2(R, slot):
    base = slot * S2
    out = []
    D = 3 if R == 2 else 4
    for n in range(D):
        if R == 0: g = [f"buffer_load_dwordx4 v{112+n}, {sr(SWSP,4)}, s24 offen offset:{n*1024} lds"]
        else: g = [f"buffer_load_dwordx4 v11, {WS}, s24 offen offset:{n*1024}{ASC} lds"]
        if n == 0: g = [f"s_add_u32 m0, s27, {base}", "@"] + g
        if n == D - 1:
            g.append(f"s_add_u32 s24, s24, {128 if R == 0 else 14336}")
            if ROT: g += ["s_cmp_eq_u32 s24, s25", "s_cselect_b32 s24, s26, s24"]
        out.append(g)
    return out
def reads2(R, P, slot, sub):
    hi = slot >> 1
    base = (slot & 1) * S2
    out = [f"ds_read_b128 {vr(fw(P,m),4)}, v{116+2*hi+sub} offset:{base + m*2048}" for m in range(2)]
    out += [f"ds_read_b128 {vr(fz(P,n),4)}, v{121+hi} offset:{base + sub*7168 + n*1024}" for n in range(ntiles(R))]
    if XR[1] == 1: out = out[::2]
    if XR[1] == 2: out = out[2:]
    return out
def mfmas2(R, P, first=False):
    return [f"v_mfma_f32_16x16x32_bf16 {vr(acc2(n,m),4)}, {vr(fz(P,n),4)}, {vr(fw(P,m),4)}, {'0' if first else vr(acc2(n,m),4)}"
            for n in range(ntiles(R)) for m in range(2)]
def body2(a, cfg, R, slot, DM, nwait, last=False, prebar=None, dpos=None):
    a.e(f"s_waitcnt vmcnt({nwait}) lgkmcnt(0)" if nwait is not None else "s_waitcnt lgkmcnt(0)")
    if prebar: prebar()
    if not last: a.e("s_barrier")
    d0, ds = dpos or (cfg.get("k2_d0", 0), cfg.get("k2_ds", 1))
    M = mfmas2(R, 1)
    fill = []
    if not last:
        for k, r in enumerate(reads2(R, 0, (slot + 1) & 3, 0)): fill.append((k - 1, [r]))
    h = len(DM) if last or (cfg.get("k2_all") and not dpos) else (len(DM) + 1) // 2
    place(fill, DM[:h], d0, ds, len(M))
    interleave(a, M, fill)
    if last: return
    a.e("s_waitcnt lgkmcnt(0)")
    M = mfmas2(R, 0)
    fill = [(k - 1, [r]) for k, r in enumerate(reads2(R, 1, (slot + 1) & 3, 1))]
    place(fill, DM[h:], d0, ds, len(M))
    interleave(a, M, fill)

NS, NT3 = 8, 44
def fa3(T, sub): return 160 + 8 * (T % NS) + 4 * sub
def fw3(P, nt): return 88 + 16 * P + 4 * nt
def acc3(T, nt): return (128 if T < 16 else 144) + 4 * nt
class VM:
    def __init__(self): self.ops = []
    def add(self, tag): self.ops.append(tag)
    def need(self, tags):
        assert all(t in self.ops for t in tags), tags
        return min(63, len(self.ops) - 1 - max(i for i, t in enumerate(self.ops) if t in tags))
def aload(vm, T, sub):
    kp = 2 * T + sub - 32
    r = fa3(T, sub)
    vm.add(("A", T, sub))
    if kp >= 0 and kp % 7 == 3:
        vm.add(("A", T, sub))
        return [f"buffer_load_dwordx2 {vr(r,2)}, v225, {WS}, s24 offen{ASC}",
                f"buffer_load_dwordx2 {vr(r+2,2)}, v225, {WS}, s24 offen offset:1024{ASC}", "s_add_u32 s24, s24, 8192"]
    return [f"buffer_load_dwordx4 {vr(r,4)}, v224, {WS}, s24 offen{ASC}", "s_add_u32 s24, s24, 8192"]
def wdma(vm, T):
    vm.add(("W", T))
    return [f"s_add_u32 m0, s27, {(T % NS) * 8192}", "@",
            f"buffer_load_dwordx4 v226, {sr(SWO if T < 16 else SWOUT, 4)}, s25 offen lds",
            "s_mov_b32 s25, s40" if T == 15 else f"s_add_u32 s25, s25, {64*2048}"]
def loads3(vm, T, LA):
    out = [wdma(vm, T)]
    if T < LA: out += [aload(vm, T, 0), aload(vm, T, 1)]
    return out
def addr3(a):
    a.e("v_and_b32 v12, 63, v0")
    a.e("s_lshl_b32 s27, s20, 10")
    a.e("v_add_u32 v224, s27, v11")
    a.e("s_lshr_b32 s38, s20, 1"); a.e("s_lshl_b32 s39, s38, 11"); a.e("s_and_b32 s30, s20, 1"); a.e("s_lshl_b32 s31, s30, 3")
    a.e("s_add_u32 s39, s39, s31"); a.e("v_add_u32 v225, s39, v11")
    a.e("v_lshrrev_b32 v13, 3, v12"); a.e("v_bfe_u32 v14, v12, 4, 2"); a.e("v_lshlrev_b32 v14, 1, v14")
    a.e("v_and_b32 v15, 7, v12"); a.e("v_xor_b32 v14, v14, v15"); a.e("v_lshlrev_b32 v14, 4, v14")
    a.e("v_lshl_add_u32 v226, v13, 11, v14")
    a.e("s_lshl_b32 s39, s20, 14"); a.e("v_add_u32 v226, s39, v226")
    a.e("v_bfe_u32 v13, v12, 2, 3"); a.e("v_lshrrev_b32 v14, 5, v12"); a.e("v_lshlrev_b32 v14, 10, v14")
    a.e("v_lshl_add_u32 v14, v13, 7, v14"); a.e("v_lshrrev_b32 v13, 1, v13"); a.e("v_lshl_add_u32 v14, v13, 5, v14")
    a.e("v_and_b32 v15, 3, v12")
    a.e("v_lshl_add_u32 v227, v15, 3, v14")
    a.e("v_xor_b32 v228, 32, v227"); a.e("v_xor_b32 v229, 64, v227"); a.e("v_xor_b32 v230, 96, v227")
    a.e("v_bfe_u32 v13, v12, 2, 2"); a.e("v_lshl_add_u32 v13, v13, 3, v15"); a.e("v_lshlrev_b32 v231, 11, v13")
    a.e("v_bfe_u32 v13, v12, 4, 1"); a.e("v_lshl_add_u32 v231, v13, 5, v231")
    a.e("v_lshrrev_b32 v13, 5, v12"); a.e("v_lshl_add_u32 v231, v13, 4, v231")
    a.e("s_lshl_b32 s26, s50, 7"); a.e("s_lshl_b32 s38, s38, 5"); a.e("s_add_u32 s26, s26, s38")
    a.e("s_lshl_b32 s30, s30, 2"); a.e("s_add_u32 s26, s26, s30"); a.e("s_lshl_b32 s26, s26, 11")
    a.e("s_lshl_b32 s40, s51, 7"); a.e("s_add_u32 s26, s26, s40")
    a.e(f"s_mul_i32 s24, s50, {88*8192}"); a.e(f"s_add_u32 s24, s24, {AU}")
    a.e("s_mov_b32 s25, s40")
    a.e("s_lshl_b32 s41, s50, 11"); a.e(f"s_add_u32 s41, s41, {FLG + 32768}")
    if T3:
        a.e("s_lshr_b32 s30, s2, 3"); a.e("s_lshl_b32 s30, s30, 3"); a.e("s_add_u32 s30, s30, s20"); a.e("s_lshl_b32 s30, s30, 13")
        a.e("s_and_b32 s31, s51, 8"); a.e("s_add_u32 s31, s31, 3"); a.e("s_lshl_b32 s31, s31, 7"); a.e("s_add_u32 s30, s30, s31")
        a.e("v_lshlrev_b32 v232, 11, v12"); a.e("v_add_u32 v232, s30, v232")
        a.e("v_cmp_gt_u32 vcc, 4, v12"); a.e("v_bfrev_b32 v233, 1"); a.e("v_cndmask_b32 v232, v233, v232, vcc")

def pre2(a, R):
    a.e(f"s_mul_i32 s24, s22, {64*7168}"); a.e(f"s_add_u32 s24, s24, {Z2N}")
    a.e("s_and_b32 s27, s20, 1"); a.e(f"s_mul_i32 s27, s27, {4096 if R == 1 else 3072}")
    if R == 2: a.e("s_add_u32 s27, s27, 8192")
    a.e("s_add_u32 s24, s24, s27"); a.e("s_add_u32 s27, s27, 16384")
    if ROT:
        a.e("s_mov_b32 s26, s24"); a.e(f"s_add_u32 s25, s24, {64*7168}")
        a.e(f"s_mul_i32 s36, s21, {ROT}")
        if OWN == 2: a.e("s_add_u32 s36, s36, 2")
        a.e("s_and_b32 s36, s36, 31"); a.e("s_mul_i32 s36, s36, 14336"); a.e("s_add_u32 s24, s24, s36")
    if OWN == 1:
        assert ROT == 2
        for s in range(2):
            for grp in dmas2(R, s): emit(a, grp)

def stage2(a, cfg, R, vm):
    NT = ntiles(R); D = len(dmas2(R, 0)); nw = 0 if R == 0 else 1
    LA = cfg.get("k3_la", 7); PRE = cfg.get("pre3", 3)
    a.label(f"L_r{R}")
    a.e("s_and_b32 s23, s20, 3")
    if R < 2:
        a.e("s_cmp_ge_u32 s20, 3"); a.e("s_cselect_b32 s36, 1, 0")
        a.e("s_mul_i32 s37, s36, 3"); a.e("s_sub_u32 s37, s20, s37")
        a.e("s_lshl_b32 s38, s100, 1"); a.e("s_add_u32 s38, s38, s36")
        a.e("s_mul_i32 s39, s21, 24"); a.e("s_lshl_b32 s37, s37, 3"); a.e("s_add_u32 s39, s39, s37")
        a.e("v_lshrrev_b32 v17, 3, v1"); a.e("v_add_u32 v17, s39, v17")
        a.e("v_and_b32 v18, 7, v1"); a.e("v_mul_u32_u24 v18, 24576, v18"); a.e("v_lshl_add_u32 v18, v17, 4, v18")
        a.e(f"s_mul_i32 s39, s38, {32*6144}"); a.e(f"s_add_u32 s39, s39, {KVP}")
    if R and OWN != 1: pre2(a, R)
    P2 = cfg.get("p2", 0) if R == 2 else 0
    def ev2(mask):
        out = [f"v_or_b32 v20, {mask}, v22", f"v_or_b32 v21, {mask}, v23"]
        if P2 & 1: out.append(f"buffer_load_dword v125, v20, {sr(SWSP,4)}, 0 offen")
        if P2 & 2: out.append(f"buffer_load_dword v125, v21, {WS}, s40 offen{ASC}")
        return out + ["v_add_u32 v22, 512, v22", "v_add_u32 v23, 57344, v23"]
    NE = bin(P2).count("1")
    if P2:
        a.e("s_lshl_b32 s30, s21, 2"); a.e("s_and_b32 s31, s22, 3"); a.e("s_add_u32 s30, s30, s31"); a.e("s_lshl_b32 s30, s30, 1")
        a.e("s_and_b32 s31, s20, 1"); a.e("s_add_u32 s30, s30, s31"); a.e("s_lshl_b32 s30, s30, 16"); a.e("s_add_u32 s30, s30, 512")
        a.e("v_and_b32 v22, 15, v1"); a.e("v_lshlrev_b32 v22, 12, v22"); a.e("v_lshrrev_b32 v23, 4, v1"); a.e("v_lshl_add_u32 v22, v23, 7, v22")
        a.e("v_add_u32 v22, s30, v22")
        a.e("s_and_b32 s30, s21, 7"); a.e("s_lshl_b32 s30, s30, 1"); a.e("s_add_u32 s30, s30, s31"); a.e("s_mul_i32 s30, s30, 3584")
        a.e("s_add_u32 s30, s30, 57344")
        a.e("v_min_u32 v23, 27, v1"); a.e("v_lshlrev_b32 v23, 7, v23"); a.e("v_add_u32 v23, s30, v23")
        a.e(f"s_mul_i32 s40, s22, {64*7168}"); a.e(f"s_add_u32 s40, s40, {Z2N}")
    a.e("s_waitcnt lgkmcnt(0)")
    a.e("s_barrier")
    st(a, cfg, 4)
    if R:
        for s in range(2 if OWN else 0, 4):
            for grp in dmas2(R, s): emit(a, grp)
    if R < 2:
        for u in range(4):
            a.e(f"buffer_load_dwordx4 {vr(72+4*u,4)}, v18, {WS}, s39 offen sc1")
            if u < 3: a.e("s_add_u32 s39, s39, 6144")
    if P2: emit(a, ev2("0"))
    if OWN != 2:
        if R: a.e(f"s_waitcnt vmcnt({3*D + (4 if R == 1 else 0) + NE})")
        a.e("s_barrier")
    st(a, cfg, "d2")
    if cfg.get("pr2"): a.e(f"s_setprio {cfg['pr2'][R]}")
    a("; hot")
    for r in reads2(R, 0, 0, 0): a.e(r)
    a.e("s_waitcnt lgkmcnt(0)")
    interleave(a, mfmas2(R, 0, True), [(k - 1, [r]) for k, r in enumerate(reads2(R, 1, 0, 1))])
    a.e("s_mov_b32 s29, 7")
    if OWN == 2: a.e("s_waitcnt lgkmcnt(0)"); a.e(f"s_branch L_in2_{R}")
    a.label(f"L_loop2_{R}")
    for t in range(4):
        DM = dmas2(R, t)
        if P2 and t == 0: DM[-1] = DM[-1] + ["s_cmp_eq_u32 s29, 1", "s_cselect_b32 s31, 0x40000000, 0"] + ev2("s31")
        body2(a, cfg, R, t, DM, 2*D + (NE if t else 0), prebar=(lambda: a.label(f"L_in2_{R}")) if OWN == 2 and t == 0 else None)
    a.e("s_sub_u32 s29, s29, 1")
    sides = {0: [6], 1: [6, 4, 3, 2], 2: [4, 3] if cfg.get("wos", 1) else [5, 4, 3]}[R]
    for s in sides:
        a.e(f"s_cmp_eq_u32 s29, {s}"); a.e(f"s_cbranch_scc1 L_side{R}_{s}")
    a.e("s_cmp_lg_u32 s29, 0")
    a.e(f"s_cbranch_scc1 L_loop2_{R}")
    a("; cold")
    st(a, cfg, "l2")
    addr3(a)
    E = 2
    if R == 0: flag_issue(a, "s41", 20); E = 3
    a.e("s_lshl_b32 s30, s21, 8"); a.e("s_lshl_b32 s31, s23, 6"); a.e("s_add_u32 s30, s30, s31")
    a.e(f"buffer_load_ushort v88, v120, {sr(SB,4)}, s30 offen")
    a.e(f"buffer_load_ushort v90, v120, {sr(SB,4)}, s30 offen offset:8")
    a.e(f"s_lshl_b32 s30, s23, 10"); a.e(f"s_add_u32 s30, s30, {ZS + nw*16384}"); a.e("v_add_u32 v16, s30, v11")
    a("; hot")
    tt = 1 if T3 and T3[0] >= 0 else 0
    if tt: a.e(f"buffer_load_dword v233, v232, {sr(SWO,4)}, 0 offen")
    body2(a, cfg, R, 0, [], 2*D + E + tt)
    body2(a, cfg, R, 1, [], D + E + tt)
    vm.ops = ["T3"] * tt
    L3 = []
    for T in range(PRE): L3 += loads3(vm, T, LA)
    n2 = (len(L3) * 2 + 2) // 3
    body2(a, cfg, R, 2, L3[:n2], 2 + tt, prebar=(lambda: flag_spin(a, "s41", 20, pre=True)) if R == 0 else None, dpos=(0, 2))
    body2(a, cfg, R, 3, L3[n2:], None, last=True, dpos=(0, 2))
    a("; cold")
    st(a, cfg, 5)
    for n in range(NT): a.e(f"ds_read_b128 {vr(72+4*n,4)}, v16 offset:{n*4096}")
    a.e("s_mov_b32 s33, 0xffff0000")
    a.e(f"s_mul_i32 s30, s21, {88*8192}"); a.e("s_lshl_b32 s31, s23, 11"); a.e("s_add_u32 s30, s30, s31")
    a.e(f"s_add_u32 s30, s30, {AU + 32*8192}")
    a.e("s_lshr_b32 s32, s22, 1"); a.e(f"s_mul_i32 s32, s32, {7*8192}"); a.e("s_add_u32 s30, s30, s32")
    a.e("s_and_b32 s34, s22, 1")
    a.e("s_lshl_b32 s35, s34, 15"); a.e("s_add_u32 s35, s35, s30")
    if nw == 0: a.e("s_add_u32 s39, s35, 8192")
    else:
        a.e("s_add_u32 s35, s35, 16384")
        a.e("s_lshl_b32 s39, s34, 10"); a.e("s_add_u32 s39, s39, s30"); a.e(f"s_add_u32 s39, s39, {3*8192}")
    a.e(f"s_waitcnt vmcnt({len(vm.ops)})")
    a.e("v_lshlrev_b32 v88, 16, v88"); a.e("v_lshlrev_b32 v90, 16, v90")
    a.e("v_mov_b32 v89, v88"); a.e("v_mov_b32 v91, v90")
    a.e("s_waitcnt lgkmcnt(0)")
    for n in range(NT):
        for m in range(2):
            z = 72 + 4*n + 2*m
            t = 92 + 4 * m
            a.e(f"v_lshlrev_b32 v{t}, 16, v{z}"); a.e(f"v_and_b32 v{t+1}, s33, v{z}")
            a.e(f"v_lshlrev_b32 v{t+2}, 16, v{z+1}"); a.e(f"v_and_b32 v{t+3}, s33, v{z+1}")
            r = acc2(n, m)
            for h in range(2): a.e(f"v_pk_add_f32 {vr(r+2*h,2)}, {vr(r+2*h,2)}, {vr(88+2*m,2)}")
            for h in range(2): a.e(f"v_pk_mul_f32 {vr(r+2*h,2)}, {vr(r+2*h,2)}, {vr(t+2*h,2)}")
        if n & 1:
            for m in range(2):
                d = 48 + 8 * (n >> 1) + 4 * m
                pack(a, d, acc2(n-1, m), acc2(n, m))
                a.e(f"buffer_store_dwordx4 {vr(d,4)}, v11, {WS}, s{35 if n == 1 else 39} offen offset:{m*1024} sc1")
        elif n == 2 and NT == 3:
            pack(a, 56, acc2(n, 0), acc2(n, 1))
            a.e(f"buffer_store_dwordx4 v[56:59], v11, {WS}, s39 offen sc1")
    st(a, cfg, "us")
    for k in range(3): vm.add("U")
    a.e("s_branch L_stage3")
    for s in sides:
        a.label(f"L_side{R}_{s}")
        if s == 6:
            a.e("v_lshrrev_b32 v18, 7, v17"); a.e("v_lshlrev_b32 v18, 10, v18"); a.e("v_and_b32 v19, 63, v17")
            a.e("v_lshl_add_u32 v18, v19, 4, v18"); a.e("v_bfe_u32 v19, v17, 6, 1"); a.e("v_lshl_add_u32 v18, v19, 3, v18")
            a.e("s_mul_i32 s37, s38, 3072"); a.e(f"s_add_u32 s37, s37, {KVR}")
            for h in range(2):
                a.e(f"v_pk_add_f32 {vr(72+2*h,2)}, {vr(72+2*h,2)}, {vr(76+2*h,2)}")
                a.e(f"v_pk_add_f32 {vr(80+2*h,2)}, {vr(80+2*h,2)}, {vr(84+2*h,2)}")
            for h in range(2): a.e(f"v_pk_add_f32 {vr(72+2*h,2)}, {vr(72+2*h,2)}, {vr(80+2*h,2)}")
            for ctl in ("row_half_mirror", "quad_perm:[1,0,3,2]", "quad_perm:[2,3,0,1]"):
                a.e("s_nop 1")
                for k in range(4): a.e(f"v_add_f32_dpp v{72+k}, v{72+k}, v{72+k} {ctl} row_mask:0xf bank_mask:0xf")
            a.e("v_cvt_pk_bf16_f32 v72, v72, v73"); a.e("v_cvt_pk_bf16_f32 v73, v74, v75")
            a.e("s_mov_b32 s36, 0x01010101"); a.e("s_mov_b32 exec_lo, s36"); a.e("s_mov_b32 exec_hi, s36")
            a.e(f"buffer_store_dwordx2 v[72:73], v18, {WS}, s37 offen sc1")
            a.e("s_mov_b64 exec, -1")
        kvr = [f"buffer_load_dwordx4 {vr(100+4*et,4)}, v11, {WS}, s37 offen offset:{et*1024} sc1" for et in range(3)]
        if s == 5:
            a.e("s_cmp_lg_u32 s20, 6"); a.e(f"s_cbranch_scc1 L_loop2_{R}")
            a.e("s_lshl_b32 s30, s2, 13"); a.e("v_lshlrev_b32 v124, 3, v11")
            a.e(f"buffer_load_dword v125, v124, {sr(SWO,4)}, s30 offen")
        if s == 4:
            a.e("s_lshl_b32 s38, s101, 1")
            if R == 2: a.e("s_add_u32 s38, s38, 1")
            a.e("s_mul_i32 s37, s38, 3072"); a.e(f"s_add_u32 s37, s37, {KVR}")
            for l in kvr: a.e(l)
        if s == 3:
            L, X, C = lbl("kv"), lbl("kvx"), lbl("kvc")
            a.e("s_mov_b32 s36, 0"); a.e(f"s_branch {C}")
            a.label(L)
            for l in kvr: a.e(l)
            a.e("s_waitcnt vmcnt(0)")
            a.label(C)
            a.e("v_max3_u32 v19, v100, v101, v102")
            for k in range(103, 111, 2): a.e(f"v_max3_u32 v19, v19, v{k}, v{k+1}")
            a.e("v_max_u32 v19, v19, v111")
            a.e("v_cmp_eq_u32 vcc, -1, v19")
            a.e("s_add_u32 s36, s36, 1")
            a.e(f"s_cmp_ge_u32 s36, {BOUND}"); a.e(f"s_cbranch_scc1 {X}")
            a.e("s_cmp_lg_u64 vcc, 0"); a.e(f"s_cbranch_scc1 {L}")
            a.label(X)
            for m in range(4):
                for et in range(3):
                    a.e(f"v_mfma_f32_16x16x32_bf16 {vr(160+12*m+4*et,4)}, {vr(100+4*et,4)}, {vr(240+4*m,4)}, 0")
            a.e(f"s_mul_i32 s30, s21, {88*8192}"); a.e("s_lshl_b32 s31, s38, 13"); a.e("s_add_u32 s30, s30, s31")
            a.e("s_and_b32 s31, s20, 1"); a.e("s_lshl_b32 s31, s31, 12"); a.e("s_add_u32 s30, s30, s31")
            a.e(f"s_add_u32 s30, s30, {AU}")
            a.e("s_nop 7")
            for m in range(4): a.e(f"v_add_f32 v{168+12*m}, {f2u(1e-6):#x}, v{168+12*m}")
            for m in range(4): a.e(f"v_rcp_f32 v{168+12*m}, v{168+12*m}")
            for m in range(4): a.e(f"v_mov_b32 v{169+12*m}, v{168+12*m}")
            for m in range(4):
                b = 160 + 12 * m
                for h in range(4): a.e(f"v_pk_mul_f32 {vr(b+2*h,2)}, {vr(b+2*h,2)}, {vr(b+8,2)}")
                pack(a, 208 + 4*m, b, b + 4)
                a.e(f"buffer_store_dwordx4 {vr(208+4*m,4)}, v11, {WS}, s30 offen offset:{m*1024} sc1")
        if s == 2:
            a.e("s_cmp_lg_u32 s20, 4"); a.e(f"s_cbranch_scc1 L_loop2_{R}")
            flag_set(a, 1, 20)
        a.e(f"s_branch L_loop2_{R}")

def stage3(a, cfg, vm):
    LA = cfg.get("k3_la", 7); PRE = cfg.get("pre3", 3); MID = cfg.get("mid3", 2)
    cT = 16 - LA; pT = cT - cfg.get("pollgap", 2)
    def reads(P, T, sub):
        return [f"ds_read_b64_tr_b16 {vr(fw3(P,nt)+2*h,2)}, v{227+nt} offset:{(T % NS)*8192 + sub*4096 + h*2048}" for nt in range(4) for h in range(2)][::(2 if XR[2] else 1)]
    def mfmas(P, T, sub):
        first = sub == 0 and T in (0, 16)
        return [f"v_mfma_f32_16x16x32_bf16 {vr(acc3(T,nt),4)}, {vr(fw3(P,nt),4)}, {vr(fa3(T,sub),4)}, {'0' if first else vr(acc3(T,nt),4)}" for nt in range(4)]
    a.label("L_stage3")
    for T in range(PRE, PRE + MID):
        for g in loads3(vm, T, LA): emit(a, g)
    def upub():
        L = lbl("nou")
        a.e(f"s_cmp_lg_u32 s20, {cfg.get('uw', 0)}"); a.e(f"s_cbranch_scc1 {L}")
        flag_set(a, 2, 20)
        a.label(L)
    uT = cfg.get("uT", -1)
    a.e(f"s_waitcnt vmcnt({vm.need(['U'] if uT < 0 else [('W',0),('A',0,0),('A',0,1)])})")
    a.e("s_barrier")
    st(a, cfg, 6)
    if uT < 0: upub()
    a.e("s_add_u32 s41, s41, 32768")
    a("; hot")
    for r in reads(0, 0, 0): a.e(r)
    for T in range(PRE + MID, NS):
        for g in loads3(vm, T, LA): emit(a, g)
    a.e("s_waitcnt lgkmcnt(0)")
    interleave(a, mfmas(0, 0, 0), [(k // 2 - 1, [r]) for k, r in enumerate(reads(1, 0, 1))])
    for T in range(NT3):
        if T == NT3 - 1:
            a.e("s_waitcnt lgkmcnt(0)")
            for m in mfmas(1, T, 1): a.e(m)
            break
        if T in (cT, cT + 1, 16, 30): st(a, cfg, f"T{T}")
        if T == cT:
            L = lbl("noc")
            a.e("s_cmp_lg_u32 s20, 0"); a.e(f"s_cbranch_scc1 {L}")
            a.e(f"s_waitcnt vmcnt({len(vm.ops) - pidx})")
            flag_spin(a, "s41", 20, pre=True)
            a.label(L)
        a.e(f"s_waitcnt vmcnt({vm.need([('W',T+1),('A',T+1,0),('A',T+1,1)] + (['U'] if T == uT else []))}) lgkmcnt(0)")
        a.e("s_barrier")
        if T == uT: upub()
        if T == pT:
            L = lbl("nop")
            a.e("s_cmp_lg_u32 s20, 0"); a.e(f"s_cbranch_scc1 {L}")
            flag_issue(a, "s41", 20)
            a.label(L)
            pidx = len(vm.ops)
        fill = [(k // 2 - 1, [r]) for k, r in enumerate(reads(0, T + 1, 0))]
        if T + NS < NT3:
            g = wdma(vm, T + NS); i = g.index("@")
            fill.append((0, g[:i])); fill.append((1, g[i+1:]))
        if T + LA < NT3: fill.append((3, aload(vm, T + LA, 0)))
        interleave(a, mfmas(1, T, 1), fill)
        a.e("s_waitcnt lgkmcnt(0)")
        fill = [(k // 2 - 1, [r]) for k, r in enumerate(reads(1, T + 1, 1))]
        if T + LA < NT3: fill.append((2, aload(vm, T + LA, 1)))
        if T3 and T in T3[1:]:
            vm.add("T3")
            fill.append((3, [f"buffer_load_dword v233, v232, {sr(SWOUT,4)}, 0 offen", f"v_add_u32 v232, {1024*2048}, v232"]))
        if T == NT3 - LA:
            for cp in range(2):
                vm.add(("X", cp))
                fill.append((2, [f"buffer_load_dwordx4 {vr(16+4*cp,4)}, v231, {sr(SX,4)}, s26 offen offset:{cp*64}"]))
        interleave(a, mfmas(0, T + 1, 0), fill)
    a("; cold")
    st(a, cfg, 7)
    a.e(f"s_mov_b32 s30, {f2u(-LOG2E):#x}"); a.e(f"s_mov_b32 s31, {f2u(-LOG2E):#x}")
    a.e(f"s_mov_b32 s32, 1.0"); a.e(f"s_mov_b32 s33, 1.0")
    a.e("s_mov_b32 s34, 0xffff0000")
    a.e("s_waitcnt vmcnt(0)")
    for cp in range(2):
        a.e(f"v_permlane16_swap_b32 v{16+4*cp}, v{18+4*cp}"); a.e(f"v_permlane16_swap_b32 v{17+4*cp}, v{19+4*cp}")
    a.e("s_nop 4")
    H, S, T_, X = 144, 128, 24, 40
    for k in range(8): a.e(f"v_pk_mul_f32 {vr(T_+2*k,2)}, {vr(H+2*k,2)}, s[30:31]")
    for k in range(16): a.e(f"v_exp_f32 v{T_+k}, v{T_+k}")
    for k in range(8):
        a.e(f"v_lshlrev_b32 v{X+2*k}, 16, v{16+k}"); a.e(f"v_and_b32 v{X+2*k+1}, s34, v{16+k}")
    for k in range(8): a.e(f"v_pk_add_f32 {vr(T_+2*k,2)}, {vr(T_+2*k,2)}, s[32:33]")
    for k in range(16): a.e(f"v_rcp_f32 v{T_+k}, v{T_+k}")
    for k in range(8): a.e(f"v_pk_mul_f32 {vr(H+2*k,2)}, {vr(H+2*k,2)}, {vr(S+2*k,2)}")
    for k in range(8): a.e(f"v_pk_fma_f32 {vr(X+2*k,2)}, {vr(H+2*k,2)}, {vr(T_+2*k,2)}, {vr(X+2*k,2)}")
    for cp in range(2): pack(a, 16 + 4*cp, X + 8*cp, X + 8*cp + 4)
    a.e("s_nop 1")
    for cp in range(2):
        a.e(f"v_permlane16_swap_b32 v{16+4*cp}, v{18+4*cp}"); a.e(f"v_permlane16_swap_b32 v{17+4*cp}, v{19+4*cp}")
    a.e("s_nop 1")
    ob = cfg.get("ost", "")
    if ob:
        a.e("v_bfe_u32 v28, v0, 3, 1"); a.e(f"v_mul_u32_u24 v28, {32768 - 64}, v28"); a.e("v_sub_u32 v28, v231, v28")
        a.e("s_add_u32 s27, s26, 32768")
        for k in range(4): a.e(f"v_mov_b32 v{24+k}, v{16+k}")
        a.e("s_nop 1")
        for k in range(4): a.e(f"v_mov_b32_dpp v{16+k}, v{20+k} row_ror:8 row_mask:0xf bank_mask:0xc")
        for k in range(4): a.e(f"v_mov_b32_dpp v{20+k}, v{24+k} row_ror:8 row_mask:0xf bank_mask:0x3")
        a.e("s_nop 0")
        for cp in range(2): a.e(f"buffer_store_dwordx4 {vr(16+4*cp,4)}, v28, {sr(SOUT,4)}, s{26+cp} offen {ob.replace('-', '')}")
    else:
      for cp in range(2):
        a.e(f"buffer_store_dwordx4 {vr(16+4*cp,4)}, v231, {sr(SOUT,4)}, s26 offen offset:{cp*64}")
    if cfg.get("tim"):
        a.e("s_memrealtime s[98:99]")
        a.e(f"{'s_memrealtime' if cfg.get('rt') else 's_memtime'} s[30:31]")
        a.e("s_waitcnt lgkmcnt(0)")
        a.e("s_lshl_b32 s100, s2, 3"); a.e("s_add_u32 s100, s100, s20"); a.e("s_lshl_b32 s100, s100, 6"); a.e(f"s_add_u32 s100, s100, {TIM}")
        a.e("v_mov_b32 v0, 0")
        for k, s in enumerate([80 + 2*k for k in range(8)] + [30, 96, 98]):
            a.e(f"v_mov_b32 v1, s{s}")
            a.e(f"buffer_store_dword v1, v0, {WS}, s100 offen offset:{4*k}")
            a.e("s_nop 1")

def srd_at(a, d, b, soff, nbytes):
    a.e(f"s_add_u32 s{d}, s{b}, {soff}"); a.e(f"s_addc_u32 s{d+1}, s{b+1}, 0"); a.e(f"s_and_b32 s{d+1}, s{d+1}, 0xffff")
    a.e(f"s_mov_b32 s{d+2}, {nbytes}"); a.e(f"s_mov_b32 s{d+3}, 0x00020000")

def fused(a, cfg):
    name = KN + "_kernel"
    kernel_begin(a, name)
    a.label("L_start")
    a.e("s_cmp_ge_u32 s2, 256")
    a.e("s_cbranch_scc1 L_end")
    if cfg.get("tim"): a.e("s_memrealtime s[96:97]")
    st(a, cfg, 0)
    a.e("s_load_dwordx16 s[24:39], s[0:1], 0")
    a.e("s_load_dwordx4 s[40:43], s[0:1], 64")
    a.e("s_load_dwordx2 s[44:45], s[0:1], 80")
    if cfg.get("cpf", 0) == 1:
        a.e(f"s_getpc_b64 s[{STCH}:{STCH+1}]")
        a.label("L_pc")
        a.e(f"s_and_b32 s{STCH+1}, s{STCH+1}, 0xffff")
        a.e(f"s_mov_b32 s{STCH+2}, L_end-L_pc"); a.e(f"s_mov_b32 s{STCH+3}, 0x00020000")
        a.e("v_lshlrev_b32 v127, 7, v0")
        a.e(f"buffer_load_dword v127, v127, {sr(STCH,4)}, 0 offen")
    a.e("v_lshrrev_b32 v1, 6, v0")
    a.e("v_and_b32 v12, 63, v0")
    a.e("v_readfirstlane_b32 s20, v1")
    a.e("v_and_b32 v13, 7, v12"); a.e("v_lshrrev_b32 v14, 3, v12")
    a.e("v_bfe_u32 v15, v12, 2, 1"); a.e("v_and_b32 v16, 3, v12"); a.e("v_lshl_add_u32 v15, v15, 3, v16")
    a.e("v_lshlrev_b32 v64, 11, v15"); a.e("v_lshl_add_u32 v64, v14, 4, v64")
    a.e("v_and_b32 v15, 3, v14"); a.e("v_lshlrev_b32 v65, 4, v13"); a.e("v_lshl_add_u32 v65, v15, 8, v65")
    a.e("v_lshrrev_b32 v15, 2, v14"); a.e("v_lshl_add_u32 v65, v15, 13, v65")
    a.e("v_lshlrev_b32 v63, 6, v13"); a.e(f"v_add_u32 v63, {SS}, v63"); a.e("v_lshl_add_u32 v62, v1, 3, v63")
    a.e("s_and_b32 s21, s2, 1"); a.e("s_lshl_b32 s21, s21, 3"); a.e("s_bfe_u32 s46, s2, 0x30003"); a.e("s_add_u32 s21, s21, s46")
    a.e("s_bfe_u32 s22, s2, 0x20001"); a.e("s_lshl_b32 s22, s22, 2"); a.e("s_lshr_b32 s46, s2, 6"); a.e("s_add_u32 s22, s22, s46")
    m3 = cfg.get("map3", 4)
    if m3 == 4:
        a.e("s_and_b32 s50, s2, 3"); a.e("s_lshl_b32 s50, s50, 2"); a.e("s_bfe_u32 s46, s2, 0x20003"); a.e("s_add_u32 s50, s50, s46")
        a.e("s_bfe_u32 s51, s2, 0x10002"); a.e("s_lshl_b32 s51, s51, 3"); a.e("s_lshr_b32 s46, s2, 5"); a.e("s_add_u32 s51, s51, s46")
    elif m3 == 42:
        a.e("s_and_b32 s50, s2, 1"); a.e("s_lshl_b32 s50, s50, 3"); a.e("s_bfe_u32 s46, s2, 0x10001"); a.e("s_lshl_b32 s46, s46, 2"); a.e("s_add_u32 s50, s50, s46")
        a.e("s_bfe_u32 s46, s2, 0x20003"); a.e("s_add_u32 s50, s50, s46")
        a.e("s_bfe_u32 s51, s2, 0x10002"); a.e("s_lshl_b32 s51, s51, 3"); a.e("s_lshr_b32 s46, s2, 5"); a.e("s_add_u32 s51, s51, s46")
    elif m3 == 2:
        a.e("s_and_b32 s50, s2, 7"); a.e("s_lshl_b32 s50, s50, 1"); a.e("s_bfe_u32 s46, s2, 0x10003"); a.e("s_add_u32 s50, s50, s46")
        a.e("s_lshr_b32 s51, s2, 4")
    elif m3 == 8:
        a.e("s_mov_b32 s50, s21"); a.e("s_mov_b32 s51, s22")
    elif m3 == 41:
        a.e("s_and_b32 s50, s2, 3"); a.e("s_lshl_b32 s50, s50, 2"); a.e("s_bfe_u32 s46, s2, 0x20003"); a.e("s_add_u32 s50, s50, s46")
        a.e("s_bfe_u32 s51, s2, 0x10002"); a.e("s_lshr_b32 s46, s2, 5"); a.e("s_lshl_b32 s46, s46, 1"); a.e("s_add_u32 s51, s51, s46")
    m1 = cfg.get("map1", 8)
    if m1 == 4:
        a.e("s_and_b32 s21, s2, 3"); a.e("s_lshl_b32 s21, s21, 2"); a.e("s_bfe_u32 s46, s2, 0x20003"); a.e("s_add_u32 s21, s21, s46")
        a.e("s_bfe_u32 s22, s2, 0x10002"); a.e("s_lshl_b32 s22, s22, 3"); a.e("s_lshr_b32 s46, s2, 5"); a.e("s_add_u32 s22, s22, s46")
    if m1 == 81:
        a.e("s_bfe_u32 s22, s2, 0x20001"); a.e("s_lshr_b32 s46, s2, 6"); a.e("s_lshl_b32 s46, s46, 2"); a.e("s_add_u32 s22, s22, s46")
    jm = cfg.get("jm", 2)
    if jm == 0: a.e("s_mov_b32 s100, s22"); a.e("s_mov_b32 s101, s22")
    elif jm == 2:
        tk = cfg.get("tk", [3, 7, 15, 11, 2, 6, 10, 14, 1, 5, 9, 13, 0, 4, 8, 12])
        tq = cfg.get("tq", [0, 4, 8, 12, 7, 3, 15, 11, 2, 6, 10, 14, 1, 5, 9, 13])
        assert sorted(tk) == list(range(16)) and sorted(tq) == list(range(16))
        a.e("s_lshl_b32 s49, s22, 2")
        for d, t in ((100, tk), (101, tq)):
            c = sum(v << (4 * k) for k, v in enumerate(t))
            a.e(f"s_mov_b32 s46, {c & 0xffffffff:#x}"); a.e(f"s_mov_b32 s47, {c >> 32:#x}")
            a.e("s_lshr_b64 s[46:47], s[46:47], s49"); a.e(f"s_and_b32 s{d}, s46, 15")
    else:
        a.e("s_and_b32 s46, s22, 3"); a.e("s_lshl_b32 s46, s46, 2"); a.e("s_lshr_b32 s47, s22, 2")
        a.e("s_sub_u32 s100, 3, s47"); a.e("s_add_u32 s47, s100, 1"); a.e("s_and_b32 s47, s47, 3")
        a.e("s_add_u32 s100, s100, s46"); a.e("s_add_u32 s101, s47, s46")
    a.e("s_and_b32 s23, s20, 1")
    a.e("v_lshlrev_b32 v11, 4, v12")
    a.e("s_lshl_b32 s46, s20, 11"); a.e("v_add_u32 v2, s46, v11")
    a.e("v_lshrrev_b32 v13, 2, v12"); a.e("s_lshl_b32 s46, s23, 4"); a.e("v_add_u32 v13, s46, v13")
    a.e("v_bfe_u32 v14, v12, 5, 1"); a.e("v_lshlrev_b32 v14, 1, v14"); a.e("v_and_b32 v15, 3, v12"); a.e("v_xor_b32 v14, v14, v15")
    a.e("v_lshrrev_b32 v16, 1, v14")
    a.e("v_lshlrev_b32 v14, 4, v14")
    a.e("v_mul_u32_u24 v3, 6144, v13"); a.e("v_add_u32 v3, v3, v14")
    a.e("v_mul_u32_u24 v4, 7168, v13"); a.e("v_add_u32 v4, v4, v14")
    a.e("s_lshl_b32 s46, s23, 12"); a.e("v_add_u32 v5, s46, v11"); a.e(f"v_add_u32 v6, {2*S1}, v5")
    a.e("v_lshrrev_b32 v13, 5, v12"); a.e("v_mul_u32_u24 v7, 13312, v13")
    a.e("v_bfe_u32 v13, v12, 4, 1"); a.e("v_mul_u32_u24 v14, 544, v13"); a.e("v_add_u32 v7, v7, v14")
    a.e("v_bfe_u32 v14, v12, 2, 2"); a.e("v_lshl_add_u32 v7, v14, 6, v7"); a.e("v_lshl_add_u32 v7, v15, 3, v7")
    a.e("v_add_u32 v7, 8192, v7"); a.e("v_xor_b32 v8, 32, v7")
    a.e(f"v_add_u32 v9, {2*S1}, v7"); a.e(f"v_add_u32 v10, {2*S1}, v8")
    a.e("s_and_b32 s46, s22, 1"); a.e("s_cmp_eq_u32 s46, 0"); a.e("s_cselect_b32 s47, 192, 0"); a.e("s_lshl_b32 s46, s46, 5")
    a.e("v_mul_u32_u24 v15, 3552, v16"); a.e("v_add_u32 v15, v15, v4"); a.e("v_add_u32 v15, s47, v15")
    a.e("v_add_u32 v4, s46, v4")
    a.e("s_lshl_b32 s48, s21, 2"); a.e("s_lshr_b32 s46, s22, 2"); a.e("s_add_u32 s48, s48, s46"); a.e("s_lshl_b32 s48, s48, 5")
    a.e("s_bfe_u32 s46, s22, 0x10001"); a.e("s_lshl_b32 s46, s46, 2"); a.e("s_add_u32 s48, s48, s46")
    a.e("s_and_b32 s46, s22, 1"); a.e("s_lshl_b32 s46, s46, 4"); a.e("s_add_u32 s48, s48, s46")
    a.e("s_lshl_b32 s48, s48, 11"); a.e("s_lshl_b32 s46, s20, 8"); a.e("s_add_u32 s48, s48, s46")
    a.e("s_waitcnt lgkmcnt(0)")
    st(a, cfg, "ka")
    srd(a, SX, 24, 4 * MB)
    for n in range(2):
        a.e(f"buffer_load_dwordx4 v[{16+4*n}:{19+4*n}], v64, {sr(SX,4)}, s48 offen offset:{128*n}")
    srd(a, SWS, 44, WS_SIZE); srd(a, SQKV, 26, 1024 * 6144); srd(a, SWIN, 32, 1024 * 7168)
    srd(a, SDBG, 42, 256); srd(a, SWSP, 34, 2048 * 4096); srd(a, SB, 36, 4096); srd(a, SWO, 28, 1024 * 2048)
    srd(a, SWOUT, 38, 1792 * 2048); srd(a, SOUT, 40, 4 * MB)
    a.e("s_lshr_b32 s46, s20, 1")
    for G in (1, 2, 3):
        a.e(f"s_cmp_eq_u32 s46, {G}"); a.e(f"s_cbranch_scc1 L_g{G}")
    vm = VM()
    for G in range(4):
        a.label(f"L_g{G}")
        D = len(dmas1(G, 0))
        a.e("s_lshl_b32 s24, s21, 18")
        a.e(f"s_lshl_b32 s25, s{101 if G == 0 else 100}, 7")
        if G & 1: a.e(f"s_add_u32 s25, s25, {2048 if G == 1 else 4096}")
        a.e("s_mul_i32 s26, s22, 224")
        a.e("s_lshl_b32 s27, s20, 11")
        a.e("s_mul_i32 s28, s23, 13312")
        TP = cfg.get("pf", 1)
        ln(a, cfg, G)
        if G < 2:
            addr2(a)
            if G == 1 and EI:
                L = lbl("nox")
                a.e("s_cmp_lg_u32 s23, 0"); a.e(f"s_cbranch_scc1 {L}")
                poll_spin(a, "s34", 78, pre=True)
                a.e("s_lshl_b32 s30, s21, 11"); a.e(f"s_add_u32 s30, s30, {FLG + 3*32768}")
                flag_spin(a, "s30", 66)
                a.label(L)
            if G == 0 and not EI:
                L = lbl("nox")
                a.e("s_cmp_lg_u32 s20, 0"); a.e(f"s_cbranch_scc1 {L}")
                if NON:
                    a.e("s_lshl_b32 s30, s21, 11"); a.e(f"s_add_u32 s30, s30, {FLG + 3*32768}")
                    tag_spin(a, "s30", 66)
                else: poll_spin(a, "s30", 66)
                a.label(L)
            a.e("s_barrier")
            st(a, cfg, 1)
            n2 = cfg.get("ln_n2", 4)
            for s in range(4):
                for grp in dmas1(G, s, "A" if s < n2 else "AB"): emit(a, grp)
            c = [2 if s < n2 else 4 for s in range(4)]
            w0 = [sum(c[1:]), sum(c[2:]), c[3] + 4, 8, 8]
        else:
            nt = touch(a, cfg, G) if cfg.get('tpos', 1) == 1 else 0
            addr2(a)
            a.e("s_barrier")
            st(a, cfg, 1)
            for s in range(cfg.get("ln_n2", 4), 4):
                for grp in dmas1(G, s): emit(a, grp)
            if cfg.get('tpos', 1) == 2: nt = touch(a, cfg, G)
            w0 = [3*D + nt, 2*D + nt, 2*D + nt, 2*D + nt, 2*D]
        a.e(f"s_waitcnt vmcnt({w0[0]})")
        a.e("s_barrier")
        st(a, cfg, "d0")
        if cfg.get("pr1"): a.e(f"s_setprio {cfg['pr1'][G]}")
        a("; hot")
        for r in reads1(G, 0, 0): a.e(r)
        tch = G >= 2 and TP
        ts = cfg.get("tstep", 0) if G == 3 else 0
        STG = tch and cfg.get("stg", 3)
        if STG: a.e(f"s_bfe_u32 s41, s2, {0x20000 + STG:#x}")
        for t in range(4):
          if STG: step1(a, cfg, G, t, dmas1(G, t), w0[t + 1] + NTCH(G) * t, first=(t == 0), extra=TOUCHP(G, t))
          else:
            step1(a, cfg, G, t, dmas1(G, t), w0[t + 1] + (NTCH(G) if tch and t > ts else 0), first=(t == 0), extra=TOUCH(G) if tch and t == ts else None)
        a.e("s_mov_b32 s29, 6")
        st(a, cfg, "c6")
        a.label(f"L_loop1_{G}")
        for t in range(4):
          if STG: step1(a, cfg, G, t, dmas1(G, t), 2*D + 3*NTCH(G), extra=TOUCHP(G, t))
          else:
            step1(a, cfg, G, t, dmas1(G, t), 2*D + (NTCH(G) if tch and t != ts else 0),
                  extra=TOUCH(G) if tch and t == ts else None)
        a.e("s_sub_u32 s29, s29, 1")
        for k in range(6):
            if cfg.get("tim") and f"c{k}" in cfg.get("stamps", []):
                L = lbl("st"); a.e(f"s_cmp_lg_u32 s29, {k}"); a.e(f"s_cbranch_scc1 {L}"); st(a, cfg, f"c{k}"); a.label(L)
        a.e("s_cmp_lg_u32 s29, 0"); a.e(f"s_cbranch_scc1 L_loop1_{G}")
        for t in range(3): step1(a, cfg, G, t, [], [2*D, D, 0][t])
        DM = []
        if G < 2:
            a.e("s_lshl_b32 s24, s21, 19"); a.e("s_lshl_b32 s36, s20, 17"); a.e("s_add_u32 s24, s24, s36"); a.e("s_lshl_b32 s27, s20, 12")
            if ROT:
                a.e("s_mov_b32 s26, s24"); a.e("s_add_u32 s25, s24, 4096")
                a.e(f"s_mul_i32 s36, s21, {128*ROT}"); a.e("s_and_b32 s36, s36, 4095"); a.e("s_add_u32 s24, s24, s36")
            for s in range(4): DM += dmas2(0, s)
        step1(a, cfg, G, 3, DM, None, last=True, dpos=(0, 1.6) if False else (0, 2))
        a("; cold")
        st(a, cfg, 2)
        if cfg.get("pre"): a.e(f"s_setprio {cfg['pre'][G]}")
        for k, c in ((42, GC1), (44, 1.0), (46, LOG2E), (48, 1e-6)):
            a.e(f"s_mov_b32 s{k}, {f2u(c):#x}"); a.e(f"s_mov_b32 s{k+1}, {f2u(c):#x}")
        a.e(f"v_mov_b32 v12, {f2u(GC0):#x}"); a.e(f"v_mov_b32 v13, {f2u(GC0):#x}")
        epi_addr(a, G)
        if G == 3 and cfg.get("t2", [3]):
            a.e("s_lshl_b32 s30, s21, 2"); a.e("s_and_b32 s31, s22, 3"); a.e("s_add_u32 s30, s30, s31"); a.e("s_lshl_b32 s30, s30, 1")
            a.e("s_add_u32 s30, s30, s23"); a.e("s_lshl_b32 s30, s30, 16")
            a.e("v_and_b32 v124, 15, v1"); a.e("v_lshlrev_b32 v124, 12, v124"); a.e("v_lshrrev_b32 v125, 4, v1"); a.e("v_lshl_add_u32 v124, v125, 10, v124")
            if cfg.get("t2h", 4) < 4:
                a.e(f"v_cmp_gt_u32 vcc, {16 * cfg['t2h']}, v1"); a.e("v_bfrev_b32 v125, 1"); a.e("v_cndmask_b32 v124, v125, v124, vcc")
            for c in cfg.get("t2", [3]): a.e(f"buffer_load_dword v125, v124, {sr(SWSP,4)}, s30 offen offset:{128*c}")
        if G == 3 and cfg.get("wos", 1):
            a.e("s_lshl_b32 s30, s2, 1"); a.e("s_add_u32 s30, s30, s23"); a.e("s_lshl_b32 s30, s30, 12")
            a.e("v_and_b32 v127, 31, v1"); a.e("v_lshlrev_b32 v127, 7, v127")
            a.e(f"buffer_load_dword v125, v127, {sr(SWO,4)}, s30 offen")
            a.e("s_lshl_b32 s30, s21, 1"); a.e("s_add_u32 s30, s30, s23"); a.e("s_lshl_b32 s30, s30, 7"); a.e("v_mov_b32 v126, 0")
            a.e(f"buffer_load_dword v125, v126, {sr(SB,4)}, s30 offen")
        if G == 3:
            a.e("v_and_b32 v127, 15, v1"); a.e("v_lshlrev_b32 v127, 4, v127")
            a.e(f"buffer_load_dword v126, v127, {DBG}, 0 offen sc1")
        epi_z2a(a, cfg, G)
        late = G in cfg.get("late", [])
        if not late: epi_attn(a, cfg, G)
        st(a, cfg, "at")
        epi_z2b(a, cfg, G)
        st(a, cfg, "zs")
        epi_z1(a, cfg, G, 0)
        st(a, cfg, "z1")
        a.e("s_waitcnt vmcnt(0)")
        if G == 3:
            L, X, C = lbl("ini"), lbl("inix"), lbl("inic")
            a.e("s_mov_b32 s36, 0"); a.e(f"s_branch {C}")
            a.label(L)
            a.e(f"buffer_load_dword v126, v127, {DBG}, 0 offen sc1")
            a.e("s_waitcnt vmcnt(0)")
            a.label(C)
            a.e("v_cmp_gt_u32 vcc, 16, v126")
            a.e("s_add_u32 s36, s36, 1")
            a.e(f"s_cmp_ge_u32 s36, {BOUND}"); a.e(f"s_cbranch_scc1 {X}")
            a.e("s_cmp_lg_u64 vcc, 0"); a.e(f"s_cbranch_scc1 {L}")
            a.label(X)
        a.e("s_barrier")
        st(a, cfg, "s3")
        if G == 0:
            L = lbl("noz")
            a.e("s_cmp_lg_u32 s20, 0"); a.e(f"s_cbranch_scc1 {L}")
            flag_set(a, 0, 20)
            a.e("s_lshl_b32 s30, s22, 11"); a.e(f"s_add_u32 s30, s30, {FLG}")
            flag_spin(a, "s30", 24)
            if NON:
                a.e("s_cmp_lg_u32 s2, 0"); a.e(f"s_cbranch_scc1 {L}")
                for k in range(4): a.e(f"v_mov_b32 v{28+k}, v{126 + (k & 1)}")
                a.e(f"s_mov_b32 s30, {FLG + 4*32768}"); a.e("s_mov_b64 exec, 0xff")
                a.e(f"buffer_store_dwordx4 v[28:31], v11, {WS}, s30 offen sc1")
                a.e("s_mov_b64 exec, -1")
            a.label(L)
        if G >= 2 and OWN == 1: pre2(a, G - 1)
        epi_z1(a, cfg, G, 1)
        if late: epi_attn(a, cfg, G)
        if G == 0: a.e("s_branch L_r0")
        else: stage2(a, cfg, G - 1, vm)
    stage3(a, cfg, vm)
    a.label("L_end")
    a.e("s_endpgm")
    return (name, "(256,1,1)", "(512,1,1)", LDS, dict(vgpr=256, sgpr=102, accum=256))

def gen(cfg):
    global BOUND, SLEEP, ASC, XR, ROT, T3, LT, NON, TB, T2X, EI, OWN
    OWN = cfg.get('own', 0); EI = cfg.get('ei', 0); NON = cfg.get('non', 0); assert not (EI and NON); TB = cfg.get('tb', 0); T2X = cfg.get('t2x', 0)
    LT = cfg.get('lt', 1)
    T3 = cfg.get('t3', [0, 2, 16])
    ROT = cfg.get('rot', 0)
    XR = cfg.get('xr', [0, 0, 0])
    ASC = '' if cfg.get('nosc1') else ' sc1'
    BOUND = cfg.get('bound', 6000); SLEEP = cfg.get('sleep', 0)
    Lbl.n = 0
    body = Asm()
    name, g, b, lds, d = fused(body, cfg)
    a = Asm()
    a(f"; @launch grid={g} block={b} lds={lds}")
    a('.amdgcn_target "amdgcn-amd-amdhsa--gfx950"')
    a.lines += [l.strip() if l.startswith("    ") else l for l in body.lines]
    kernel_desc(a, name, **d)
    t = a.text()
    if cfg.get("align", 1):
        from align import align
        t, nfix = align(t)
        if cfg.get("verbose"): print("align fixes (e64, nop, left):", nfix)
    return t
if __name__ == "__main__":
    import sys, json
    cfg = json.loads(sys.argv[2]) if len(sys.argv) > 2 else {}
    if "k1_d" in cfg: cfg["k1_d"] = {int(k): v for k, v in cfg["k1_d"].items()}
    open(sys.argv[1], "w").write(gen(cfg))
```
